```python
import torch

def _softmax(x, axis=-1):
    return torch.softmax(x, dim=axis)

def _gelu(x):
    return torch.nn.functional.gelu(x, approximate='tanh')

def _silu(x):
    return torch.nn.functional.silu(x)

def _sigmoid(x):
    return torch.sigmoid(x)

def _layernorm(x, axis=-1, eps=1e-05):
    m = x.mean(dim=axis, keepdim=True)
    v = x.var(dim=axis, keepdim=True, unbiased=False)
    return (x - m) / torch.sqrt(v + eps)

def _scatter_add(tgt, idx, src, axis=0):
    return tgt.clone().index_add_(axis, idx, src)

def _segment_sum(src, seg, n):
    out = torch.zeros((n,) + src.shape[1:], dtype=src.dtype)
    return out.index_add_(0, seg, src)

def _pad(x, pw):
    flat = tuple((v for pair in reversed(pw) for v in pair))
    return torch.nn.functional.pad(x, flat)
kernel_name = 'parallel_sum__memory_aug_recurrent_mem_tr__dense_activation_silu__prompt'

def setup_inputs():

    _w = lambda a: (lambda t: t.to(torch.bfloat16) if t.is_floating_point() else t)(torch.as_tensor(a))

    def _A_setup():
        B, S, Dm = (1, 2048, 512)
        H, Dh = (32, 128)
        M, seg = (8, 32)
        seg = min(seg, S)
        S = S // seg * seg
        return {'x': _w((lambda *s: torch.randn(*s, dtype=torch.bfloat16) * 0.05)(B, S, Dm)), 'mem0': _w((lambda *s: torch.randn(*s, dtype=torch.bfloat16) * 0.4)(B, M, Dm)), 'Wq': _w((lambda *s: torch.randn(*s, dtype=torch.bfloat16) * 3.2)(Dm, H, Dh) * Dm ** (-0.5)), 'Wk': _w((lambda *s: torch.randn(*s, dtype=torch.bfloat16) * 3.2)(Dm, H, Dh) * Dm ** (-0.5)), 'Wv': _w((lambda *s: torch.randn(*s, dtype=torch.bfloat16) * 0.4)(Dm, H, Dh) * Dm ** (-0.5)), 'Wo': _w((lambda *s: torch.randn(*s, dtype=torch.bfloat16) * 0.4)(H, Dh, Dm) * (H * Dh) ** (-0.5)), 'seg_len': seg}
    _A_in = _A_setup()

    def _B_setup():
        B, S, D, F = (1, 2048, 512, 1792)
        return {'x': _w((lambda *s: torch.randn(*s, dtype=torch.bfloat16) * 0.05)(B, S, D)), 'w1': _w((lambda *s: torch.randn(*s, dtype=torch.bfloat16) * 1.6)(D, F) * D ** (-0.5)), 'w2': _w((lambda *s: torch.randn(*s, dtype=torch.bfloat16) * 0.1)(F, D) * F ** (-0.5))}
    _B_in = _B_setup()
    return {'A_x': _A_in['x'], 'A_mem0': _A_in['mem0'], 'A_Wq': _A_in['Wq'], 'A_Wk': _A_in['Wk'], 'A_Wv': _A_in['Wv'], 'A_Wo': _A_in['Wo'], 'A_seg_len': _A_in['seg_len'], 'B_x': _B_in['x'], 'B_w1': _B_in['w1'], 'B_w2': _B_in['w2']}

def reference(A_x, A_mem0, A_Wq, A_Wk, A_Wv, A_Wo, A_seg_len, B_x, B_w1, B_w2):

    def _A_ref(x, mem0, Wq, Wk, Wv, Wo, seg_len):
        B, S, Dm = x.shape
        H, Dh = (Wq.shape[1], Wq.shape[2])
        M = mem0.shape[1]
        scale = Dh ** (-0.5)
        n_seg = S // seg_len
        L = M + seg_len
        idx = torch.arange(L)
        mask = (idx[:, None] < M) | (idx[:, None] >= idx[None, :])
        mem = mem0
        outs = []
        for s in range(n_seg):
            xs = x[:, s * seg_len:(s + 1) * seg_len, :].clone()
            h = torch.concatenate([mem, xs], axis=1)
            q = torch.einsum('btd,dhe->bhte', h, Wq)
            k = torch.einsum('btd,dhe->bhte', h, Wk)
            v = torch.einsum('btd,dhe->bhte', h, Wv)
            scores = torch.einsum('bhqe,bhke->bhqk', q, k) * scale
            scores = torch.where(mask[None, None], scores, -1000000000.0)
            p = _softmax(scores, axis=-1)
            o = torch.einsum('bhqk,bhke->bhqe', p, v)
            o = torch.einsum('bhte,hed->btd', o, Wo)
            mem = o[:, :M, :].clone()
            outs.append(o[:, M:, :])
        return torch.concatenate(outs, axis=1)

    def _B_ref(x, w1, w2):
        h = torch.einsum('bsd,df->bsf', x, w1)
        h = _silu(h)
        out = torch.einsum('bsf,fd->bsd', h, w2)
        return out
    x = A_x
    xn = _layernorm(x, axis=-1)
    return x + _A_ref(xn, A_mem0, A_Wq, A_Wk, A_Wv, A_Wo, A_seg_len) + _B_ref(xn, B_w1, B_w2)
```

```python
import re

_REG = re.compile(r'^(-|\|)?(abs\()?([vas])(?:(\d+)|\[(\d+):(\d+)\])\)?\|?$')
TRANS = ('v_exp_f32', 'v_log_f32', 'v_rcp_f32', 'v_rsq_f32', 'v_sqrt_f32', 'v_sin_f32', 'v_cos_f32', 'v_rcp_iflag_f32')

def regs_of(tok):
    tok = tok.strip()
    if tok == 'vcc': return {('s', 106), ('s', 107)}
    if tok == 'vcc_lo': return {('s', 106)}
    if tok == 'vcc_hi': return {('s', 107)}
    if tok == 'exec': return {('s', 126), ('s', 127)}
    if tok == 'm0': return {('s', 124)}
    m = _REG.match(tok)
    if not m: return set()
    f = m.group(3)
    if m.group(4) is not None: return {(f, int(m.group(4)))}
    return {(f, i) for i in range(int(m.group(5)), int(m.group(6)) + 1)}

class Ins:
    __slots__ = ('text', 'mn', 'ops', 'mods', 'kind', 'wr', 'rd', 'passes', 'srcc', 'ab', 'dpp', 'wide_store', 'states', 'target', 'dst_exact', 'lanesel', 'ldsdma', 'sgpr_rd')
    def __init__(self, text):
        self.text = text
        t = text.split(';')[0].strip()
        parts = t.split(None, 1)
        self.mn = mn = parts[0]
        rest = parts[1] if len(parts) > 1 else ''
        ops, cur, depth = [], '', 0
        for ch in rest:
            if ch in '[(': depth += 1
            if ch in '])': depth -= 1
            if ch == ',' and depth == 0: ops.append(cur.strip()); cur = ''
            else: cur += ch
        if cur.strip(): ops.append(cur.strip())
        mods = ''
        if ops:
            last = ops[-1].split(None, 1)
            ops[-1] = last[0]
            mods = last[1] if len(last) > 1 else ''
        self.ops, self.mods = ops, mods
        self.wr, self.rd = set(), set()
        self.passes = 0; self.srcc = set(); self.ab = set(); self.dpp = False; self.wide_store = set(); self.states = 1
        self.target = None; self.dst_exact = None; self.lanesel = set(); self.ldsdma = False
        R = [regs_of(o) for o in ops]
        base = re.sub(r'_(e32|e64|dpp|sdwa)$', '', mn)
        if mn == 's_nop':
            self.kind = 'nop'; self.states = int(ops[0], 0) + 1
        elif mn.startswith('v_mfma') or mn.startswith('v_smfmac'):
            self.kind = 'xdl'
            self.passes = 8 if '32x32' in mn else 4
            if mn.endswith('_f32') and ('x4_f32' in mn or 'x2_f32' in mn): raise ValueError('sgemm mfma not modelled')
            self.wr = R[0]; self.dst_exact = ops[0]
            if mn.startswith('v_smfmac'):
                self.ab = R[1] | R[2] | R[3]; self.srcc = R[0]; self.rd = self.ab | R[0]
            else:
                self.ab = R[1] | R[2]; self.srcc = R[3]; self.rd = self.ab | R[3]
        elif mn.startswith('v_'):
            self.kind = 'trans' if base in TRANS else 'valu'
            self.dpp = mn.endswith('_dpp') or 'row_' in mods or 'quad_perm' in mods
            if base.startswith('v_permlane'):
                self.kind = 'permlane'; self.wr = R[0] | R[1]; self.rd = R[0] | R[1]
            elif base.startswith('v_cmp'):
                self.wr = R[0]; self.rd = set().union(*R[1:])
            elif base in ('v_add_co_u32', 'v_sub_co_u32', 'v_subrev_co_u32', 'v_addc_co_u32', 'v_subb_co_u32', 'v_div_scale_f32', 'v_mad_u64_u32'):
                self.wr = R[0] | R[1]; self.rd = set().union(*R[2:])
            elif base in ('v_readfirstlane_b32', 'v_readlane_b32'):
                self.kind = 'readlane'; self.wr = R[0]; self.rd = set().union(*R[1:])
                if len(R) > 2: self.lanesel = R[2]
            elif base == 'v_nop':
                self.kind = 'nop'
            else:
                self.wr = R[0]; self.rd = set().union(*R[1:]) if len(R) > 1 else set()
                if base in ('v_fmac_f32', 'v_pk_fmac_f16', 'v_writelane_b32', 'v_dot2c_f32_bf16') or self.dpp: self.rd |= R[0]
                if base == 'v_div_fmas_f32': self.rd |= regs_of('vcc')
        elif mn.startswith('buffer_') or mn.startswith('global_') or mn.startswith('ds_') or mn.startswith('flat_'):
            self.kind = 'mem'
            allr = set().union(*R) if R else set()
            lds = (' lds' in (' ' + mods)) or '_lds_' in mn
            if lds:
                self.rd = allr | regs_of('m0'); self.ldsdma = True
            elif 'load' in mn or mn.startswith('ds_read') or mn.startswith('ds_bpermute') or mn.startswith('ds_swizzle') or mn.startswith('ds_permute'):
                self.wr = R[0]; self.rd = set().union(*R[1:]) if len(R) > 1 else set()
            elif 'atomic' in mn:
                self.rd = allr
                if 'sc0' in mods: self.wr = R[0]
            else:
                self.rd = allr
                if re.search(r'store_dwordx[34]', mn):
                    self.wide_store = R[0] if mn.startswith('buffer_') else R[1]
        elif mn.startswith('s_'):
            self.kind = 'salu'
            if mn.startswith('s_cbranch') or mn == 's_branch':
                self.kind = 'branch'; self.target = ops[0]
            elif mn.startswith('s_cmp') or mn in ('s_waitcnt', 's_barrier', 's_endpgm', 's_sleep', 's_setprio', 's_bitcmp0_b32', 's_bitcmp1_b32'):
                self.rd = set().union(*R) if R else set()
            else:
                self.wr = R[0] if R else set(); self.rd = set().union(*R[1:]) if len(R) > 1 else set()
                if 'saveexec' in mn: self.wr = self.wr | regs_of('exec')
        else:
            raise ValueError('unknown instruction ' + text)

def isv(rs): return {r for r in rs if r[0] in 'va'}
def iss(rs): return {r for r in rs if r[0] == 's'}
VALUK = ('valu', 'trans', 'permlane', 'readlane')

def need(p, c):
    n = 0
    if p.kind in VALUK:
        wv = isv(p.wr); ws = iss(p.wr)
        if c.kind == 'xdl' and wv & c.rd: n = max(n, 2)
        if c.kind == 'permlane' and wv & c.rd: n = max(n, 2)
        if c.kind in VALUK and c.dpp and wv & c.rd: n = max(n, 2)
        if p.kind == 'trans' and c.kind in ('valu', 'permlane', 'readlane') and wv & c.rd: n = max(n, 1)
        if c.kind == 'readlane' and wv & c.rd: n = max(n, 1)
        if ws:
            if c.kind in VALUK and ws & c.rd:
                n = max(n, 2)
                if c.mn.startswith('v_div_fmas'): n = max(n, 4)
            if c.kind == 'readlane' and ws & c.lanesel: n = max(n, 4)
            if c.kind == 'mem' and ws & c.rd: n = max(n, 5)
            if c.kind in ('salu', 'branch') and (ws & c.rd): n = max(n, 1)
    if p.kind == 'xdl':
        big = {4: 8, 8: 12, 16: 20}[p.passes]
        if c.kind == 'xdl':
            if p.wr & c.ab: n = max(n, big)
            if p.wr & c.srcc:
                same = (p.wr == c.srcc) and p.mn == c.mn
                n = max(n, 0 if same else p.passes + 2)
            elif p.wr & c.wr: n = max(n, p.passes + 2)
        elif c.kind in VALUK or c.kind == 'mem':
            if p.wr & (c.rd | c.wr): n = max(n, big)
            if c.kind in VALUK and (p.srcc | (p.ab if p.mn.startswith('v_smfmac') else set())) & c.wr:
                n = max(n, p.passes - 1)
    if p.wide_store:
        if p.wide_store & c.wr: n = max(n, 2 if c.kind in VALUK or c.kind == 'xdl' else 1)
    if p.kind == 'salu' and ('s', 124) in p.wr and c.ldsdma: n = max(n, 1)
    return n

class Asm:
    def __init__(self):
        self.items = []
    def __call__(self, text):
        for line in text.strip().split('\n'):
            line = line.strip()
            if not line or line.startswith(';'): continue
            if line.endswith(':'): self.items.append(('label', line[:-1]))
            elif line.startswith('.'): self.items.append(('raw', line))
            else: self.items.append(Ins(line))
    def label(self, name): self.items.append(('label', name))
    def raw(self, text): self.items.append(('raw', text))
    def comment(self, text): self.items.append(('raw', '; ' + text))

    @staticmethod
    def _times(seq):
        t = 0; times = []; xfree = -100
        for p in seq:
            if p.kind == 'xdl':
                t = max(t, xfree); xfree = t + p.passes
            times.append(t); t += p.states
        return times

    def _deficit(self, prev, c):
        prev = prev[-30:]
        def short(extra):
            w = 0
            for i, p in enumerate(prev):
                k = need(p, c)
                if k:
                    seq = prev[i:] + extra + [c]
                    dist = self._times(seq)[-1] - p.states
                    if k > dist: w = max(w, k - dist)
            return w
        worst = short([])
        if worst and c.kind == 'xdl':
            n = worst
            while n < 16 and short([Ins('s_nop %d' % (n - 1))]): n += 1
            worst = n
        return worst

    def finalize(self):
        out = []
        for it in self.items:
            if isinstance(it, Ins):
                prev = [x for x in out[-40:] if isinstance(x, Ins)]
                for k in range(len(prev) - 1, -1, -1):
                    if prev[k].mn in ('s_branch', 's_endpgm'):
                        prev = prev[k + 1:]; break
                d = self._deficit(prev, it)
                while d > 0:
                    n = min(d, 16); out.append(Ins('s_nop %d' % (n - 1))); d -= n
            out.append(it)
        labels = {it[1]: i for i, it in enumerate(out) if isinstance(it, tuple) and it[0] == 'label'}
        ins_before = {}
        for i, it in enumerate(out):
            if isinstance(it, Ins) and it.kind == 'branch' and it.target in labels:
                tail = [x for x in out[max(0, i - 40):i + 1] if isinstance(x, Ins)]
                for k in range(len(tail) - 2, -1, -1):
                    if tail[k].mn in ('s_branch', 's_endpgm'):
                        tail = tail[k + 1:]; break
                head = [x for x in out[labels[it.target]:labels[it.target] + 40] if isinstance(x, Ins)][:24]
                worst = 0
                for h in range(len(head)):
                    c = head[h]
                    dist = sum(x.states for x in head[:h])
                    for p in reversed(tail):
                        if dist >= 24: break
                        k = need(p, c)
                        if k > dist: worst = max(worst, k - dist)
                        dist += p.states
                    if c.mn in ('s_branch', 's_endpgm'): break
                if worst: ins_before[i] = worst
        res = []
        for i, it in enumerate(out):
            if i in ins_before:
                d = ins_before[i]
                while d > 0:
                    n = min(d, 16); res.append('    s_nop %d' % (n - 1)); d -= n
            if isinstance(it, Ins): res.append('    ' + it.text)
            elif it[0] == 'label': res.append(it[1] + ':')
            else: res.append(it[1])
        return '\n'.join(res) + '\n'

def kernel_desc(name, vgpr, sgpr, accum, extra=''):
    return f'''.section .rodata,"a"
.p2align 6
.amdhsa_kernel {name}
  .amdhsa_next_free_vgpr {vgpr}
  .amdhsa_next_free_sgpr {sgpr}
  .amdhsa_accum_offset {accum}
  .amdhsa_group_segment_fixed_size 0
  .amdhsa_kernarg_size 104
  .amdhsa_user_sgpr_count 2
  .amdhsa_user_sgpr_kernarg_segment_ptr 1
  .amdhsa_system_sgpr_workgroup_id_x 1
{extra}.end_amdhsa_kernel
'''
def kernel_head(name):
    return f'''.text
.globl {name}
.p2align 8
.type {name},@function
{name}:
'''
```

```python
from asmlib import *
from layout import *
import struct
def f2u(x): return struct.unpack('<I', struct.pack('<f', x))[0]
def v(i, n=1): return f'v{i}' if n == 1 else f'v[{i}:{i+n-1}]'
def s(i, n=1): return f's{i}' if n == 1 else f's[{i}:{i+n-1}]'

def gen_att(name):
    A = Asm()
    vL, vG, vN, vQ, vKM, vVX, vVM, vT0, vT1, vM, vT = 0, 1, 2, 3, 4, 5, 6, 7, 8, 10, 11
    ONES = 12
    QF, KX, KM, VX, VM = 16, 48, 80, 96, 128
    SA, PM, PX, OL, O = 144, 156, 160, 164, 168
    OUT = 184
    A(f'''
    s_cmp_ge_u32 s2, 512
    s_cbranch_scc1 L_att_exit
    s_load_dwordx2 s[16:17], s[0:1], 96
    v_lshrrev_b32 v1, 6, v0
    v_and_b32 {v(vL)}, 63, v0
    s_nop 0
    v_readfirstlane_b32 s20, v1
    v_lshrrev_b32 {v(vG)}, 4, {v(vL)}
    v_and_b32 {v(vN)}, 15, {v(vL)}
    s_lshr_b32 s21, s2, 3
    s_and_b32 s22, s2, 7
    s_lshl_b32 s22, s22, 2
    s_add_u32 s22, s22, s20
    v_lshlrev_b32 {v(vQ)}, 13, {v(vN)}
    v_lshl_add_u32 {v(vQ)}, {v(vG)}, 4, {v(vQ)}
    s_lshl_b32 s23, s21, 18
    s_lshl_b32 s24, s22, 8
    s_add_u32 s23, s23, s24
    s_add_u32 s24, s23, {WS_Q}
    s_add_u32 s25, s24, {16*8192}
    s_add_u32 s26, s23, {WS_K}
    s_add_u32 s27, s26, {16*8192}
    s_add_u32 s34, s23, {WS_O}
    s_add_u32 s35, s34, {16*8192}
    s_lshl_b32 s28, s21, 5
    s_add_u32 s28, s28, s22
    s_lshl_b32 s29, s28, 11
    s_add_u32 s30, s29, {WS_KM}
    s_add_u32 s31, s29, {WS_VM}
    s_lshl_b32 s32, s28, 13
    s_add_u32 s32, s32, {WS_VT}
    s_add_u32 s33, s32, 4096
    v_lshrrev_b32 {v(vT0)}, 2, {v(vN)}
    v_and_b32 {v(vT1)}, 1, {v(vN)}
    v_lshl_add_u32 {v(vT0)}, {v(vT0)}, 1, {v(vT1)}
    v_lshlrev_b32 {v(vKM)}, 8, {v(vT0)}
    v_lshl_add_u32 {v(vKM)}, {v(vG)}, 4, {v(vKM)}
    v_lshlrev_b32 {v(vVX)}, 6, {v(vN)}
    v_lshl_add_u32 {v(vVX)}, {v(vG)}, 4, {v(vVX)}
    v_lshlrev_b32 {v(vVM)}, 4, {v(vN)}
    v_lshl_add_u32 {v(vVM)}, {v(vG)}, 2, {v(vVM)}
    s_waitcnt lgkmcnt(0)
    s_mov_b32 s4, s16
    s_mov_b32 s5, s17
    s_mov_b32 s6, {WS_SIZE}
    s_mov_b32 s7, 0x20000
    ''')
    ld = lambda d, a, so, off: A(f'buffer_load_dwordx4 {v(d,4)}, {v(a)}, s[4:7], s{so} offen offset:{off}')
    for ks in range(4): ld(QF + 4 * ks, vQ, 24, ks * 64)
    for ks in range(4): ld(KX + 4 * ks, vQ, 26, ks * 64)
    for ks in range(4): ld(KM + 4 * ks, vKM, 30, ks * 64)
    for ks in range(4): ld(QF + 16 + 4 * ks, vQ, 25, ks * 64)
    for ks in range(4): ld(KX + 16 + 4 * ks, vQ, 27, ks * 64)
    for ft in range(8): A(f'buffer_load_dword {v(VM + 2*ft)}, {v(vVM)}, s[4:7], s31 offen offset:{ft*256}')
    for ft in range(8): ld(VX + 4 * ft, vVX, 32 + (ft >> 2), (ft & 3) * 1024)
    for ft in range(8): A(f'v_mov_b32 {v(VM + 2*ft + 1)}, 0')
    for i in range(4): A(f'v_mov_b32 {v(ONES+i)}, 0x3f803f80')
    A(f'v_lshlrev_b32 {v(vT0)}, 2, {v(vG)}')
    for r in range(4):
        A(f'v_add_u32 {v(vT1)}, {r}, {v(vT0)}')
        A(f'v_cmp_le_u32 s[{40+2*r}:{41+2*r}], {v(vT1)}, {v(vN)}')
    A(f's_mov_b32 s48, {f2u(SM_C)}\nv_mov_b32 {v(vT0)}, 0xf149f2ca\nv_mov_b32 {v(PM+1)}, 0')
    def mm(d, a, b, c, k=32):
        n = 4 if k == 32 else 2
        A(f'v_mfma_f32_16x16x{k}_bf16 {v(d,4)}, {v(a,n)}, {v(b,n)}, {c}')
    TM, TX0, TX1 = SA, SA + 4, SA + 8
    for qt in range(2):
        A(f's_waitcnt vmcnt({24 if qt == 0 else 16 + 8})')
        q = QF + 16 * qt
        for ks in range(4):
            mm(TM, KM + 4 * ks, q + 4 * ks, '0' if ks == 0 else v(TM, 4))
            mm(TX0, KX + 4 * ks, q + 4 * ks, '0' if ks == 0 else v(TX0, 4))
            if qt == 1: mm(TX1, KX + 16 + 4 * ks, q + 4 * ks, '0' if ks == 0 else v(TX1, 4))
        D = TX0 if qt == 0 else TX1
        for r in range(4): A(f'v_cndmask_b32 {v(D+r)}, {v(vT0)}, {v(D+r)}, s[{40+2*r}:{41+2*r}]')
        A(f'v_max3_f32 {v(vM)}, {v(TM)}, {v(TM+1)}, {v(TX0)}')
        A(f'v_max3_f32 {v(vM)}, {v(vM)}, {v(TX0+1)}, {v(TX0+2)}')
        A(f'v_max_f32 {v(vM)}, {v(vM)}, {v(TX0+3)}')
        if qt == 1:
            A(f'v_max3_f32 {v(vM)}, {v(vM)}, {v(TX1)}, {v(TX1+1)}')
            A(f'v_max3_f32 {v(vM)}, {v(vM)}, {v(TX1+2)}, {v(TX1+3)}')
        for p in ('32', '16'):
            A(f'v_mov_b32 {v(vT)}, {v(vM)}\nv_permlane{p}_swap_b32 {v(vM)}, {v(vT)}\nv_max_f32 {v(vM)}, {v(vM)}, {v(vT)}')
        A(f'v_mul_f32 {v(vM)}, s48, {v(vM)}')
        regs = [TM, TM + 1] + [TX0 + r for r in range(4)] + ([TX1 + r for r in range(4)] if qt else [])
        for x in regs: A(f'v_fma_f32 {v(x)}, {v(x)}, s48, -{v(vM)}')
        for x in regs: A(f'v_exp_f32 {v(x)}, {v(x)}')
        A(f'v_cvt_pk_bf16_f32 {v(PM)}, {v(TM)}, {v(TM+1)}')
        A(f'v_cvt_pk_bf16_f32 {v(PX)}, {v(TX0)}, {v(TX0+1)}\nv_cvt_pk_bf16_f32 {v(PX+1)}, {v(TX0+2)}, {v(TX0+3)}')
        if qt: A(f'v_cvt_pk_bf16_f32 {v(PX+2)}, {v(TX1)}, {v(TX1+1)}\nv_cvt_pk_bf16_f32 {v(PX+3)}, {v(TX1+2)}, {v(TX1+3)}')
        else: A(f'v_mov_b32 {v(PX+2)}, 0\nv_mov_b32 {v(PX+3)}, 0')
        if qt == 0: A('s_waitcnt vmcnt(0)')
        mm(OL, ONES, PM, '0', 16); mm(OL, ONES, PX, v(OL, 4))
        def pv(ks):
            for b in range(2):
                o = O + (ks & 1) * 8 + 4 * b; ft = 2 * ks + b
                mm(o, VM + 2 * ft, PM, '0', 16)
            for b in range(2):
                o = O + (ks & 1) * 8 + 4 * b; ft = 2 * ks + b
                mm(o, VX + 4 * ft, PX, v(o, 4))
        def fin(ks):
            o = O + (ks & 1) * 8; e = OUT + (ks & 1) * 4
            for i in range(8): A(f'v_mul_f32 {v(o+i)}, {v(vT1)}, {v(o+i)}')
            for r in range(4): A(f'v_cvt_pk_bf16_f32 {v(e+r)}, {v(o+r)}, {v(o+4+r)}')
            A(f'buffer_store_dwordx4 {v(e,4)}, {v(vQ)}, s[4:7], s{34+qt} offen offset:{ks*64}')
        pv(0)
        A(f'v_rcp_f32 {v(vT1)}, {v(OL)}')
        pv(1); fin(0); pv(2); fin(1); pv(3); fin(2); fin(3)
    A('L_att_exit:\ns_endpgm')
    return kernel_head(name) + A.finalize(), kernel_desc(name, 192, 64, 192)
```

```python
from asmlib import *
from layout import *
import struct
def f2u(x): return struct.unpack('<I', struct.pack('<f', x))[0]
def v(i, n=1): return f'v{i}' if n == 1 else f'v[{i}:{i+n-1}]'
def a_(i, n=1): return f'a{i}' if n == 1 else f'a[{i}:{i+n-1}]'
def s(i, n=1): return f's{i}' if n == 1 else f's[{i}:{i+n-1}]'

gW, gMB, gNB, gK, gXo, gWo, gPitch, gT0, gT1, gT2, gM0a, gM0b, gType, gOut = range(60, 74)
gL, gXA, gWB, gRa, gRb0, gRb1, gSt, gT = 0, 1, 2, 3, 4, 5, 6, 8
FX, FW = 16, 80
STG = 65536

def g1_setup(A):
    A(f'''
    v_and_b32 {v(gL)}, 63, v0
    v_lshrrev_b32 {v(gT)}, 4, {v(gL)}
    s_and_b32 {s(gT0)}, {s(gW)}, 1
    s_lshl_b32 {s(gT1)}, {s(gT0)}, 2
    v_add_u32 {v(gT+1)}, {s(gT1)}, {v(gT)}
    v_and_b32 {v(gT+2)}, 7, {v(gL)}
    v_xor_b32 {v(gT+1)}, {v(gT+1)}, {v(gT+2)}
    v_lshlrev_b32 {v(gT+1)}, 4, {v(gT+1)}
    v_lshrrev_b32 {v(gT+2)}, 3, {v(gL)}
    v_lshl_add_u32 {v(gXA)}, {v(gT+2)}, 10, {v(gT+1)}
    s_lshl_b32 {s(gT1)}, {s(gW)}, 13
    s_add_u32 {s(gT1)}, {s(gT1)}, {WS_XN}
    v_add_u32 {v(gXA)}, {s(gT1)}, {v(gXA)}
    s_lshl_b32 {s(gM0a)}, {s(gW)}, 10
    ; W DMA: i0 = (w&1) + 4*(w>>1)
    s_lshr_b32 {s(gT1)}, {s(gW)}, 1
    s_lshl_b32 {s(gT2)}, {s(gT1)}, 2
    s_add_u32 {s(gT2)}, {s(gT2)}, {s(gT0)}
    s_lshl_b32 {s(gM0b)}, {s(gT2)}, 10
    s_add_u32 {s(gM0b)}, {s(gM0b)}, 32768
    v_and_b32 {v(gT+1)}, 15, {v(gL)}
    v_lshrrev_b32 {v(gT+2)}, 1, {v(gT+1)}
    v_xor_b32 {v(gT+2)}, {v(gT+2)}, {v(gT)}
    v_lshlrev_b32 {v(gT+2)}, 4, {v(gT+2)}
    v_lshl_add_u32 {v(gRa)}, {v(gT+1)}, 7, {v(gT+2)}
    s_lshl_b32 {s(gT2)}, {s(gT1)}, 14
    v_add_u32 {v(gRa)}, {s(gT2)}, {v(gRa)}
    v_bfe_u32 {v(gT+1)}, {v(gL)}, 2, 2
    v_and_b32 {v(gT+2)}, 1, {v(gT)}
    v_lshl_or_b32 {v(gT+2)}, {v(gT+2)}, 2, {v(gT+1)}
    v_lshl_add_u32 {v(gT+1)}, {v(gT)}, 3, {v(gT+1)}
    v_lshlrev_b32 {v(gT+1)}, 9, {v(gT+1)}
    v_and_b32 {v(gT+3)}, 3, {v(gL)}
    v_lshl_add_u32 {v(gT+1)}, {v(gT+3)}, 3, {v(gT+1)}
    v_lshl_add_u32 {v(gRb0)}, {v(gT+2)}, 5, {v(gT+1)}
    s_lshl_b32 {s(gT2)}, {s(gT0)}, 8
    s_add_u32 {s(gT2)}, {s(gT2)}, 32768
    v_add_u32 {v(gRb0)}, {s(gT2)}, {v(gRb0)}
    ''')

def g1_tile(A, pfx, flag=True):
    A(f'''
    s_lshr_b32 {s(gType)}, {s(gNB)}, 4
    s_and_b32 {s(gT0)}, {s(gNB)}, 15
    s_lshl_b32 {s(gWo)}, {s(gT0)}, 9
    s_mov_b32 {s(gPitch)}, 8192
    s_mov_b32 s14, 0x400000
    s_mov_b32 s12, s16
    s_mov_b32 s13, s17
    s_cmp_eq_u32 {s(gType)}, 1
    s_cselect_b32 s12, s18, s12
    s_cselect_b32 s13, s19, s13
    s_cmp_eq_u32 {s(gType)}, 2
    s_cselect_b32 s12, s20, s12
    s_cselect_b32 s13, s21, s13
    s_cmp_eq_u32 {s(gType)}, 3
    s_cselect_b32 s12, s50, s12
    s_cselect_b32 s13, s51, s13
    s_cselect_b32 {s(gPitch)}, 3584, {s(gPitch)}
    s_cselect_b32 s14, {512*3584}, s14
    s_lshl_b32 {s(gXo)}, {s(gMB)}, 18
    v_lshrrev_b32 {v(gT)}, 5, {v(gL)}
    s_lshl_b32 {s(gT0)}, {s(gW)}, 1
    v_or_b32 {v(gT+1)}, {s(gT0)}, {v(gT)}
    v_lshlrev_b32 {v(gT+1)}, 1, {v(gT+1)}
    v_and_b32 {v(gT+2)}, 31, {v(gL)}
    v_xor_b32 {v(gT+1)}, {v(gT+1)}, {v(gT+2)}
    v_lshlrev_b32 {v(gT+1)}, 4, {v(gT+1)}
    s_sub_u32 {s(gT0)}, {s(gM0b)}, 32768
    s_lshr_b32 {s(gT0)}, {s(gT0)}, 9
    v_add_u32 {v(gT)}, {s(gT0)}, {v(gT)}
    v_mul_lo_u32 {v(gT)}, {v(gT)}, {s(gPitch)}
    v_add_u32 {v(gWB)}, {v(gT)}, {v(gT+1)}
    ''')
    def dma(stage):
        for c in range(8):
            A(f's_add_u32 m0, {s(gM0a)}, {stage*STG + c*4096}')
            A(f's_add_u32 {s(gT0)}, {s(gXo)}, {c*32*1024}')
            A(f'buffer_load_dwordx4 {v(gXA)}, s[4:7], {s(gT0)} offen lds')
        for b in range(4):
            for a in range(2):
                di = 2 * a + 8 * b
                A(f's_add_u32 m0, {s(gM0b)}, {stage*STG + di*1024}')
                A(f's_mul_i32 {s(gT0)}, {s(gPitch)}, {2*di}')
                A(f's_add_u32 {s(gT0)}, {s(gT0)}, {s(gWo)}')
                A(f'buffer_load_dwordx4 {v(gWB)}, s[12:15], {s(gT0)} offen lds')
        A(f's_add_u32 {s(gXo)}, {s(gXo)}, 128')
        A(f's_lshl_b32 {s(gT0)}, {s(gPitch)}, 6')
        A(f's_add_u32 {s(gWo)}, {s(gWo)}, {s(gT0)}')
    dma(0); dma(1)
    for i in range(256): A(f'v_accvgpr_write_b32 a{i}, 0')
    def reads(stage, kk, buf):
        if kk == 1: A(f'v_xor_b32 {v(gT)}, 64, {v(gRa)}')
        ra = gRa if kk == 0 else gT
        for t in range(8):
            A(f'ds_read_b128 {v(FX + buf*32 + t*4, 4)}, {v(ra)} offset:{t*2048}')
        for ct in range(8):
            A(f'v_xor_b32 {v(gT+1+(ct&1))}, {ct*32}, {v(gRb0)}')
            for t in range(2):
                A(f'ds_read_b64_tr_b16 {v(FW + buf*32 + ct*4 + 2*t, 2)}, {v(gT+1+(ct&1))} offset:{kk*16384 + t*2048}')
    def mfmas(buf, vtype):
        for i in range(8):
            for j in range(8):
                ac = a_((i * 8 + j) * 4, 4)
                if vtype: A(f'v_mfma_f32_16x16x32_bf16 {ac}, {v(FX + buf*32 + i*4, 4)}, {v(FW + buf*32 + j*4, 4)}, {ac}')
                else:     A(f'v_mfma_f32_16x16x32_bf16 {ac}, {v(FW + buf*32 + i*4, 4)}, {v(FX + buf*32 + j*4, 4)}, {ac}')
    A(f's_cmp_eq_u32 {s(gType)}, 2\ns_cbranch_scc1 L_{pfx}_v')
    for vtype in (0, 1):
        if vtype: A.label(f'L_{pfx}_v')
        A(f's_mov_b32 {s(gK)}, 0')
        A.label(f'L_{pfx}_k{vtype}')
        for st in range(2):
            if st == 1:
                A(f's_cmp_eq_u32 {s(gK)}, 6\ns_cbranch_scc1 L_{pfx}_w0_{vtype}\ns_waitcnt vmcnt(16)\ns_branch L_{pfx}_w1_{vtype}')
                A(f'L_{pfx}_w0_{vtype}:\ns_waitcnt vmcnt(0)\nL_{pfx}_w1_{vtype}:')
            else:
                A('s_waitcnt vmcnt(16)')
            A('s_barrier')
            reads(st, 0, 0)
            A('s_waitcnt lgkmcnt(0)')
            reads(st, 1, 1)
            mfmas(0, vtype)
            A('s_waitcnt lgkmcnt(0)')
            A('s_barrier')
            A(f's_cmp_ge_u32 {s(gK)}, 6\ns_cbranch_scc1 L_{pfx}_nd{st}_{vtype}')
            dma(st)
            A.label(f'L_{pfx}_nd{st}_{vtype}')
            mfmas(1, vtype)
            A(f'v_xor_b32 {v(gRa)}, {STG}, {v(gRa)}\nv_xor_b32 {v(gRb0)}, {STG}, {v(gRb0)}')
        A(f's_add_u32 {s(gK)}, {s(gK)}, 2\ns_cmp_lt_u32 {s(gK)}, 8\ns_cbranch_scc1 L_{pfx}_k{vtype}')
        if vtype == 0: A(f's_branch L_{pfx}_epi')
    E = 16
    A(f'''
    v_and_b32 {v(gT)}, 15, {v(gL)}
    v_lshrrev_b32 {v(gT+1)}, 4, {v(gL)}
    v_lshlrev_b32 {v(gSt)}, 6, {v(gT)}
    v_lshl_add_u32 {v(gSt)}, {v(gT+1)}, 4, {v(gSt)}
    s_lshr_b32 {s(gT0)}, {s(gW)}, 1
    s_lshl_b32 {s(gT1)}, {s(gMB)}, 1
    s_add_u32 {s(gT0)}, {s(gT0)}, {s(gT1)}
    s_lshl_b32 {s(gT0)}, {s(gT0)}, 20
    s_and_b32 {s(gT1)}, {s(gNB)}, 15
    s_lshl_b32 {s(gT1)}, {s(gT1)}, 1
    s_and_b32 {s(gT2)}, {s(gW)}, 1
    s_add_u32 {s(gT1)}, {s(gT1)}, {s(gT2)}
    s_lshl_b32 {s(gT1)}, {s(gT1)}, 13
    s_add_u32 {s(gOut)}, {s(gT0)}, {s(gT1)}
    s_add_u32 {s(gOut)}, {s(gOut)}, {WS_VT}
    s_nop 7
    ''')
    n = 0
    for sg in range(4):
        for ft in range(8):
            e = E + (n % 4) * 12; n += 1
            for t in range(2):
                for r in range(4): A(f'v_accvgpr_read_b32 {v(e + 4 + t*4 + r)}, a{((2*sg+t)*8 + ft)*4 + r}')
            for d in range(4): A(f'v_cvt_pk_bf16_f32 {v(e+d)}, {v(e+4+2*d)}, {v(e+5+2*d)}')
            A(f's_add_u32 {s(gT0)}, {s(gOut)}, {sg*262144 + (ft>>2)*4096}')
            A(f'buffer_store_dwordx4 {v(e,4)}, {v(gSt)}, s[4:7], {s(gT0)} offen offset:{(ft&3)*1024} sc1')
    A(f's_branch L_{pfx}_done')
    A.label(f'L_{pfx}_epi')
    A(f'''
    v_and_b32 {v(gT)}, 15, {v(gL)}
    v_lshrrev_b32 {v(gT+1)}, 4, {v(gL)}
    v_mul_lo_u32 {v(gSt)}, {v(gT)}, {s(gPitch)}
    v_lshl_add_u32 {v(gSt)}, {v(gT+1)}, 4, {v(gSt)}
    s_lshr_b32 {s(gT0)}, {s(gW)}, 1
    s_lshl_b32 {s(gT1)}, {s(gMB)}, 1
    s_add_u32 {s(gT0)}, {s(gT0)}, {s(gT1)}
    s_lshl_b32 {s(gT0)}, {s(gT0)}, 7
    s_mul_i32 {s(gT0)}, {s(gT0)}, {s(gPitch)}
    s_and_b32 {s(gT1)}, {s(gNB)}, 15
    s_lshl_b32 {s(gT1)}, {s(gT1)}, 1
    s_and_b32 {s(gT2)}, {s(gW)}, 1
    s_add_u32 {s(gT1)}, {s(gT1)}, {s(gT2)}
    s_lshl_b32 {s(gT1)}, {s(gT1)}, 8
    s_add_u32 {s(gOut)}, {s(gT0)}, {s(gT1)}
    s_mov_b32 {s(gT1)}, {WS_Q}
    s_cmp_eq_u32 {s(gType)}, 1
    s_cselect_b32 {s(gT1)}, {WS_K}, {s(gT1)}
    s_cmp_eq_u32 {s(gType)}, 3
    s_cselect_b32 {s(gT1)}, {WS_H1}, {s(gT1)}
    s_add_u32 {s(gOut)}, {s(gOut)}, {s(gT1)}
    s_lshl_b32 {s(gT2)}, {s(gPitch)}, 4
    s_cmp_eq_u32 {s(gType)}, 3
    s_cbranch_scc1 L_{pfx}_epf
    ''')
    for silu in (0, 1):
        if silu: A.label(f'L_{pfx}_epf')
        n = 0
        for tt in range(8):
            for ks in range(4):
                e = E + (n % 4) * 20; n += 1
                for b in range(2):
                    for r in range(4): A(f'v_accvgpr_read_b32 {v(e + 4 + 2*r + b)}, a{((2*ks+b)*8 + tt)*4 + r}')
                for d in range(4): A(f'v_cvt_pk_bf16_f32 {v(e+d)}, {v(e+4+2*d)}, {v(e+5+2*d)}')
                if silu:
                    for d in range(4):
                        A(f'v_lshlrev_b32 {v(e+4+2*d)}, 16, {v(e+d)}')
                        A(f'v_and_b32 {v(e+5+2*d)}, 0xffff0000, {v(e+d)}')
                    for i in range(8): A(f'v_mul_f32 {v(e+12+i)}, {f2u(-1.4426950408889634)}, {v(e+4+i)}')
                    for i in range(8): A(f'v_exp_f32 {v(e+12+i)}, {v(e+12+i)}')
                    for i in range(8): A(f'v_add_f32 {v(e+12+i)}, 1.0, {v(e+12+i)}')
                    for i in range(8): A(f'v_rcp_f32 {v(e+12+i)}, {v(e+12+i)}')
                    for i in range(8): A(f'v_mul_f32 {v(e+4+i)}, {v(e+4+i)}, {v(e+12+i)}')
                    for d in range(4): A(f'v_cvt_pk_bf16_f32 {v(e+d)}, {v(e+4+2*d)}, {v(e+5+2*d)}')
                A(f'buffer_store_dwordx4 {v(e,4)}, {v(gSt)}, s[4:7], {s(gOut)} offen offset:{ks*64} sc1')
            A(f's_add_u32 {s(gOut)}, {s(gOut)}, {s(gT2)}')
        if not silu: A(f's_branch L_{pfx}_done')
    A.label(f'L_{pfx}_done')

def gen_gemm1_standalone(name):
    A = Asm()
    A(f'''
    s_cmp_ge_u32 s2, 440
    s_cbranch_scc1 L_g1_exit
    s_load_dwordx8 s[16:23], s[0:1], 16
    s_load_dwordx2 s[50:51], s[0:1], 64
    s_load_dwordx2 s[38:39], s[0:1], 96
    v_lshrrev_b32 v1, 6, v0
    s_nop 0
    v_readfirstlane_b32 {s(gW)}, v1
    s_waitcnt lgkmcnt(0)
    s_mov_b32 s4, s38
    s_mov_b32 s5, s39
    s_mov_b32 s6, {WS_SIZE}
    s_mov_b32 s7, 0x20000
    s_mov_b32 s15, 0x20000
    s_and_b32 {s(gMB)}, s2, 7
    s_lshr_b32 {s(gNB)}, s2, 3
    ''')
    g1_setup(A)
    g1_tile(A, 'g1')
    A('L_g1_exit:\ns_endpgm')
    return kernel_head(name) + A.finalize(), kernel_desc(name, 512, 100, 256)
```

```python
from asmlib import *
from layout import *
def v(i, n=1): return f'v{i}' if n == 1 else f'v[{i}:{i+n-1}]'
def s(i, n=1): return f's{i}' if n == 1 else f's[{i}:{i+n-1}]'
DEPTH = 4
def gen_gemm2(name):
    A = Asm()
    vL, vG, vN, vAo, vAh, vW, vR, vT0, vT1, vX = 0, 1, 2, 3, 4, 5, 6, 7, 8, 9
    FA, FW, ACC = 16, 80, 96
    A(f'''
    s_cmp_ge_u32 s2, 256
    s_cbranch_scc1 L_g2_exit
    s_load_dwordx2 s[16:17], s[0:1], 96
    s_load_dwordx2 s[18:19], s[0:1], 40
    s_load_dwordx4 s[20:23], s[0:1], 72
    s_load_dwordx2 s[24:25], s[0:1], 0
    v_lshrrev_b32 v1, 6, v0
    v_and_b32 {v(vL)}, 63, v0
    s_nop 0
    v_readfirstlane_b32 s30, v1
    v_lshrrev_b32 {v(vG)}, 4, {v(vL)}
    v_and_b32 {v(vN)}, 15, {v(vL)}
    s_lshr_b32 s31, s2, 3
    s_and_b32 s32, s2, 7
    v_lshlrev_b32 {v(vAo)}, 13, {v(vN)}
    v_lshl_add_u32 {v(vAo)}, {v(vG)}, 4, {v(vAo)}
    s_lshl_b32 s33, s31, 19
    s_lshl_b32 s34, s30, 6
    s_add_u32 s33, s33, s34
    s_add_u32 s33, s33, {WS_O}
    v_add_u32 {v(vAo)}, s33, {v(vAo)}
    v_mul_u32_u24 {v(vAh)}, 3584, {v(vN)}
    v_lshl_add_u32 {v(vAh)}, {v(vG)}, 4, {v(vAh)}
    s_mul_i32 s33, s31, {64*3584}
    s_add_u32 s33, s33, s34
    s_add_u32 s33, s33, {WS_H1}
    v_add_u32 {v(vAh)}, s33, {v(vAh)}
    v_bfe_u32 {v(vT0)}, {v(vL)}, 3, 1
    v_lshl_add_u32 {v(vT0)}, {v(vT0)}, 4, {v(vG)}
    v_lshlrev_b32 {v(vW)}, 10, {v(vT0)}
    v_and_b32 {v(vT0)}, 7, {v(vL)}
    v_lshl_add_u32 {v(vW)}, {v(vT0)}, 4, {v(vW)}
    s_lshl_b32 s33, s32, 7
    s_lshl_b32 s34, s30, 15
    s_add_u32 s33, s33, s34
    v_add_u32 {v(vW)}, s33, {v(vW)}
    v_bfe_u32 {v(vT0)}, {v(vL)}, 2, 2
    v_lshl_add_u32 {v(vT0)}, {v(vG)}, 3, {v(vT0)}
    v_lshlrev_b32 {v(vR)}, 7, {v(vT0)}
    v_and_b32 {v(vT0)}, 3, {v(vL)}
    v_lshl_add_u32 {v(vR)}, {v(vT0)}, 4, {v(vR)}
    s_lshl_b32 s35, s30, 14
    v_add_u32 {v(vR)}, s35, {v(vR)}
    s_waitcnt lgkmcnt(0)
    s_mov_b32 s4, s16
    s_mov_b32 s5, s17
    s_mov_b32 s6, {WS_SIZE}
    s_mov_b32 s7, 0x20000
    s_mov_b32 s8, s18
    s_mov_b32 s9, s19
    s_mov_b32 s10, 0x400000
    s_mov_b32 s11, 0x20000
    s_mov_b32 s12, s20
    s_mov_b32 s13, s21
    s_mov_b32 s14, {1792*1024}
    s_mov_b32 s15, 0x20000
    s_mov_b32 s40, s22
    s_mov_b32 s41, s23
    s_mov_b32 s42, 0x200000
    s_mov_b32 s43, 0x20000
    s_mov_b32 s44, s24
    s_mov_b32 s45, s25
    s_mov_b32 s46, 0x200000
    s_mov_b32 s47, 0x20000
    ''')
    NB = 46
    def issue(bi):
        slot = bi % DEPTH
        o = bi < 32
        lb = bi if o else bi - 32
        va, pitch, srd = (vAo, 8192, 's[8:11]') if o else (vAh, 3584, 's[12:15]')
        for t in range(4):
            A(f's_mov_b32 s36, {lb*256 + t*16*pitch}')
            A(f'buffer_load_dwordx4 {v(FA + slot*16 + t*4, 4)}, {v(va)}, s[4:7], s36 offen')
        for i in range(4):
            A(f's_add_u32 m0, s35, {slot*4096 + i*1024}')
            A(f's_mov_b32 s36, {lb*4*32*1024 + i*4*1024}')
            A(f'buffer_load_dwordx4 {v(vW)}, {srd}, s36 offen lds')
    for bi in range(DEPTH - 1): issue(bi)
    for bi in range(NB):
        slot = bi % DEPTH
        if bi + DEPTH - 1 < NB: issue(bi + DEPTH - 1)
        later = min(NB - 1, bi + DEPTH - 1) - bi
        A(f's_waitcnt vmcnt({8*later})')
        for ct in range(4):
            p, b = ct >> 1, ct & 1
            for t in range(2):
                A(f'ds_read_b64_tr_b16 {v(FW + ct*4 + 2*t, 2)}, {v(vR)} offset:{slot*4096 + t*512 + p*64 + b*8}')
        for ct in range(4):
            A(f's_waitcnt lgkmcnt({6 - 2*ct})')
            for tt in range(4):
                ac = v(ACC + (ct*4 + tt)*4, 4)
                A(f'v_mfma_f32_16x16x32_bf16 {ac}, {v(FW + ct*4, 4)}, {v(FA + slot*16 + tt*4, 4)}, {"0" if bi == 0 else ac}')
    A(f'''
    v_lshlrev_b32 {v(vT0)}, 4, {v(vL)}
    v_add_u32 {v(vT1)}, s35, {v(vT0)}
    v_lshlrev_b32 {v(vX)}, 10, {v(vN)}
    v_lshl_add_u32 {v(vX)}, {v(vG)}, 4, {v(vX)}
    s_lshl_b32 s33, s31, 16
    s_lshl_b32 s34, s32, 7
    s_add_u32 s33, s33, s34
    s_add_u32 s33, s33, s35
    buffer_load_dwordx4 {v(FA,4)}, {v(vX)}, s[44:47], s33 offen
    buffer_load_dwordx4 {v(FA+4,4)}, {v(vX)}, s[44:47], s33 offen offset:64
    s_barrier
    ''')
    for i in range(16): A(f'ds_write_b128 {v(vT1)}, {v(ACC + 4*i, 4)} offset:{i*1024}')
    A(f's_lshl_b32 s34, s30, 10\nv_add_u32 {v(vT0)}, s34, {v(vT0)}\ns_waitcnt lgkmcnt(0)\ns_barrier')
    for sw in range(4):
        for ct in range(4):
            A(f'ds_read_b128 {v(ACC + (sw*4 + ct)*4, 4)}, {v(vT0)} offset:{sw*16384 + ct*4096}')
    A('s_waitcnt lgkmcnt(0) vmcnt(0)')
    for i in range(16):
        A(f'v_add_f32 {v(ACC+i)}, {v(ACC+i)}, {v(ACC+16+i)}')
        A(f'v_add_f32 {v(ACC+32+i)}, {v(ACC+32+i)}, {v(ACC+48+i)}')
    for i in range(16): A(f'v_add_f32 {v(ACC+i)}, {v(ACC+i)}, {v(ACC+32+i)}')
    for d in range(8):
        A(f'v_lshlrev_b32 {v(FW)}, 16, {v(FA+d)}\nv_and_b32 {v(FW+1)}, 0xffff0000, {v(FA+d)}')
        A(f'v_add_f32 {v(ACC+2*d)}, {v(ACC+2*d)}, {v(FW)}\nv_add_f32 {v(ACC+2*d+1)}, {v(ACC+2*d+1)}, {v(FW+1)}')
        A(f'v_cvt_pk_bf16_f32 {v(FA+8+d)}, {v(ACC+2*d)}, {v(ACC+2*d+1)}')
    A(f'''
    buffer_store_dwordx4 {v(FA+8,4)}, {v(vX)}, s[40:43], s33 offen
    buffer_store_dwordx4 {v(FA+12,4)}, {v(vX)}, s[40:43], s33 offen offset:64
L_g2_exit:
    s_endpgm
    ''')
    return kernel_head(name) + A.finalize(), kernel_desc(name, 160, 64, 160)
```

```python
MB = 1 << 20
WS_XN   = 0
WS_Q    = 2 * MB
WS_K    = 18 * MB
WS_VT   = 34 * MB
WS_O    = 50 * MB
WS_H1   = 66 * MB
WS_KM   = 74 * MB
WS_VM   = 78 * MB
WS_PART = 82 * MB
WS_MF   = 83 * MB
WS_DBG  = 84 * MB
WS_FLAG = 83 * MB + 65536
WS_SIZE = 268435456
NSEG = 64
PART_INIT = 0xFFFFFFFF
SM_C = (128 ** -0.5) * 1.4426950408889634

def d_of(kb, gb, j):
    j3, j2, j1, j0 = (j >> 3) & 1, (j >> 2) & 1, (j >> 1) & 1, j & 1
    g1, g0 = gb >> 1, gb & 1
    return 64 * kb + 32 * j2 + 16 * j0 + 8 * j3 + 4 * g1 + 2 * j1 + g0

def d_of_A(kb, ga, half, s):
    q, i = s >> 1, s & 1
    return 64 * kb + 32 * (q & 1) + 16 * i + 4 * ga + 2 * half + (q >> 1)

def e_of(kb2, gb, j):
    j3, j2, j1, j0 = (j >> 3) & 1, (j >> 2) & 1, (j >> 1) & 1, j & 1
    g1, g0 = gb >> 1, gb & 1
    return 64 * kb2 + 32 * j1 + 16 * g0 + 8 * j3 + 4 * g1 + 2 * j2 + j0

for kb in range(8):
    for gb in range(4):
        for j in range(16):
            k = 32 * (j >> 3) + 8 * gb + (j & 7)
            ga, q, half, i = k >> 4, (k >> 2) & 3, (k >> 1) & 1, k & 1
            assert d_of(kb, gb, j) == d_of_A(kb, ga, half, 2 * q + i)
assert sorted(d_of(kb, gb, j) for kb in range(8) for gb in range(4) for j in range(16)) == list(range(512))
assert sorted(e_of(kb, gb, j) for kb in range(2) for gb in range(4) for j in range(16)) == list(range(128))
```

```python
from asmlib import *
from layout import *
import struct
def f2u(x): return struct.unpack('<I', struct.pack('<f', x))[0]

def wave_sum(A, x, t):
    for d in ('quad_perm:[1,0,3,2]', 'quad_perm:[2,3,0,1]', 'row_ror:4', 'row_ror:8'):
        A(f'v_add_f32_dpp v{x}, v{x}, v{x} {d} row_mask:0xf bank_mask:0xf')
    for p in ('16', '32'):
        A(f'v_mov_b32 v{t}, v{x}')
        A(f'v_permlane{p}_swap_b32 v{x}, v{t}')
        A(f'v_add_f32 v{x}, v{x}, v{t}')

def rnd_bf16(A, x):
    A(f'v_cvt_pk_bf16_f32 v{x}, v{x}, v{x}')
    A(f'v_and_b32 v{x}, 0xffff0000, v{x}')

def gen_pre(name):
    A = Asm()
    A(f'''
    s_cmp_ge_u32 s2, 512
    s_cbranch_scc1 L_pre_exit
    s_load_dwordx4 s[12:15], s[0:1], 0
    s_load_dwordx2 s[16:17], s[0:1], 96
    v_lshlrev_b32 v1, 4, v0
    s_lshl_b32 s3, s2, 12
    s_waitcnt lgkmcnt(0)
    s_mov_b32 s4, s16
    s_mov_b32 s5, s17
    s_mov_b32 s6, {WS_SIZE}
    s_mov_b32 s7, 0x20000
    s_mov_b32 s8, s12
    s_mov_b32 s9, s13
    s_mov_b32 s10, 0x200000
    s_mov_b32 s11, 0x20000
    s_mov_b32 s20, s14
    s_mov_b32 s21, s15
    s_mov_b32 s22, 8192
    s_mov_b32 s23, 0x20000
    buffer_load_dwordx4 v[4:7], v1, s[8:11], s3 offen
    v_lshlrev_b32 v2, 2, v0
    v_mov_b32 v3, -1
    s_lshl_b32 s18, s2, 10
    s_add_u32 s19, s18, {WS_PART}
    buffer_store_dword v3, v2, s[4:7], s19 offen
    s_cmp_ge_u32 s2, 16
    s_cbranch_scc1 L_pre_ln
    s_add_u32 s19, s18, {WS_MF}
    s_cmp_ge_u32 s2, 8
    s_cbranch_scc1 L_pre_mf_store
    v_and_b32 v20, 1, v0
    v_lshlrev_b32 v20, 5, v20
    v_bfe_u32 v21, v0, 1, 1
    v_add_u32 v20, v20, v21
    v_lshrrev_b32 v21, 6, v0
    v_lshl_add_u32 v20, v21, 2, v20
    v_bfe_u32 v21, v0, 2, 1
    v_lshl_add_u32 v20, v21, 1, v20
    v_bfe_u32 v21, v0, 3, 3
    v_lshl_add_u32 v20, v21, 9, v20
    v_lshlrev_b32 v20, 1, v20
    s_lshl_b32 s24, s2, 7
    buffer_load_ushort v22, v20, s[20:23], s24 offen
    buffer_load_ushort v23, v20, s[20:23], s24 offen offset:32
    s_waitcnt vmcnt(0)
    v_lshl_or_b32 v3, v23, 16, v22
    v_min_u32 v3, 0xfffeffff, v3
L_pre_mf_store:
    buffer_store_dword v3, v2, s[4:7], s19 offen
L_pre_ln:
    s_waitcnt vmcnt(0)
    ''')
    for i in range(4):
        A(f'v_lshlrev_b32 v{8+2*i}, 16, v{4+i}')
        A(f'v_and_b32 v{9+2*i}, 0xffff0000, v{4+i}')
    A('v_add_f32 v16, v8, v9\nv_add_f32 v17, v10, v11\nv_add_f32 v18, v12, v13\nv_add_f32 v19, v14, v15')
    A('v_add_f32 v16, v16, v17\nv_add_f32 v18, v18, v19\nv_add_f32 v16, v16, v18')
    wave_sum(A, 16, 17)
    A(f'v_mul_f32 v16, {f2u(1/512)}, v16')
    for i in range(8): A(f'v_sub_f32 v{24+i}, v{8+i}, v16')
    A('v_mul_f32 v18, v24, v24')
    for i in range(1, 8): A(f'v_fmac_f32 v18, v{24+i}, v{24+i}')
    wave_sum(A, 18, 17)
    A(f'v_mul_f32 v18, {f2u(1/512)}, v18')
    rnd_bf16(A, 16); rnd_bf16(A, 18)
    A(f'v_add_f32 v18, {f2u(1e-5)}, v18')
    rnd_bf16(A, 18)
    A('v_sqrt_f32 v18, v18')
    rnd_bf16(A, 18)
    A('v_rcp_f32 v18, v18')
    for i in range(8): A(f'v_sub_f32 v{8+i}, v{8+i}, v16')
    for i in range(4):
        A(f'v_cvt_pk_bf16_f32 v{4+i}, v{8+2*i}, v{9+2*i}')
    for i in range(4):
        A(f'v_lshlrev_b32 v{8+2*i}, 16, v{4+i}')
        A(f'v_and_b32 v{9+2*i}, 0xffff0000, v{4+i}')
    for i in range(8): A(f'v_mul_f32 v{8+i}, v{8+i}, v18')
    for i in range(4):
        A(f'v_cvt_pk_bf16_f32 v{4+i}, v{8+2*i}, v{9+2*i}')
    A(f'''
    s_add_u32 s3, s3, {WS_XN}
    buffer_store_dwordx4 v[4:7], v1, s[4:7], s3 offen
L_pre_exit:
    s_endpgm
    ''')
    return kernel_head(name) + A.finalize(), kernel_desc(name, 32, 32, 32)
```

```python
from asmlib import *
from layout import *
import struct

def f2u(x): return struct.unpack('<I', struct.pack('<f', x))[0]

LDS_M, LDS_KX, LDS_XQ, LDS_XO, LDS_MISC = 0, 8192, 24576, 29184, 31744
REG_A, REG_B = 32768, 49152
XQP, XOP = 272, 272
SPIN_LIMIT = 1 << 20

(vIdx, vMw, vWkL, vXQw, vXQr, vXKr, vKXr, vKXg, vVXg, vXOw, vXOr,
 vPs, vPl, vMs, vKMs, vVMs) = range(16)
SEL = 16
ONES = 20
vT0, vT1, vT2, vT3 = 24, 25, 26, 27
VX, MF, ACC, RING, SP = 28, 36, 68, 92, 124
Q0, K0, Q1, K1, V0, V1 = 68, 72, 76, 80, 84, 88
WK0, WO0 = 128, 192
sH, sWV, sStep, sTag, sCur0, sCur1, sNext, sKXo, sVXo, sKMo, sT0, sT1, sT2, sM0w = range(24, 38)
sC, sSpin, sXcc, sRank, sKXm = 44, 46, 47, 48, 49
sPc0, sPc1, sPp, sSent = 40, 41, 42, 43

def v(i, n=1): return f'v{i}' if n == 1 else f'v[{i}:{i+n-1}]'
def a_(i, n=1): return f'a{i}' if n == 1 else f'a[{i}:{i+n-1}]'
def s(i, n=1): return f's{i}' if n == 1 else f's[{i}:{i+n-1}]'

class Cnt:
    def __init__(self, A, name, mx): self.A, self.name, self.mx, self.n = A, name, mx, 0
    def issue(self, text):
        self.A(text); self.n += 1; return self.n
    def wait(self, tok):
        k = min(self.n - tok, self.mx)
        self.A(f's_waitcnt {self.name}({k})')
    def wait_all(self): self.A(f's_waitcnt {self.name}(0)')

def smf(A, d, a, b): A(f'v_smfmac_f32_16x16x64_bf16 {v(d,4)}, {v(a,4)}, {b}, {v(vIdx)}')

def gen_rec(name, nwg=256, dbg=False, nsteps=NSEG, d1=0, d2=0, ps=20):
    A = Asm()
    vL = 99
    A(f'''
    s_cmp_ge_u32 s2, {nwg}
    s_cbranch_scc1 L_rec_exit
    s_load_dwordx8 s[16:23], s[0:1], 16
    s_load_dwordx4 s[36:39], s[0:1], 88
    v_lshrrev_b32 v1, 6, v0
    v_and_b32 {v(vL)}, 63, v0
    s_nop 0
    v_readfirstlane_b32 {s(sWV)}, v1
    s_waitcnt lgkmcnt(0)
    s_mov_b32 s4, s38
    s_mov_b32 s5, s39
    s_mov_b32 s6, {WS_SIZE}
    s_mov_b32 s7, 0x20000
    s_mov_b32 s8, s36
    s_mov_b32 s9, s37
    s_mov_b32 s10, 256
    s_mov_b32 s11, 0x20000
    s_mov_b32 s12, s16
    s_mov_b32 s13, s17
    s_mov_b32 s14, 0x400000
    s_mov_b32 s15, 0x20000
    s_cmp_lg_u32 {s(sWV)}, 0
    s_cbranch_scc1 L_rec_elected
    s_getreg_b32 {s(sXcc)}, hwreg(HW_REG_XCC_ID)
    s_and_b32 {s(sXcc)}, {s(sXcc)}, 15
    s_lshl_b32 {s(sT0)}, {s(sXcc)}, 2
    s_add_u32 {s(sXcc)}, {s(sXcc)}, 1
    v_mov_b32 v1, 1
    v_mov_b32 v2, {s(sT0)}
    v_mov_b32 v3, 64
    v_mov_b32 v6, 68
    s_mov_b64 exec, 1
    buffer_atomic_add v1, v2, s[8:11], 0 offen sc0
    s_waitcnt vmcnt(0)
    v_readfirstlane_b32 {s(sRank)}, v1
    s_mov_b32 {s(sSpin)}, 0
    s_cmp_lg_u32 {s(sRank)}, 31
    s_cbranch_scc1 L_rec_poll_w
    v_mov_b32 v4, {s(sXcc)}
    v_mov_b32 v5, 0
    buffer_atomic_cmpswap v[4:5], v3, s[8:11], 0 offen
L_rec_poll_w:
    buffer_load_dword v1, v3, s[8:11], 0 offen sc0 sc1
    s_waitcnt vmcnt(0)
    v_readfirstlane_b32 {s(sT0)}, v1
    s_cmp_lg_u32 {s(sT0)}, 0
    s_cbranch_scc1 L_rec_got_w
    s_add_u32 {s(sSpin)}, {s(sSpin)}, 1
    s_cmp_lt_u32 {s(sSpin)}, 20000
    s_cbranch_scc1 L_rec_poll_w
    v_mov_b32 v4, 99
    v_mov_b32 v5, 0
    buffer_atomic_cmpswap v[4:5], v3, s[8:11], 0 offen
    s_waitcnt vmcnt(0)
    s_branch L_rec_poll_w
L_rec_got_w:
    s_mov_b32 {s(sT1)}, -1
    s_cmp_eq_u32 {s(sT0)}, 99
    s_cbranch_scc1 L_rec_fallback
    s_cmp_lg_u32 {s(sT0)}, {s(sXcc)}
    s_cbranch_scc1 L_rec_role
    s_cmp_lt_u32 {s(sRank)}, 32
    s_cselect_b32 {s(sT1)}, {s(sRank)}, -1
    s_branch L_rec_role
L_rec_fallback:
    v_mov_b32 v1, 1
    buffer_atomic_add v1, v6, s[8:11], 0 offen sc0
    s_waitcnt vmcnt(0)
    v_readfirstlane_b32 {s(sT0)}, v1
    s_or_b32 {s(sT2)}, {s(sT0)}, 0x100
    s_cmp_lt_u32 {s(sT0)}, 32
    s_cselect_b32 {s(sT1)}, {s(sT2)}, -1
L_rec_role:
    v_mov_b32 v1, {s(sT1)}
    v_mov_b32 v2, {LDS_MISC}
    ds_write_b32 v2, v1
    s_mov_b64 exec, -1
    s_waitcnt lgkmcnt(0)
L_rec_elected:
    s_barrier
    v_mov_b32 v2, {LDS_MISC}
    ds_read_b32 v1, v2
    s_waitcnt lgkmcnt(0)
    v_readfirstlane_b32 {s(sRank)}, v1
    s_cmp_lt_i32 {s(sRank)}, 0
    s_cbranch_scc1 L_rec_exit
    s_and_b32 {s(sH)}, {s(sRank)}, 31
    ''')
    tG, tR, tC, tF, tRow, tD0, tD1, tO0, tO1, tTr0, tTr1, tTrO, tA, tN, t7, tX, tY = range(100, 117)
    A(f'''
    v_lshrrev_b32 {v(tG)}, 4, {v(vL)}
    v_bfe_u32 {v(tR)}, {v(vL)}, 2, 2
    v_and_b32 {v(tC)}, 3, {v(vL)}
    v_and_b32 {v(tF)}, 1, {v(tG)}
    v_lshl_or_b32 {v(tF)}, {v(tF)}, 2, {v(tR)}
    v_lshl_add_u32 {v(tRow)}, {v(tG)}, 4, {v(tR)}
    v_lshlrev_b32 {v(tRow)}, 8, {v(tRow)}
    v_lshl_add_u32 {v(tRow)}, {v(tC)}, 3, {v(tRow)}
    s_lshl_b32 {s(sT0)}, {s(sWV)}, 1
    v_xor_b32 {v(tTr0)}, {s(sT0)}, {v(tF)}
    v_lshl_add_u32 {v(tTr0)}, {v(tTr0)}, 5, {v(tRow)}
    s_or_b32 {s(sT0)}, {s(sT0)}, 1
    v_xor_b32 {v(tTr1)}, {s(sT0)}, {v(tF)}
    v_lshl_add_u32 {v(tTr1)}, {v(tTr1)}, 5, {v(tRow)}
    s_lshl_b32 {s(sM0w)}, {s(sWV)}, 15
    v_add_u32 {v(tTrO)}, {s(sM0w)}, {v(tRow)}
    v_and_b32 {v(tN)}, 15, {v(vL)}
    v_lshlrev_b32 {v(vT1)}, 1, {v(tG)}
    v_xor_b32 {v(vT0)}, {v(tN)}, {v(vT1)}
    v_lshlrev_b32 {v(vT0)}, 4, {v(vT0)}
    v_xor_b32 {v(vT1)}, 0x80, {v(vT0)}
    v_lshrrev_b32 {v(vT2)}, 1, {v(tG)}
    v_and_b32 {v(vT3)}, 1, {v(tG)}
    ; D-type: (2*j1 + 16*j0)*8192 + h*256 + 64*w*8192
    v_lshlrev_b32 {v(tX)}, 14, {v(vT2)}
    v_lshl_add_u32 {v(tX)}, {v(vT3)}, 17, {v(tX)}
    s_lshl_b32 {s(sT0)}, {s(sWV)}, 19
    s_lshl_b32 {s(sT1)}, {s(sH)}, 8
    s_add_u32 {s(sT0)}, {s(sT0)}, {s(sT1)}
    v_add_u32 {v(tX)}, {s(sT0)}, {v(tX)}
    v_add_u32 {v(tD0)}, {v(tX)}, {v(vT0)}
    v_add_u32 {v(tD1)}, {v(tX)}, {v(vT1)}
    ; O-type: (32*j1 + j0)*1024 + h*131072 + w*256
    v_lshlrev_b32 {v(tX)}, 15, {v(vT2)}
    v_lshl_add_u32 {v(tX)}, {v(vT3)}, 10, {v(tX)}
    s_lshl_b32 {s(sT0)}, {s(sH)}, 17
    s_lshl_b32 {s(sT1)}, {s(sWV)}, 8
    s_add_u32 {s(sT0)}, {s(sT0)}, {s(sT1)}
    v_add_u32 {v(tX)}, {s(sT0)}, {v(tX)}
    v_add_u32 {v(tO0)}, {v(tX)}, {v(vT0)}
    v_add_u32 {v(tO1)}, {v(tX)}, {v(vT1)}
    ''')
    units = [('q', 0), ('q', 1), ('v', 0), ('v', 1), ('k', 0), ('o', 0), ('k', 1), ('o', 1)]
    PT = {'q': 16, 'k': 18, 'v': 20, 'o': 22}
    def dma_unit(u):
        mat, hi = units[u]; reg = (REG_A, REG_B)[u & 1]
        A(f's_mov_b32 s12, s{PT[mat]}\ns_mov_b32 s13, s{PT[mat]+1}')
        for ii in range(16):
            gb, j = ii >> 2, (ii & 3) * 4
            if mat == 'o': so = e_of(hi, gb, j) * 1024; vo = (tO0, tO1)[gb & 1]
            else: so = (d_of(0, gb, j) + 256 * hi) * 8192; vo = (tD0, tD1)[gb & 1]
            A(f's_add_u32 m0, {s(sM0w)}, {reg + ii * 1024}')
            A(f's_mov_b32 {s(sT0)}, {so}')
            A(f'buffer_load_dwordx4 {v(vo)}, s[12:15], {s(sT0)} offen lds')
    TMPF = 28
    def dest(u, f):
        mat, hi = units[u]
        if u >= 6: return ('v', TMPF + f * 8)
        if mat == 'q': return ('a', (hi * 8 + f) * 8)
        if mat == 'v': return ('a', 128 + (hi * 8 + f) * 8)
        if mat == 'k': return ('v', WK0 + f * 8)
        return ('v', WO0 + f * 8)
    def read_unit(u):
        mat, hi = units[u]; reg = (REG_A, REG_B)[u & 1]
        for f in range(8):
            if mat == 'o':
                A(f'v_xor_b32 {v(tA)}, {f}, {v(tF)}')
                A(f'v_lshl_add_u32 {v(tA)}, {v(tA)}, 5, {v(tTrO)}')
                A(f'v_add_u32 {v(tA)}, {reg}, {v(tA)}')
            else:
                lam, tt = f >> 1, f & 1
                A(f's_xor_b32 {s(sT0)}, {s(sWV)}, {lam}')
                A(f's_lshl_b32 {s(sT0)}, {s(sT0)}, 15')
                A(f's_add_u32 {s(sT0)}, {s(sT0)}, {reg}')
                A(f'v_add_u32 {v(tA)}, {s(sT0)}, {v((tTr0, tTr1)[tt])}')
            fl, d = dest(u, f)
            for t in range(4):
                A(f'ds_read_b64_tr_b16 {fl}[{d+2*t}:{d+2*t+1}], {v(tA)} offset:{t*1024}')
    dma_unit(0); dma_unit(1)
    A(f'''
    v_lshlrev_b32 {v(vT0)}, 4, {v(vL)}
    v_and_b32 {v(vT1)}, 1, {v(vL)}
    v_mov_b32 {v(vIdx)}, 0xffff4444
    v_mov_b32 {v(vT2)}, 0xffffeeee
    v_cmp_ne_u32 vcc, 0, {v(vT1)}
    v_cndmask_b32 {v(vIdx)}, {v(vIdx)}, {v(vT2)}, vcc
    s_lshl_b32 {s(sT0)}, {s(sWV)}, 10
    v_add_u32 {v(vMw)}, {s(sT0)}, {v(vT0)}
    s_add_u32 {s(sT1)}, {s(sM0w)}, {REG_A}
    v_add_u32 {v(vWkL)}, {s(sT1)}, {v(vT0)}
    v_add_u32 {v(vKXr)}, {LDS_KX}, {v(vT0)}
    v_and_b32 {v(t7)}, 7, {v(vL)}
    s_lshl_b32 {s(sT1)}, {s(sWV)}, 6
    v_mul_u32_u24 {v(vXQw)}, {4*XQP}, {v(tG)}
    v_lshl_add_u32 {v(vXQw)}, {v(tN)}, 2, {v(vXQw)}
    s_add_u32 {s(sT2)}, {s(sT1)}, {LDS_XQ}
    v_add_u32 {v(vXQw)}, {s(sT2)}, {v(vXQw)}
    v_mul_u32_u24 {v(vXQr)}, {2*XQP}, {v(t7)}
    v_lshl_add_u32 {v(vXQr)}, {v(tG)}, 4, {v(vXQr)}
    v_add_u32 {v(vXQr)}, {LDS_XQ}, {v(vXQr)}
    v_lshrrev_b32 {v(tX)}, 2, {v(tN)}
    v_lshl_add_u32 {v(tX)}, {v(tX)}, 1, {v(vT1)}
    v_mul_u32_u24 {v(vXKr)}, {2*XQP}, {v(tX)}
    v_lshl_add_u32 {v(vXKr)}, {v(tG)}, 4, {v(vXKr)}
    v_add_u32 {v(vXKr)}, {LDS_XQ + XQP}, {v(vXKr)}
    v_mul_u32_u24 {v(vXOw)}, {XOP}, {v(t7)}
    v_lshl_add_u32 {v(vXOw)}, {v(tG)}, 4, {v(vXOw)}
    s_add_u32 {s(sT2)}, {s(sT1)}, {LDS_XO}
    v_add_u32 {v(vXOw)}, {s(sT2)}, {v(vXOw)}
    v_lshrrev_b32 {v(tX)}, 1, {v(tN)}
    v_mul_u32_u24 {v(vXOr)}, {XOP}, {v(tX)}
    v_lshl_add_u32 {v(vXOr)}, {v(tG)}, 4, {v(vXOr)}
    v_lshl_add_u32 {v(vXOr)}, {v(vT1)}, 6, {v(vXOr)}
    v_add_u32 {v(vXOr)}, {LDS_XO}, {v(vXOr)}
    v_lshlrev_b32 {v(vKXg)}, 13, {v(tN)}
    v_lshl_add_u32 {v(vKXg)}, {v(tG)}, 4, {v(vKXg)}
    s_lshl_b32 {s(sT2)}, {s(sH)}, 8
    s_add_u32 {s(sT2)}, {s(sT2)}, {s(sT1)}
    s_add_u32 {s(sT2)}, {s(sT2)}, {WS_K}
    v_add_u32 {v(vKXg)}, {s(sT2)}, {v(vKXg)}
    v_lshlrev_b32 {v(vVXg)}, 6, {v(tN)}
    v_lshl_add_u32 {v(vVXg)}, {v(tG)}, 4, {v(vVXg)}
    s_lshl_b32 {s(sT2)}, {s(sH)}, 13
    s_lshl_b32 {s(sT0)}, {s(sWV)}, 11
    s_add_u32 {s(sT2)}, {s(sT2)}, {s(sT0)}
    s_add_u32 {s(sT2)}, {s(sT2)}, {WS_VT}
    v_add_u32 {v(vVXg)}, {s(sT2)}, {v(vVXg)}
    v_lshrrev_b32 {v(vPs)}, 2, {v(tN)}
    v_lshlrev_b32 {v(vPs)}, 13, {v(vPs)}
    v_lshl_add_u32 {v(vPs)}, {v(tG)}, 6, {v(vPs)}
    v_lshl_add_u32 {v(vPs)}, {v(tC)}, 4, {v(vPs)}
    s_lshl_b32 {s(sT2)}, {s(sWV)}, 16
    s_lshl_b32 {s(sT0)}, {s(sH)}, 8
    s_add_u32 {s(sT2)}, {s(sT2)}, {s(sT0)}
    v_add_u32 {v(vPs)}, {s(sT2)}, {v(vPs)}
    v_lshlrev_b32 {v(vPl)}, 11, {v(tR)}
    v_lshl_add_u32 {v(vPl)}, {v(tG)}, 9, {v(vPl)}
    v_lshl_add_u32 {v(vPl)}, {v(tC)}, 4, {v(vPl)}
    s_lshl_b32 {s(sT2)}, {s(sH)}, 13
    s_add_u32 {s(sT2)}, {s(sT2)}, {s(sT1)}
    v_add_u32 {v(vPl)}, {s(sT2)}, {v(vPl)}
    v_bfe_u32 {v(vMs)}, {v(vL)}, 2, 1
    v_lshlrev_b32 {v(vMs)}, 5, {v(vMs)}
    v_lshl_add_u32 {v(vMs)}, {v(tG)}, 3, {v(vMs)}
    v_bfe_u32 {v(tX)}, {v(vL)}, 1, 1
    v_lshl_add_u32 {v(vMs)}, {v(tX)}, 2, {v(vMs)}
    s_lshl_b32 {s(sT2)}, {s(sH)}, 8
    s_add_u32 {s(sT2)}, {s(sT2)}, {s(sT1)}
    v_add_u32 {v(vMs)}, {s(sT2)}, {v(vMs)}
    v_and_b32 {v(tX)}, 9, {v(vL)}
    v_cmp_ne_u32 vcc, 0, {v(tX)}
    v_mov_b32 {v(tX)}, 0x7ffffff0
    v_cndmask_b32 {v(vMs)}, {v(vMs)}, {v(tX)}, vcc
    ; SEL[d] = ((l&7)>>1 == d) ? ((l&1) ? 0x3f800000 : 0x00003f80) : 0
    v_lshlrev_b32 {v(tX)}, 4, {v(vT1)}
    v_mov_b32 {v(tY)}, 0x3f80
    v_lshlrev_b32 {v(tY)}, {v(tX)}, {v(tY)}
    v_lshrrev_b32 {v(tX)}, 1, {v(t7)}
    v_cmp_eq_u32 vcc, 0, {v(tX)}
    v_cndmask_b32 {v(SEL)}, 0, {v(tY)}, vcc
    v_cmp_eq_u32 vcc, 1, {v(tX)}
    v_cndmask_b32 {v(SEL+1)}, 0, {v(tY)}, vcc
    v_cmp_eq_u32 vcc, 2, {v(tX)}
    v_cndmask_b32 {v(SEL+2)}, 0, {v(tY)}, vcc
    v_cmp_eq_u32 vcc, 3, {v(tX)}
    v_cndmask_b32 {v(SEL+3)}, 0, {v(tY)}, vcc
    v_lshlrev_b32 {v(vKMs)}, 9, {v(tG)}
    v_lshl_add_u32 {v(vKMs)}, {v(tN)}, 2, {v(vKMs)}
    s_lshl_b32 {s(sT2)}, {s(sH)}, 11
    s_add_u32 {s(sT2)}, {s(sT2)}, {s(sT1)}
    s_add_u32 {s(sT2)}, {s(sT2)}, {WS_KM}
    v_add_u32 {v(vKMs)}, {s(sT2)}, {v(vKMs)}
    v_lshlrev_b32 {v(vVMs)}, 4, {v(tN)}
    v_lshl_add_u32 {v(vVMs)}, {v(tG)}, 2, {v(vVMs)}
    s_lshl_b32 {s(sT2)}, {s(sH)}, 11
    s_lshl_b32 {s(sT0)}, {s(sWV)}, 9
    s_add_u32 {s(sT2)}, {s(sT2)}, {s(sT0)}
    s_add_u32 {s(sT2)}, {s(sT2)}, {WS_VM}
    v_add_u32 {v(vVMs)}, {s(sT2)}, {v(vVMs)}
    s_mov_b32 {s(sC)}, {f2u(SM_C)}
    s_mov_b32 {s(sSent)}, 0xfffeffff
    s_mov_b32 {s(sC+1)}, {f2u(SM_C)}
    v_mov_b32 {v(ONES)}, 0x3f803f80
    v_mov_b32 {v(ONES+1)}, 0x3f803f80
    v_mov_b32 {v(ONES+2)}, 0x3f803f80
    v_mov_b32 {v(ONES+3)}, 0x3f803f80
    v_mov_b32 {v(SP+1)}, 0
    v_mov_b32 {v(SP+3)}, 0
    ''')
    for u in range(8):
        A(f's_waitcnt vmcnt({16 if u < 7 else 0})')
        A('s_barrier')
        read_unit(u)
        A('s_waitcnt lgkmcnt(0)')
        A('s_barrier')
        if u + 2 < 8: dma_unit(u + 2)
        if u >= 6:
            for f in range(8):
                for hf in range(2):
                    A(f'ds_write_b128 {v(vWkL)}, {v(TMPF + f*8 + hf*4, 4)} offset:{(u-6)*16384 + f*2048 + hf*1024}')
            A('s_waitcnt lgkmcnt(0)')
    A(f'''
    s_mov_b32 {s(sStep)}, 0
    s_mov_b32 {s(sPc0)}, {WS_PART}
    s_mov_b32 {s(sPc1)}, {WS_PART + 32768}
    s_mov_b32 {s(sPp)}, {WS_PART + 0x40000}
    s_mov_b32 {s(sCur0)}, {WS_MF}
    s_mov_b32 {s(sCur1)}, {WS_MF + 4096}
    s_mov_b32 {s(sNext)}, {WS_MF + 8192}
    s_mov_b32 {s(sKXo)}, 0
    s_mov_b32 {s(sVXo)}, 0
    s_mov_b32 {s(sKMo)}, 0
    s_lshl_b32 {s(sKXm)}, {s(sWV)}, 10
    s_add_u32 {s(sKXm)}, {s(sKXm)}, {LDS_KX}
    s_mov_b32 m0, {s(sKXm)}
    s_add_u32 {s(sT0)}, {s(sKXo)}, {16*8192}
    buffer_load_dwordx4 {v(vKXg)}, s[4:7], {s(sKXo)} offen lds
    s_add_u32 m0, {s(sKXm)}, 4096
    s_nop 0
    buffer_load_dwordx4 {v(vKXg)}, s[4:7], {s(sT0)} offen lds
    s_add_u32 {s(sKXo)}, {s(sKXo)}, {32*8192}
    s_xor_b32 {s(sKXm)}, {s(sKXm)}, {LDS_KX ^ (LDS_KX + 8192)}
    ''')
    if dbg:
        for i in range(76, 90): A(f's_mov_b32 s{i}, 0')
        A('s_memrealtime s[92:93]\ns_memtime s[94:95]\ns_waitcnt lgkmcnt(0)\ns_mov_b32 s90, s92\ns_mov_b32 s91, s94')
    A(f'''
    s_bitcmp1_b32 {s(sRank)}, 8
    s_cbranch_scc1 L_rec_slow_entry
    ''')
    gen_loop(A, 'f', '', dbg, nsteps, d1, d2, ps)
    A.label('L_rec_slow_entry')
    gen_loop(A, 's', ' sc1', dbg, nsteps, d1, d2, ps)
    A.label('L_rec_fin')
    if dbg:
        A(f'''
        s_memrealtime s[92:93]
        s_memtime s[94:95]
        s_waitcnt lgkmcnt(0)
        s_sub_u32 s90, s92, s90
        s_sub_u32 s91, s94, s91
        s_lshl_b32 {s(sT0)}, {s(sH)}, 2
        s_add_u32 {s(sT0)}, {s(sT0)}, {s(sWV)}
        s_lshl_b32 {s(sT0)}, {s(sT0)}, 6
        s_add_u32 {s(sT0)}, {s(sT0)}, {WS_DBG}
        v_mov_b32 v30, 0
        ''')
        for i in range(16):
            A(f'v_mov_b32 v31, s{76+i}\nbuffer_store_dword v31, v30, s[4:7], {s(sT0)} offen offset:{4*i}')
    A.label('L_rec_exit')
    A('s_endpgm')
    return kernel_head(name) + A.finalize(), kernel_desc(name, 512, 100, 256)

def gen_loop(A, sfx, stf, dbg, nsteps, d1, d2, ps):
    L = Cnt(A, 'lgkmcnt', 15); V = Cnt(A, 'vmcnt', 63)
    def stamp(i):
        if dbg: A(f's_memtime s[{52+2*i}:{53+2*i}]')
    def delay(n):
        while n > 0:
            k = min(n, 16); A(f's_nop {k-1}'); n -= k
    def zero(base, n):
        for i in range(0, n, 2): A(f'v_mov_b64 {v(base+i,2)}, 0')
    def ring_prefetch():
        for f in range(4):
            for hf in range(2):
                L.issue(f'ds_read_b128 {v(RING + f*8 + hf*4, 4)}, {v(vWkL)} offset:{f*2048 + hf*1024}')
    def neg1():
        for i in range(4): A(f'v_mov_b32 {v(VX+i)}, -1')
    def resets():
        A(f'buffer_store_dwordx4 {v(VX,4)}, {v(vPl)}, s[4:7], {s(sPp)} offen{stf}')
        A(f'buffer_store_dwordx4 {v(VX,4)}, {v(vPl)}, s[4:7], {s(sPp)} offen offset:256{stf}')
        A(f'buffer_store_dword {v(VX)}, {v(vMs)}, s[4:7], {s(sNext)} offen{stf}')
    def gather_issue():
        V.issue(f'buffer_load_dwordx4 {v(MF,4)}, {v(vMw)}, s[4:7], {s(sCur0)} offen sc1')
        V.issue(f'buffer_load_dwordx4 {v(MF+4,4)}, {v(vMw)}, s[4:7], {s(sCur1)} offen sc1')
    def retry_loop(tag, issue, base, t0, t1, back):
        A.label(f'L_{tag}f_{sfx}')
        A('s_mov_b64 exec, vcc')
        issue()
        A(f's_add_u32 {s(sSpin)}, {s(sSpin)}, 1')
        A(f's_cmp_lt_u32 {s(sSpin)}, {SPIN_LIMIT}\ns_cbranch_scc0 L_rec_exit')
        A('s_waitcnt vmcnt(0)')
        A(f'v_max_u32 {v(t0)}, {v(base)}, {v(base+4)}')
        A(f'v_cmp_lt_u32 vcc, {s(sSent)}, {v(t0)}')
        A(f's_cbranch_vccnz L_{tag}f_{sfx}')
        A(f's_mov_b64 exec, -1')
    def add(d, x, y): A(f'v_add_f32 {v(d)}, {v(x)}, {v(y)}')
    def cvt(d, x, y): A(f'v_cvt_pk_bf16_f32 {v(d)}, {v(x)}, {v(y)}')
    def wq(o, tt): lam, hi = o >> 1, o & 1; return a_(((hi * 4 + lam) * 2 + tt) * 8, 8)
    def wv(o, tt): lam, hi = o >> 1, o & 1; return a_(128 + ((hi * 4 + lam) * 2 + tt) * 8, 8)
    def wk(o, tt):
        lam, hi = o >> 1, o & 1
        return v(WK0 + (lam * 2 + tt) * 8, 8) if hi == 0 else v(RING + ((lam * 2 + tt) & 3) * 8, 8)
    QA, KA, VA = (Q0, Q1), (K0, K1), (V0, V1)
    def mq(o, tt): smf(A, QA[tt], MF + 4 * o, wq(o, tt))
    def mk(o, tt): smf(A, KA[tt], MF + 4 * o, wk(o, tt))
    def mv(o, tt): smf(A, VA[tt], MF + 4 * o, wv(o, tt))
    ring_prefetch(); zero(ACC, 24)
    A(f's_mov_b32 {s(sSpin)}, 0')
    gather_issue()
    A('s_waitcnt vmcnt(0)')
    A.label(f'L_loop_{sfx}')
    A('s_waitcnt vmcnt(0)')
    A(f'v_max_u32 {v(vT0)}, {v(MF)}, {v(MF+4)}')
    L.issue(f'ds_write_b128 {v(vMw)}, {v(MF,4)}')
    A(f'v_cmp_lt_u32 vcc, {s(sSent)}, {v(vT0)}')
    L.issue(f'ds_write_b128 {v(vMw)}, {v(MF+4,4)} offset:4096')
    A(f's_cbranch_vccnz L_gf_{sfx}')
    A.label(f'L_gok_{sfx}')
    mq(0, 0); mk(0, 0); mq(0, 1)
    if dbg: A(f's_add_u32 s88, s88, {s(sSpin)}')
    stamp(0)
    mk(0, 1)
    for lam in (1, 2, 3): A(f'v_xor_b32 {v(vT0 + lam)}, {lam*1024}, {v(vMw)}')
    L.wait_all()
    A('s_barrier')
    stamp(1)
    mft = {}
    def mfread(o):
        lam, hi = o >> 1, o & 1
        mft[o] = L.issue(f'ds_read_b128 {v(MF + 4*o, 4)}, {v(vT0 + lam)} offset:{hi*4096}')
    mfread(2); mfread(3)
    mq(1, 0); mfread(4)
    rt = {}
    def refill(lam, tt, hf):
        f = lam * 2 + tt
        rt[(lam, tt)] = L.issue(f'ds_read_b128 {v(RING + (f & 3)*8 + hf*4, 4)}, {v(vWkL)} offset:{f*2048 + hf*1024}')
    kxt = {}
    def kxload(i):
        kxt[i] = L.issue(f'ds_read_b128 {v(RING + 4*i, 4)}, {v(vKXr)} offset:{i*1024}')
    mk(1, 0); mfread(5)
    mq(1, 1); mfread(6)
    mk(1, 1); mfread(7)
    L.wait(mft[2])
    mq(2, 0); refill(2, 0, 0)
    mk(2, 0); refill(2, 0, 1)
    mq(2, 1); refill(2, 1, 0)
    mk(2, 1); refill(2, 1, 1)
    V.issue(f'buffer_store_dword {v(vIdx)}, {v(vMs)}, s[4:7], {s(sNext)} offen{stf}')
    L.wait(mft[3])
    mq(3, 0)
    tv0 = V.issue(f'buffer_load_dwordx4 {v(VX,4)}, {v(vVXg)}, s[4:7], {s(sVXo)} offen')
    mk(3, 0); refill(3, 0, 0)
    mq(3, 1); refill(3, 0, 1)
    mk(3, 1); refill(3, 1, 0)
    L.wait(mft[4])
    mq(4, 0); refill(3, 1, 1)
    mk(4, 0)
    tvx = V.issue(f'buffer_load_dwordx4 {v(VX+4,4)}, {v(vVXg)}, s[4:7], {s(sVXo)} offen offset:1024')
    mq(4, 1)
    A(f's_mov_b32 m0, {s(sKXm)}')
    mk(4, 1)
    V.issue(f'buffer_load_dwordx4 {v(vKXg)}, s[4:7], {s(sKXo)} offen lds')
    L.wait(rt[(2, 1)])
    mq(5, 0)
    A(f's_add_u32 m0, {s(sKXm)}, 4096')
    mk(5, 0); kxload(0)
    mq(5, 1); kxload(1)
    mk(5, 1); kxload(2)
    mq(6, 0); kxload(3)
    mk(6, 0)
    A(f's_add_u32 {s(sT0)}, {s(sKXo)}, {16*8192}')
    mq(7, 0)
    V.issue(f'buffer_load_dwordx4 {v(vKXg)}, s[4:7], {s(sT0)} offen lds')
    L.wait(rt[(3, 1)])
    mk(7, 0); kxload(4)
    mq(6, 1); kxload(5)
    mk(6, 1); add(Q0, Q0, Q0 + 1)
    mq(7, 1); add(Q0 + 1, Q0 + 2, Q0 + 3)
    mk(7, 1)
    stamp(2)
    add(K0, K0, K0 + 1); add(K0 + 1, K0 + 2, K0 + 3)
    add(Q1, Q1, Q1 + 1); add(Q1 + 1, Q1 + 2, Q1 + 3)
    cvt(vT0, Q0, Q1); cvt(vT1, Q0 + 1, Q1 + 1)
    L.issue(f'ds_write2_b32 {v(vXQw)}, {v(vT0)}, {v(vT1)} offset0:0 offset1:{2*XQP//4}')
    add(K1, K1, K1 + 1); add(K1 + 1, K1 + 2, K1 + 3)
    cvt(vT2, K0, K1); cvt(vT3, K0 + 1, K1 + 1)
    L.issue(f'ds_write2_b32 {v(vXQw)}, {v(vT2)}, {v(vT3)} offset0:{XQP//4} offset1:{3*XQP//4}')
    mv(0, 0); kxload(6)
    mv(0, 1); kxload(7)
    mv(1, 0)
    V.issue(f'buffer_store_dword {v(vT2)}, {v(vKMs)}, s[4:7], {s(sKMo)} offen{stf}')
    mv(1, 1)
    V.issue(f'buffer_store_dword {v(vT3)}, {v(vKMs)}, s[4:7], {s(sKMo)} offen offset:256{stf}')
    mv(2, 0)
    L.wait_all()
    A('s_barrier')
    stamp(3)
    QF, KMF, SA = ACC, MF, MF + 16
    qt, kt = {}, {}
    def qread(ks): qt[ks] = L.issue(f'ds_read_b128 {v(QF + 4*ks, 4)}, {v(vXQr)} offset:{ks*64}')
    def kread(ks): kt[ks] = L.issue(f'ds_read_b128 {v(KMF + 4*ks, 4)}, {v(vXKr)} offset:{ks*64}')
    qread(0); qread(1)
    mv(2, 1); qread(2)
    mv(3, 0); qread(3)
    mv(3, 1); kread(0)
    mv(4, 0); kread(1)
    mv(4, 1); kread(2)
    mv(5, 0); kread(3)
    mv(5, 1)
    V.issue(f'buffer_store_dwordx4 {v(vIdx,4)}, {v(vPl)}, s[4:7], {s(sPp)} offen{stf}')
    mv(6, 0); mv(6, 1); mv(7, 0); mv(7, 1)
    V.issue(f'buffer_store_dwordx4 {v(vIdx,4)}, {v(vPl)}, s[4:7], {s(sPp)} offen offset:256{stf}')
    TX0, TX1, TM = SA, SA + 4, SA + 8
    def mm(d, a, b, c, k=32):
        n = 4 if k == 32 else 2
        A(f'v_mfma_f32_16x16x{k}_bf16 {v(d,4)}, {v(a,n)}, {v(b,n)}, {c}')
    L.wait(qt[3])
    for ks in range(4):
        mm(TX0, RING + 4 * ks, QF + 4 * ks, '0' if ks == 0 else v(TX0, 4))
        if ks == 2: add(V0, V0, V0 + 1); add(V0 + 1, V0 + 2, V0 + 3)
        if ks == 3: cvt(SP, V0, V0 + 1); cvt(SP + 2, V1, V1 + 1)
        mm(TX1, RING + 16 + 4 * ks, QF + 4 * ks, '0' if ks == 0 else v(TX1, 4))
        if ks == 2: add(V1, V1, V1 + 1); add(V1 + 1, V1 + 2, V1 + 3)
    L.wait(kt[3])
    M_, T_ = vT2, vT3
    mm(TM, KMF, QF, '0')
    V.issue(f'buffer_store_dword {v(SP)}, {v(vVMs)}, s[4:7], {s(sKMo)} offen{stf}')
    mm(TM, KMF + 4, QF + 4, v(TM, 4))
    V.issue(f'buffer_store_dword {v(SP+2)}, {v(vVMs)}, s[4:7], {s(sKMo)} offen offset:256{stf}')
    A(f's_cmp_eq_u32 {s(sStep)}, {nsteps-1}')
    mm(TM, KMF + 8, QF + 8, v(TM, 4))
    A(f'v_max3_f32 {v(M_)}, {v(TX0)}, {v(TX0+1)}, {v(TX0+2)}')
    A(f'v_max3_f32 {v(T_)}, {v(TX0+3)}, {v(TX1)}, {v(TX1+1)}')
    mm(TM, KMF + 12, QF + 12, v(TM, 4))
    A(f's_cbranch_scc1 L_rec_fin')
    stamp(4)
    wt = {}
    def wofill(T, hf):
        wt[T] = L.issue(f'ds_read_b128 {v(MF + (T & 3)*8 + hf*4, 4)}, {v(vWkL)} offset:{16384 + T*2048 + hf*1024}')
    PM, PX = ACC, ACC + 4
    OL, O0_, O1_ = ACC + 8, V0, V1
    A(f'''
    v_max3_f32 {v(M_)}, {v(M_)}, {v(TX1+2)}, {v(TX1+3)}
    v_max_f32 {v(M_)}, {v(M_)}, {v(T_)}
    ''')
    wofill(0, 0); wofill(0, 1); wofill(1, 0); wofill(1, 1)
    A(f'''
    v_max3_f32 {v(T_)}, {v(M_)}, {v(TM)}, {v(TM+1)}
    v_max3_f32 {v(M_)}, {v(M_)}, {v(TM)}, {v(TM+1)}
    v_mov_b32 {v(PM+1)}, 0
    v_permlane32_swap_b32 {v(M_)}, {v(T_)}
    v_max_f32 {v(vT0)}, {v(M_)}, {v(T_)}
    v_max_f32 {v(vT1)}, {v(M_)}, {v(T_)}
    v_permlane16_swap_b32 {v(vT0)}, {v(vT1)}
    v_max_f32 {v(M_)}, {v(vT0)}, {v(vT1)}
    v_mul_f32 {v(M_)}, {s(sC)}, {v(M_)}
    ''')
    def pkf(x): A(f'v_pk_fma_f32 {v(x,2)}, {v(x,2)}, {s(sC,2)}, {v(M_,2)} op_sel_hi:[1,1,0] neg_lo:[0,0,1] neg_hi:[0,0,1]')
    def ex(x): A(f'v_exp_f32 {v(x)}, {v(x)}')
    pkf(TM); pkf(TX0); pkf(TX0 + 2); pkf(TX1); pkf(TX1 + 2)
    ex(TM); ex(TM + 1); ex(TX0)
    cvt(PM, TM, TM + 1)
    ex(TX0 + 1); ex(TX0 + 2)
    mm(OL, ONES, PM, '0', 16)
    ex(TX0 + 3); cvt(PX, TX0, TX0 + 1)
    mm(O0_, SP, PM, '0', 16)
    ex(TX1); cvt(PX + 1, TX0 + 2, TX0 + 3)
    mm(O1_, SP + 2, PM, '0', 16)
    ex(TX1 + 1); ex(TX1 + 2); ex(TX1 + 3)
    cvt(PX + 2, TX1, TX1 + 1); cvt(PX + 3, TX1 + 2, TX1 + 3)
    stamp(5)
    V.wait(tvx)
    mm(OL, ONES, PX, v(OL, 4))
    wofill(2, 0); wofill(2, 1)
    mm(O0_, VX, PX, v(O0_, 4))
    wofill(3, 0); wofill(3, 1)
    mm(O1_, VX + 4, PX, v(O1_, 4))
    WA = RING
    A(f'v_rcp_f32 {v(M_)}, {v(OL)}')
    zero(WA, 2)
    OX = ACC + 12
    def mul(x): A(f'v_mul_f32 {v(x)}, {v(M_)}, {v(x)}')
    for r in range(4): mul(O0_ + r)
    cvt(OX, O0_, O0_ + 1); cvt(OX + 1, O0_ + 2, O0_ + 3)
    for r in range(4): mul(O1_ + r)
    cvt(OX + 2, O1_, O1_ + 1); cvt(OX + 3, O1_ + 2, O1_ + 3)
    L.issue(f'ds_write_b128 {v(vXOw)}, {v(OX,4)}')
    zero(WA + 2, 30)
    stamp(6)
    L.wait_all()
    A('s_barrier')
    stamp(7)
    OA = V0
    ot0 = L.issue(f'ds_read_b128 {v(OA,4)}, {v(vXOr)}')
    ot1 = L.issue(f'ds_read_b128 {v(OA+4,4)}, {v(vXOr)} offset:128')
    A(f'''
    s_add_u32 {s(sKXo)}, {s(sKXo)}, {32*8192}
    s_xor_b32 {s(sKXm)}, {s(sKXm)}, {LDS_KX ^ (LDS_KX + 8192)}
    s_add_u32 {s(sVXo)}, {s(sVXo)}, {32*128*64}
    s_add_u32 {s(sKMo)}, {s(sKMo)}, {32*2048}
    v_xor_b32 {v(vKXr)}, {LDS_KX ^ (LDS_KX + 8192)}, {v(vKXr)}
    ''')
    L.wait(ot0)
    PO = ACC
    PU = VX
    def hs(T, j): add(PO + 2 * T + j, WA + 4 * T + 2 * j, WA + 4 * T + 2 * j + 1)
    def pk(P):
        Qd, p = P >> 1, P & 1
        for j in range(2): cvt(PU + 4 * Qd + 2 * j + p, PO + 4 * P + j, PO + 4 * P + 2 + j)
        if p == 0: A(f'v_min_u32 {v(PU+4*Qd)}, {s(sSent)}, {v(PU+4*Qd)}')
    def pstore(Qd):
        V.issue(f'buffer_store_dwordx4 {v(PU+4*Qd,4)}, {v(vPs)}, s[4:7], {s((sPc0, sPc1)[Qd])} offen{stf}')
    for T in range(8):
        smf(A, WA + 4 * T, OA, v(WO0 + 8 * T, 8))
        if T == 0: L.wait(ot1)
        if T >= 2: hs(T - 2, 0)
        if T >= 4: L.wait(wt[T])
        if T == 6: pstore(0)
        smf(A, WA + 4 * T, OA + 4, v(MF + (T & 3) * 8, 8))
        if T < 4: wofill(T + 4, 0); wofill(T + 4, 1)
        if T >= 2: hs(T - 2, 1)
        if T >= 3 and T % 2 == 1: pk((T - 3) // 2)
    hs(6, 0); hs(6, 1); hs(7, 0); hs(7, 1); pk(3); pstore(1)
    stamp(8)
    RL, RD = MF + 16, vT0
    A(f's_mov_b32 {s(sSpin)}, 0')
    ring_prefetch(); zero(ACC, 24)
    def red_issue():
        for i in range(2):
            V.issue(f'buffer_load_dwordx4 {v(RL + 4*i, 4)}, {v(vPl)}, s[4:7], {s(sPc0)} offen offset:{i*256} sc1')
    delay(d1)
    red_issue()
    A('s_waitcnt vmcnt(0)')
    A(f'v_max_u32 {v(MF)}, {v(RL)}, {v(RL+4)}')
    mm(RD, RL, SEL, '0')
    A(f'v_cmp_lt_u32 vcc, {s(sSent)}, {v(MF)}')
    mm(RD, RL + 4, SEL, v(RD, 4))
    A(f's_cbranch_vccnz L_rf_{sfx}')
    A.label(f'L_rok_{sfx}')
    stamp(9)
    if dbg: A(f's_add_u32 s89, s89, {s(sSpin)}')
    A(f'''
    v_permlane32_swap_b32 {v(RD)}, {v(RD+2)}
    v_permlane32_swap_b32 {v(RD+1)}, {v(RD+3)}
    v_add_f32 {v(RD)}, {v(RD)}, {v(RD+2)}
    v_add_f32 {v(RD+1)}, {v(RD+1)}, {v(RD+3)}
    v_permlane16_swap_b32 {v(RD)}, {v(RD+1)}
    v_add_f32 {v(RD)}, {v(RD)}, {v(RD+1)}
    v_mov_b32_dpp {v(RD+1)}, {v(RD)} quad_perm:[1,0,3,2] row_mask:0xf bank_mask:0xf
    v_cvt_pk_bf16_f32 {v(RD)}, {v(RD)}, {v(RD+1)}
    v_min_u32 {v(RD)}, {s(sSent)}, {v(RD)}
    buffer_store_dword {v(RD)}, {v(vMs)}, s[4:7], {s(sNext)} offen{stf}
    s_mov_b32 {s(sPp)}, {s(sPc0)}
    s_xor_b32 {s(sCur0)}, {s(sCur0)}, 8192
    s_xor_b32 {s(sCur1)}, {s(sCur1)}, 8192
    s_xor_b32 {s(sNext)}, {s(sNext)}, 8192
    s_xor_b32 {s(sPc0)}, {s(sPc0)}, 0x40000
    s_xor_b32 {s(sPc1)}, {s(sPc1)}, 0x40000
    s_add_u32 {s(sStep)}, {s(sStep)}, 1
    s_mov_b32 {s(sSpin)}, 0
    ''')
    stamp(10)
    delay(d2)
    gather_issue()
    if dbg:
        A('s_waitcnt lgkmcnt(0)')
        for i in range(10):
            A(f's_sub_u32 {s(sT0)}, s{52+2*(i+1)}, s{52+2*i}\ns_add_u32 s{76+i}, s{76+i}, {s(sT0)}')
        A(f'''
        s_cmp_lg_u32 {s(sStep)}, 31
        s_cbranch_scc1 L_nodump_{sfx}
        s_lshl_b32 {s(sT0)}, {s(sH)}, 2
        s_add_u32 {s(sT0)}, {s(sT0)}, {s(sWV)}
        s_lshl_b32 {s(sT0)}, {s(sT0)}, 6
        s_add_u32 {s(sT0)}, {s(sT0)}, {WS_DBG + 8192}
        v_mov_b32 {v(vT0)}, 0
        ''')
        for i in range(11):
            A(f'v_mov_b32 {v(vT1)}, s{52+2*i}\nbuffer_store_dword {v(vT1)}, {v(vT0)}, s[4:7], {s(sT0)} offen offset:{4*i}')
        A(f's_waitcnt vmcnt(0)\nL_nodump_{sfx}:')
        A(f's_sub_u32 {s(sT0)}, s52, s87\ns_cmp_eq_u32 {s(sStep)}, 1\ns_cselect_b32 {s(sT0)}, 0, {s(sT0)}\ns_add_u32 s86, s86, {s(sT0)}\ns_mov_b32 s87, s72')
    A(f's_branch L_loop_{sfx}')
    retry_loop('g', gather_issue, MF, vT0, vT1, f'L_gw_{sfx}')
    A.label(f'L_gw_{sfx}')
    A(f'ds_write_b128 {v(vMw)}, {v(MF,4)}')
    A(f'ds_write_b128 {v(vMw)}, {v(MF+4,4)} offset:4096')
    A(f's_branch L_gok_{sfx}')
    retry_loop('r', red_issue, RL, MF, MF + 1, f'L_rw_{sfx}')
    A.label(f'L_rw_{sfx}')
    mm(RD, RL, SEL, '0')
    mm(RD, RL + 4, SEL, v(RD, 4))
    A(f's_branch L_rok_{sfx}')

HDR = '; @launch grid=(256,1,1) block=(256,1,1) lds=163840\n.amdgcn_target "amdgcn-amd-amdhsa--gfx950"\n'
if __name__ == '__main__':
    import sys
    kw = dict(a.split('=') for a in sys.argv[1:] if '=' in a)
    body, desc = gen_rec('rec_kernel', dbg=('dbg' in sys.argv), d1=int(kw.get('d1', 0)), d2=int(kw.get('d2', 0)), ps=int(kw.get('ps', 20)))
    open(kw.get('out', 'rec.s'), 'w').write(HDR + body + desc)
```

```python
import sys
import pre, gemm1, rec, att, gemm2
NAME = 'parallel_sum__memory_aug_recurrent_mem_tr__dense_activation_silu__prompt'
def build(path, **kw):
    parts = [pre.gen_pre('pre_kernel'), gemm1.gen_gemm1_standalone('g1_kernel'),
             rec.gen_rec('rec_kernel', d1=60, d2=60), att.gen_att('att_kernel'), gemm2.gen_gemm2('g2_kernel')]
    hdr = '''; generated by gen/build.py (hand-written generator scripts)
; @launch kernel=pre_kernel grid=(512,1,1) block=(256,1,1) lds=0
; @launch kernel=g1_kernel grid=(440,1,1) block=(256,1,1) lds=131072
; @launch kernel=rec_kernel grid=(256,1,1) block=(256,1,1) lds=163840
; @launch kernel=att_kernel grid=(512,1,1) block=(256,1,1) lds=0
; @launch kernel=g2_kernel grid=(256,1,1) block=(256,1,1) lds=65536
.amdgcn_target "amdgcn-amd-amdhsa--gfx950"
'''
    open(path, 'w').write(hdr + ''.join(p[0] for p in parts) + ''.join(p[1] for p in parts))
if __name__ == '__main__':
    build(sys.argv[1] if len(sys.argv) > 1 else f'cdna_kernels/{NAME}.s')
```

```python
from asmlib import *
from layout import *
import struct
def f2u(x): return struct.unpack('<I', struct.pack('<f', x))[0]
def v(i, n=1): return f'v{i}' if n == 1 else f'v[{i}:{i+n-1}]'
def a_(i, n=1): return f'a{i}' if n == 1 else f'a[{i}:{i+n-1}]'
def s(i, n=1): return f's{i}' if n == 1 else f's[{i}:{i+n-1}]'

gW, gMB, gNB, gK, gXo, gWo, gPitch, gT0, gT1, gT2, gM0a, gM0b, gType, gOut = range(60, 74)
gP4, gP8, gP12, gP32 = 76, 77, 78, 79
gL, gXA, gWB, gRa, gSt, gT = 0, 1, 2, 3, 6, 8
gRb = 144
FX, FW = 16, 80
STG = 32768

def g1_setup(A):
    A(f'''
    v_lshlrev_b32 {v(gXA)}, 4, {v(gL)}
    s_lshr_b32 {s(gT1)}, {s(gW)}, 1
    s_and_b32 {s(gT0)}, {s(gW)}, 1
    s_lshl_b32 {s(gT2)}, {s(gT1)}, 12
    v_add_u32 {v(gRa)}, {s(gT2)}, {v(gXA)}
    s_lshl_b32 {s(gM0a)}, {s(gW)}, 11
    s_lshl_b32 {s(gT2)}, {s(gW)}, 15
    s_add_u32 {s(gT2)}, {s(gT2)}, {WS_XN}
    v_add_u32 {v(gXA)}, {s(gT2)}, {v(gXA)}
    s_lshl_b32 {s(gT2)}, {s(gT1)}, 2
    s_add_u32 {s(gT2)}, {s(gT2)}, {s(gT0)}
    s_lshl_b32 {s(gM0b)}, {s(gT2)}, 10
    s_add_u32 {s(gM0b)}, {s(gM0b)}, 16384
    v_lshrrev_b32 {v(gT)}, 4, {v(gL)}
    v_bfe_u32 {v(gT+1)}, {v(gL)}, 2, 2
    v_and_b32 {v(gT+2)}, 1, {v(gT)}
    v_lshl_or_b32 {v(gT+2)}, {v(gT+2)}, 2, {v(gT+1)}
    v_lshl_add_u32 {v(gT+1)}, {v(gT)}, 3, {v(gT+1)}
    v_lshlrev_b32 {v(gT+1)}, 9, {v(gT+1)}
    v_and_b32 {v(gT+3)}, 3, {v(gL)}
    v_lshl_add_u32 {v(gT+1)}, {v(gT+3)}, 3, {v(gT+1)}
    v_lshl_add_u32 {v(gT+1)}, {v(gT+2)}, 5, {v(gT+1)}
    s_lshl_b32 {s(gT2)}, {s(gT0)}, 8
    s_add_u32 {s(gT2)}, {s(gT2)}, 16384
    v_add_u32 {v(gT+1)}, {s(gT2)}, {v(gT+1)}
    ''')
    for ct in range(8): A(f'v_xor_b32 {v(gRb+ct)}, {ct*32}, {v(gT+1)}')
    A(f'v_add_u32 {v(gRa+1)}, 65536, {v(gRa)}')
    for ct in range(8): A(f'v_add_u32 {v(gRb+8+ct)}, 65536, {v(gRb+ct)}')

def g1_tile(A, pfx):
    A(f'''
    s_lshr_b32 {s(gType)}, {s(gNB)}, 4
    s_and_b32 {s(gT0)}, {s(gNB)}, 15
    s_lshl_b32 {s(gWo)}, {s(gT0)}, 9
    s_mov_b32 {s(gPitch)}, 8192
    s_mov_b32 s14, 0x400000
    s_mov_b32 s12, s16
    s_mov_b32 s13, s17
    s_cmp_eq_u32 {s(gType)}, 1
    s_cselect_b32 s12, s18, s12
    s_cselect_b32 s13, s19, s13
    s_cmp_eq_u32 {s(gType)}, 2
    s_cselect_b32 s12, s20, s12
    s_cselect_b32 s13, s21, s13
    s_cmp_eq_u32 {s(gType)}, 3
    s_cselect_b32 s12, s50, s12
    s_cselect_b32 s13, s51, s13
    s_cselect_b32 {s(gPitch)}, 3584, {s(gPitch)}
    s_cselect_b32 s14, {512*3584}, s14
    s_lshl_b32 {s(gXo)}, {s(gMB)}, 17
    s_lshl_b32 {s(gP4)}, {s(gPitch)}, 2
    s_lshl_b32 {s(gP8)}, {s(gPitch)}, 4
    s_add_u32 {s(gP12)}, {s(gP4)}, {s(gP8)}
    s_lshl_b32 {s(gP32)}, {s(gPitch)}, 5
    v_lshrrev_b32 {v(gT)}, 5, {v(gL)}
    s_lshl_b32 {s(gT0)}, {s(gW)}, 1
    v_or_b32 {v(gT+1)}, {s(gT0)}, {v(gT)}
    v_lshlrev_b32 {v(gT+1)}, 1, {v(gT+1)}
    v_and_b32 {v(gT+2)}, 31, {v(gL)}
    v_xor_b32 {v(gT+1)}, {v(gT+1)}, {v(gT+2)}
    v_lshlrev_b32 {v(gT+1)}, 4, {v(gT+1)}
    s_sub_u32 {s(gT0)}, {s(gM0b)}, 16384
    s_lshr_b32 {s(gT0)}, {s(gT0)}, 9
    v_add_u32 {v(gT)}, {s(gT0)}, {v(gT)}
    v_mul_lo_u32 {v(gT)}, {v(gT)}, {s(gPitch)}
    v_add_u32 {v(gWB)}, {v(gT)}, {v(gT+1)}
    ''')
    def dma_list(slot):
        L = []
        for c in range(2):
            L.append(f's_add_u32 m0, {s(gM0a)}, {slot*STG + c*1024}\ns_add_u32 {s(gT0)}, {s(gXo)}, {c*16384}\n'
                     f'buffer_load_dwordx4 {v(gXA)}, s[4:7], {s(gT0)} offen lds')
        for k, (di, po) in enumerate(((0, None), (2, gP4), (8, gP8), (10, gP12))):
            so = f's_mov_b32 {s(gT0)}, {s(gWo)}' if po is None else f's_add_u32 {s(gT0)}, {s(gWo)}, {s(po)}'
            L.append(f's_add_u32 m0, {s(gM0b)}, {slot*STG + di*1024}\n{so}\n'
                     f'buffer_load_dwordx4 {v(gWB)}, s[12:15], {s(gT0)} offen lds')
        L[-1] += f'\ns_add_u32 {s(gXo)}, {s(gXo)}, 1024\ns_add_u32 {s(gWo)}, {s(gWo)}, {s(gP32)}'
        return L
    def read_list(slot, buf):
        hi, off = slot >> 1, (slot & 1) * STG
        L = []
        for t in range(8):
            if t < 4: L.append(f'ds_read_b128 {v(FX + buf*32 + t*4, 4)}, {v(gRa+hi)} offset:{off + t*1024}')
            for tt in range(2):
                L.append(f'ds_read_b64_tr_b16 {v(FW + buf*32 + t*4 + 2*tt, 2)}, {v(gRb + 8*hi + t)} offset:{off + tt*2048}')
        return L
    for sl in range(3):
        for x in dma_list(sl): A(x)
    for i in range(128): A(f'v_accvgpr_write_b32 a{i}, 0')
    A('s_waitcnt vmcnt(12)\ns_barrier')
    for x in read_list(0, 0): A(x)
    def step(k4, vtype, do_read, do_dma, vm):
        buf = k4 & 1
        if do_read: A(f's_waitcnt vmcnt({vm}) lgkmcnt(0)\ns_barrier')
        else: A('s_waitcnt lgkmcnt(0)')
        R = read_list((k4 + 1) & 3, buf ^ 1) if do_read else []
        D = dma_list((k4 + 3) & 3) if do_dma else []
        n = 0
        for ct in range(8):
            for tt in range(4):
                ac = a_((ct * 4 + tt) * 4, 4)
                x, w = v(FX + buf*32 + tt*4, 4), v(FW + buf*32 + ct*4, 4)
                if vtype: A(f'v_mfma_f32_16x16x32_bf16 {ac}, {x}, {w}, {ac}')
                else:     A(f'v_mfma_f32_16x16x32_bf16 {ac}, {w}, {x}, {ac}')
                if n < 20 and R: A(R[n])
                if n % 5 == 2 and D and n // 5 < 6: A(D[n // 5])
                n += 1
    A(f's_cmp_eq_u32 {s(gType)}, 2\ns_cbranch_scc1 L_{pfx}_v')
    for vtype in (0, 1):
        if vtype: A.label(f'L_{pfx}_v')
        A(f's_mov_b32 {s(gK)}, 0')
        A.label(f'L_{pfx}_k{vtype}')
        for k4 in range(4): step(k4, vtype, True, True, 6)
        A(f's_add_u32 {s(gK)}, {s(gK)}, 1\ns_cmp_lt_u32 {s(gK)}, 3\ns_cbranch_scc1 L_{pfx}_k{vtype}')
        step(0, vtype, True, True, 6)
        step(1, vtype, True, False, 6)
        step(2, vtype, True, False, 0)
        step(3, vtype, False, False, 0)
        if vtype == 0: A(f's_branch L_{pfx}_epi')
    E = 16
    A(f'''
    v_and_b32 {v(gT)}, 15, {v(gL)}
    v_lshrrev_b32 {v(gT+1)}, 4, {v(gL)}
    v_lshlrev_b32 {v(gSt)}, 6, {v(gT)}
    v_lshl_add_u32 {v(gSt)}, {v(gT+1)}, 4, {v(gSt)}
    s_lshr_b32 {s(gT0)}, {s(gW)}, 1
    s_lshl_b32 {s(gT1)}, {s(gMB)}, 1
    s_add_u32 {s(gT0)}, {s(gT0)}, {s(gT1)}
    s_lshl_b32 {s(gT0)}, {s(gT0)}, 19
    s_and_b32 {s(gT1)}, {s(gNB)}, 15
    s_lshl_b32 {s(gT1)}, {s(gT1)}, 1
    s_and_b32 {s(gT2)}, {s(gW)}, 1
    s_add_u32 {s(gT1)}, {s(gT1)}, {s(gT2)}
    s_lshl_b32 {s(gT1)}, {s(gT1)}, 13
    s_add_u32 {s(gOut)}, {s(gT0)}, {s(gT1)}
    s_add_u32 {s(gOut)}, {s(gOut)}, {WS_VT}
    ''')
    n = 0
    for sg in range(2):
        for ft in range(8):
            e = E + (n % 4) * 12; n += 1
            for t in range(2):
                for r in range(4): A(f'v_accvgpr_read_b32 {v(e + 4 + t*4 + r)}, a{(ft*4 + 2*sg + t)*4 + r}')
            for d in range(4): A(f'v_cvt_pk_bf16_f32 {v(e+d)}, {v(e+4+2*d)}, {v(e+5+2*d)}')
            A(f's_add_u32 {s(gT0)}, {s(gOut)}, {sg*262144 + (ft>>2)*4096}')
            A(f'buffer_store_dwordx4 {v(e,4)}, {v(gSt)}, s[4:7], {s(gT0)} offen offset:{(ft&3)*1024} sc1')
    A(f's_branch L_{pfx}_done')
    A.label(f'L_{pfx}_epi')
    A(f'''
    v_lshlrev_b32 {v(gSt)}, 4, {v(gL)}
    s_lshr_b32 {s(gT0)}, {s(gW)}, 1
    s_lshl_b32 {s(gT1)}, {s(gMB)}, 1
    s_add_u32 {s(gT0)}, {s(gT0)}, {s(gT1)}
    s_lshl_b32 {s(gT0)}, {s(gT0)}, 6
    s_mul_i32 {s(gT0)}, {s(gT0)}, {s(gPitch)}
    s_and_b32 {s(gT1)}, {s(gNB)}, 15
    s_lshl_b32 {s(gT1)}, {s(gT1)}, 1
    s_and_b32 {s(gT2)}, {s(gW)}, 1
    s_add_u32 {s(gT1)}, {s(gT1)}, {s(gT2)}
    s_lshl_b32 {s(gT1)}, {s(gT1)}, 12
    s_add_u32 {s(gOut)}, {s(gT0)}, {s(gT1)}
    s_mov_b32 {s(gT1)}, {WS_Q}
    s_cmp_eq_u32 {s(gType)}, 1
    s_cselect_b32 {s(gT1)}, {WS_K}, {s(gT1)}
    s_cmp_eq_u32 {s(gType)}, 3
    s_cselect_b32 {s(gT1)}, {WS_H1}, {s(gT1)}
    s_add_u32 {s(gOut)}, {s(gOut)}, {s(gT1)}
    s_cmp_eq_u32 {s(gType)}, 3
    s_cbranch_scc1 L_{pfx}_epf
    ''')
    for silu in (0, 1):
        if silu: A.label(f'L_{pfx}_epf')
        n = 0
        for tt in range(4):
            for ks in range(4):
                e = E + (n % 4) * 20; n += 1
                for b in range(2):
                    for r in range(4): A(f'v_accvgpr_read_b32 {v(e + 4 + 2*r + b)}, a{((2*ks+b)*4 + tt)*4 + r}')
                for d in range(4): A(f'v_cvt_pk_bf16_f32 {v(e+d)}, {v(e+4+2*d)}, {v(e+5+2*d)}')
                if silu:
                    for d in range(4):
                        A(f'v_lshlrev_b32 {v(e+4+2*d)}, 16, {v(e+d)}')
                        A(f'v_and_b32 {v(e+5+2*d)}, 0xffff0000, {v(e+d)}')
                    for i in range(8): A(f'v_mul_f32 {v(e+12+i)}, {f2u(-1.4426950408889634)}, {v(e+4+i)}')
                    for i in range(8): A(f'v_exp_f32 {v(e+12+i)}, {v(e+12+i)}')
                    for i in range(8): A(f'v_add_f32 {v(e+12+i)}, 1.0, {v(e+12+i)}')
                    for i in range(8): A(f'v_rcp_f32 {v(e+12+i)}, {v(e+12+i)}')
                    for i in range(8): A(f'v_mul_f32 {v(e+4+i)}, {v(e+4+i)}, {v(e+12+i)}')
                    for d in range(4): A(f'v_cvt_pk_bf16_f32 {v(e+d)}, {v(e+4+2*d)}, {v(e+5+2*d)}')
                A(f'buffer_store_dwordx4 {v(e,4)}, {v(gSt)}, s[4:7], {s(gOut)} offen offset:{ks*1024} sc1')
            A(f's_add_u32 {s(gOut)}, {s(gOut)}, {s(gP8)}')
        if not silu: A(f's_branch L_{pfx}_done')
    A.label(f'L_{pfx}_done')
```

```python
from asmlib import *
from layout import *
import struct
def f2u(x): return struct.unpack('<I', struct.pack('<f', x))[0]

def row_sum(A, x, t):
    for d in ('row_ror:4', 'row_ror:8'):
        A(f'v_add_f32_dpp v{x}, v{x}, v{x} {d} row_mask:0xf bank_mask:0xf')
    for p in ('16', '32'):
        A(f'v_mov_b32 v{t}, v{x}')
        A(f'v_permlane{p}_swap_b32 v{x}, v{t}')
        A(f'v_add_f32 v{x}, v{x}, v{t}')

def rnd_bf16(A, x):
    A(f'v_cvt_pk_bf16_f32 v{x}, v{x}, v{x}')
    A(f'v_and_b32 v{x}, 0xffff0000, v{x}')

def gen_pre(name):
    A = Asm()
    X, U, D = 8, 24, 56
    A(f'''
    s_cmp_ge_u32 s2, 128
    s_cbranch_scc1 L_pre_exit
    s_load_dwordx4 s[12:15], s[0:1], 0
    s_load_dwordx2 s[16:17], s[0:1], 96
    v_lshrrev_b32 v1, 6, v0
    v_and_b32 v2, 3, v0
    v_lshl_add_u32 v1, v1, 2, v2
    v_bfe_u32 v2, v0, 2, 4
    v_lshlrev_b32 v3, 10, v1
    v_lshl_add_u32 v3, v2, 4, v3
    v_lshlrev_b32 v4, 8, v2
    v_lshl_add_u32 v4, v1, 4, v4
    s_lshl_b32 s3, s2, 14
    s_waitcnt lgkmcnt(0)
    s_mov_b32 s4, s16
    s_mov_b32 s5, s17
    s_mov_b32 s6, {WS_SIZE}
    s_mov_b32 s7, 0x20000
    s_mov_b32 s8, s12
    s_mov_b32 s9, s13
    s_mov_b32 s10, 0x200000
    s_mov_b32 s11, 0x20000
    s_mov_b32 s20, s14
    s_mov_b32 s21, s15
    s_mov_b32 s22, 8192
    s_mov_b32 s23, 0x20000
    ''')
    for i in range(4): A(f'buffer_load_dwordx4 v[{X+4*i}:{X+4*i+3}], v3, s[8:11], s3 offen offset:{i*256}')
    A(f'''
    v_lshlrev_b32 v5, 4, v0
    v_mov_b32 v{D}, -1
    v_mov_b32 v{D+1}, -1
    v_mov_b32 v{D+2}, -1
    v_mov_b32 v{D+3}, -1
    s_lshl_b32 s18, s2, 12
    s_add_u32 s19, s18, {WS_PART}
    buffer_store_dwordx4 v[{D}:{D+3}], v5, s[4:7], s19 offen
    s_cmp_ge_u32 s2, 3
    s_cbranch_scc1 L_pre_nf
    v_mov_b32 v{D+8}, 0
    v_mov_b32 v{D+9}, 0
    v_mov_b32 v{D+10}, 0
    v_mov_b32 v{D+11}, 0
    s_add_u32 s19, s18, {WS_FLAG}
    buffer_store_dwordx4 v[{D+8}:{D+11}], v5, s[4:7], s19 offen
L_pre_nf:
    v_lshlrev_b32 v5, 2, v0
    s_cmp_ge_u32 s2, 16
    s_cbranch_scc1 L_pre_ln
    s_lshl_b32 s18, s2, 10
    s_add_u32 s19, s18, {WS_MF}
    v_mov_b32 v6, -1
    s_cmp_ge_u32 s2, 8
    s_cbranch_scc1 L_pre_mf_store
    v_and_b32 v{D+4}, 1, v0
    v_lshlrev_b32 v{D+4}, 5, v{D+4}
    v_bfe_u32 v{D+5}, v0, 1, 1
    v_add_u32 v{D+4}, v{D+4}, v{D+5}
    v_lshrrev_b32 v{D+5}, 6, v0
    v_lshl_add_u32 v{D+4}, v{D+5}, 2, v{D+4}
    v_bfe_u32 v{D+5}, v0, 2, 1
    v_lshl_add_u32 v{D+4}, v{D+5}, 1, v{D+4}
    v_bfe_u32 v{D+5}, v0, 3, 3
    v_lshl_add_u32 v{D+4}, v{D+5}, 9, v{D+4}
    v_lshlrev_b32 v{D+4}, 1, v{D+4}
    s_lshl_b32 s24, s2, 7
    buffer_load_ushort v{D+6}, v{D+4}, s[20:23], s24 offen
    buffer_load_ushort v{D+7}, v{D+4}, s[20:23], s24 offen offset:32
    s_waitcnt vmcnt(0)
    v_lshl_or_b32 v6, v{D+7}, 16, v{D+6}
    v_min_u32 v6, 0xfffeffff, v6
L_pre_mf_store:
    buffer_store_dword v6, v5, s[4:7], s19 offen
L_pre_ln:
    s_waitcnt vmcnt(0)
    ''')
    def unpack():
        for i in range(16):
            A(f'v_lshlrev_b32 v{U+2*i}, 16, v{X+i}')
            A(f'v_and_b32 v{U+2*i+1}, 0xffff0000, v{X+i}')
    def pack():
        for i in range(16): A(f'v_cvt_pk_bf16_f32 v{X+i}, v{U+2*i}, v{U+2*i+1}')
    unpack()
    for i in range(16): A(f'v_add_f32 v{D+i}, v{U+i}, v{U+16+i}')
    for st in (8, 4, 2, 1):
        for i in range(st): A(f'v_add_f32 v{D+i}, v{D+i}, v{D+st+i}')
    A(f'v_mov_b32 v5, v{D}')
    row_sum(A, 5, 6)
    A(f'v_mul_f32 v5, {f2u(1/512)}, v5')
    for i in range(32): A(f'v_sub_f32 v{D+i}, v{U+i}, v5')
    A(f'v_mul_f32 v7, v{D}, v{D}\nv_mul_f32 v2, v{D+1}, v{D+1}')
    for i in range(2, 32): A(f'v_fmac_f32 v{(7, 2)[i & 1]}, v{D+i}, v{D+i}')
    A('v_add_f32 v7, v7, v2')
    row_sum(A, 7, 6)
    A(f'v_mul_f32 v7, {f2u(1/512)}, v7')
    rnd_bf16(A, 5); rnd_bf16(A, 7)
    A(f'v_add_f32 v7, {f2u(1e-5)}, v7')
    rnd_bf16(A, 7)
    A('v_sqrt_f32 v7, v7')
    rnd_bf16(A, 7)
    A('v_rcp_f32 v7, v7')
    for i in range(32): A(f'v_sub_f32 v{U+i}, v{U+i}, v5')
    pack(); unpack()
    for i in range(32): A(f'v_mul_f32 v{U+i}, v{U+i}, v7')
    pack()
    A(f's_add_u32 s3, s3, {WS_XN}')
    for i in range(4):
        A(f'buffer_store_dwordx4 v[{X+4*i}:{X+4*i+3}], v4, s[4:7], s3 offen')
        if i < 3: A('s_add_u32 s3, s3, 4096')
    A('L_pre_exit:\ns_endpgm')
    return kernel_head(name) + A.finalize(), kernel_desc(name, 88, 32, 88)
```

```python
from asmlib import *
from layout import *
import worker
import struct

def f2u(x): return struct.unpack('<I', struct.pack('<f', x))[0]

LDS_M, LDS_KX, LDS_XQ, LDS_XO, LDS_MISC = 0, 8192, 24576, 29184, 31744
REG_A, REG_B = 32768, 49152
XQP, XOP = 272, 272
SPIN_LIMIT = 1 << 20

(vIdx, vMw, vWkL, vXQw, vXQr, vXKr, vKXr, vKXg, vVXg, vXOw, vXOr,
 vPs, vPl, vMs, vKMs, vVMs) = range(16)
SEL = 16
ONES = 20
vT0, vT1, vT2, vT3 = 24, 25, 26, 27
VX, MF, ACC, RING, SP = 28, 36, 68, 92, 124
Q0, K0, Q1, K1, V0, V1 = 68, 72, 76, 80, 84, 88
WK0, WO0 = 128, 192
sH, sWV, sStep, sTag, sCur0, sCur1, sNext, sKXo, sVXo, sKMo, sT0, sT1, sT2, sM0w = range(24, 38)
sC, sSpin, sXcc, sRank, sKXm = 44, 46, 47, 48, 49
sPc0, sPc1, sPp, sSent = 40, 41, 42, 43
sReady, sFlag, sProg = 38, 39, 27

def v(i, n=1): return f'v{i}' if n == 1 else f'v[{i}:{i+n-1}]'
def a_(i, n=1): return f'a{i}' if n == 1 else f'a[{i}:{i+n-1}]'
def s(i, n=1): return f's{i}' if n == 1 else f's[{i}:{i+n-1}]'

class Cnt:
    def __init__(self, A, name, mx): self.A, self.name, self.mx, self.n = A, name, mx, 0
    def issue(self, text):
        self.A(text); self.n += 1; return self.n
    def wait(self, tok):
        k = min(self.n - tok, self.mx)
        self.A(f's_waitcnt {self.name}({k})')
    def wait_all(self): self.A(f's_waitcnt {self.name}(0)')

def smf(A, d, a, b): A(f'v_smfmac_f32_16x16x64_bf16 {v(d,4)}, {v(a,4)}, {b}, {v(vIdx)}')

def ensure(A, tag, inline=False):
    A(f'''
    s_mov_b32 {s(sT2)}, 0
L_ens_{tag}:
    s_cmp_lt_u32 {s(sT1)}, {s(sReady)}
    s_cbranch_scc1 L_ensd_{tag}
    v_mbcnt_lo_u32_b32 {v(vT0)}, -1, 0
    v_mbcnt_hi_u32_b32 {v(vT0)}, -1, {v(vT0)}
    v_and_b32 {v(vT0)}, 15, {v(vT0)}
    v_lshlrev_b32 {v(vT0)}, 2, {v(vT0)}
    buffer_load_dword {v(vT1)}, {v(vT0)}, s[4:7], {s(sFlag)} offen sc0 sc1
    s_add_u32 {s(sT2)}, {s(sT2)}, 1
    s_cmp_lt_u32 {s(sT2)}, {SPIN_LIMIT}
    s_cbranch_scc0 L_rec_exit
    s_waitcnt vmcnt(0)
    v_and_b32 {v(vT1)}, 255, {v(vT1)}
    v_cmp_ne_u32 vcc, 2, {v(vT1)}
    s_or_b32 {s(sT0)}, vcc_lo, 0x10000
    s_ff1_i32_b32 {s(sReady)}, {s(sT0)}
    s_branch L_ens_{tag}
L_ensd_{tag}:
    ''')

def gen_rec(name, nwg=256, dbg=False, nsteps=NSEG, d1=0, d2=0, ps=20, fused=False):
    A = Asm()
    vL = 99
    A(f'''
    s_cmp_ge_u32 s2, {nwg}
    s_cbranch_scc1 L_rec_exit
    {'s_memrealtime s[96:97]' if dbg else ''}
    s_load_dwordx8 s[16:23], s[0:1], 16
    s_load_dwordx4 s[36:39], s[0:1], 88
    s_load_dwordx2 s[50:51], s[0:1], 64
    v_lshrrev_b32 v1, 6, v0
    v_and_b32 {v(vL)}, 63, v0
    s_nop 0
    v_readfirstlane_b32 {s(sWV)}, v1
    s_waitcnt lgkmcnt(0)
    s_mov_b32 s4, s38
    s_mov_b32 s5, s39
    s_mov_b32 s6, {WS_SIZE}
    s_mov_b32 s7, 0x20000
    s_mov_b32 s8, s36
    s_mov_b32 s9, s37
    s_mov_b32 s10, 256
    s_mov_b32 s11, 0x20000
    s_mov_b32 s12, s16
    s_mov_b32 s13, s17
    s_mov_b32 s14, 0x400000
    s_mov_b32 s15, 0x20000
    s_cmp_lg_u32 {s(sWV)}, 0
    s_cbranch_scc1 L_rec_elected
    s_getreg_b32 {s(sXcc)}, hwreg(HW_REG_XCC_ID)
    s_and_b32 {s(sXcc)}, {s(sXcc)}, 15
    s_lshl_b32 {s(sT0)}, {s(sXcc)}, 2
    s_add_u32 {s(sXcc)}, {s(sXcc)}, 1
    v_mov_b32 v1, 1
    v_mov_b32 v2, {s(sT0)}
    v_mov_b32 v3, 64
    v_mov_b32 v6, 68
    s_mov_b64 exec, 1
    buffer_atomic_add v1, v2, s[8:11], 0 offen sc0
    s_waitcnt vmcnt(0)
    v_readfirstlane_b32 {s(sRank)}, v1
    s_mov_b32 {s(sSpin)}, 0
    s_cmp_lg_u32 {s(sRank)}, 31
    s_cbranch_scc1 L_rec_poll_w
    v_mov_b32 v4, {s(sXcc)}
    v_mov_b32 v5, 0
    buffer_atomic_cmpswap v[4:5], v3, s[8:11], 0 offen
L_rec_poll_w:
    buffer_load_dword v1, v3, s[8:11], 0 offen sc0 sc1
    s_waitcnt vmcnt(0)
    v_readfirstlane_b32 {s(sT0)}, v1
    s_cmp_lg_u32 {s(sT0)}, 0
    s_cbranch_scc1 L_rec_got_w
    s_add_u32 {s(sSpin)}, {s(sSpin)}, 1
    s_cmp_lt_u32 {s(sSpin)}, 20000
    s_cbranch_scc1 L_rec_poll_w
    v_mov_b32 v4, 99
    v_mov_b32 v5, 0
    buffer_atomic_cmpswap v[4:5], v3, s[8:11], 0 offen
    s_waitcnt vmcnt(0)
    s_branch L_rec_poll_w
L_rec_got_w:
    s_mov_b32 {s(sT1)}, -1
    s_cmp_eq_u32 {s(sT0)}, 99
    s_cbranch_scc1 L_rec_fallback
    s_cmp_lg_u32 {s(sT0)}, {s(sXcc)}
    s_cbranch_scc1 L_rec_role
    s_cmp_lt_u32 {s(sRank)}, 32
    s_cselect_b32 {s(sT1)}, {s(sRank)}, -1
    s_branch L_rec_role
L_rec_fallback:
    v_mov_b32 v1, 1
    buffer_atomic_add v1, v6, s[8:11], 0 offen sc0
    s_waitcnt vmcnt(0)
    v_readfirstlane_b32 {s(sT0)}, v1
    s_or_b32 {s(sT2)}, {s(sT0)}, 0x100
    s_cmp_lt_u32 {s(sT0)}, 32
    s_cselect_b32 {s(sT1)}, {s(sT2)}, -1
L_rec_role:
    v_mov_b32 v1, {s(sT1)}
    v_mov_b32 v2, {LDS_MISC}
    ds_write_b32 v2, v1
    s_mov_b64 exec, -1
    s_waitcnt lgkmcnt(0)
L_rec_elected:
    s_barrier
    v_mov_b32 v2, {LDS_MISC}
    ds_read_b32 v1, v2
    s_waitcnt lgkmcnt(0)
    v_readfirstlane_b32 {s(sRank)}, v1
    s_cmp_lt_i32 {s(sRank)}, 0
    s_cbranch_scc1 {'L_worker' if fused else 'L_rec_exit'}
    s_and_b32 {s(sH)}, {s(sRank)}, 31
    ''')
    if dbg: A('s_memrealtime s[74:75]\ns_waitcnt lgkmcnt(0)\ns_sub_u32 s98, s74, s96')
    tG, tR, tC, tF, tRow, tD0, tD1, tO0, tO1, tTr0, tTr1, tTrO, tA, tN, t7, tX, tY = range(100, 117)
    A(f'''
    v_lshrrev_b32 {v(tG)}, 4, {v(vL)}
    v_bfe_u32 {v(tR)}, {v(vL)}, 2, 2
    v_and_b32 {v(tC)}, 3, {v(vL)}
    v_and_b32 {v(tF)}, 1, {v(tG)}
    v_lshl_or_b32 {v(tF)}, {v(tF)}, 2, {v(tR)}
    v_lshl_add_u32 {v(tRow)}, {v(tG)}, 4, {v(tR)}
    v_lshlrev_b32 {v(tRow)}, 8, {v(tRow)}
    v_lshl_add_u32 {v(tRow)}, {v(tC)}, 3, {v(tRow)}
    s_lshl_b32 {s(sT0)}, {s(sWV)}, 1
    v_xor_b32 {v(tTr0)}, {s(sT0)}, {v(tF)}
    v_lshl_add_u32 {v(tTr0)}, {v(tTr0)}, 5, {v(tRow)}
    s_or_b32 {s(sT0)}, {s(sT0)}, 1
    v_xor_b32 {v(tTr1)}, {s(sT0)}, {v(tF)}
    v_lshl_add_u32 {v(tTr1)}, {v(tTr1)}, 5, {v(tRow)}
    s_lshl_b32 {s(sM0w)}, {s(sWV)}, 15
    v_add_u32 {v(tTrO)}, {s(sM0w)}, {v(tRow)}
    v_and_b32 {v(tN)}, 15, {v(vL)}
    v_lshlrev_b32 {v(vT1)}, 1, {v(tG)}
    v_xor_b32 {v(vT0)}, {v(tN)}, {v(vT1)}
    v_lshlrev_b32 {v(vT0)}, 4, {v(vT0)}
    v_xor_b32 {v(vT1)}, 0x80, {v(vT0)}
    v_lshrrev_b32 {v(vT2)}, 1, {v(tG)}
    v_and_b32 {v(vT3)}, 1, {v(tG)}
    ; D-type: (2*j1 + 16*j0)*8192 + h*256 + 64*w*8192
    v_lshlrev_b32 {v(tX)}, 14, {v(vT2)}
    v_lshl_add_u32 {v(tX)}, {v(vT3)}, 17, {v(tX)}
    s_lshl_b32 {s(sT0)}, {s(sWV)}, 19
    s_lshl_b32 {s(sT1)}, {s(sH)}, 8
    s_add_u32 {s(sT0)}, {s(sT0)}, {s(sT1)}
    v_add_u32 {v(tX)}, {s(sT0)}, {v(tX)}
    v_add_u32 {v(tD0)}, {v(tX)}, {v(vT0)}
    v_add_u32 {v(tD1)}, {v(tX)}, {v(vT1)}
    ; O-type: (32*j1 + j0)*1024 + h*131072 + w*256
    v_lshlrev_b32 {v(tX)}, 15, {v(vT2)}
    v_lshl_add_u32 {v(tX)}, {v(vT3)}, 10, {v(tX)}
    s_lshl_b32 {s(sT0)}, {s(sH)}, 17
    s_lshl_b32 {s(sT1)}, {s(sWV)}, 8
    s_add_u32 {s(sT0)}, {s(sT0)}, {s(sT1)}
    v_add_u32 {v(tX)}, {s(sT0)}, {v(tX)}
    v_add_u32 {v(tO0)}, {v(tX)}, {v(vT0)}
    v_add_u32 {v(tO1)}, {v(tX)}, {v(vT1)}
    ''')
    units = [('q', 0), ('q', 1), ('v', 0), ('v', 1), ('k', 0), ('o', 0), ('k', 1), ('o', 1)]
    PT = {'q': 16, 'k': 18, 'v': 20, 'o': 22}
    def dma_unit(u):
        mat, hi = units[u]; reg = (REG_A, REG_B)[u & 1]
        A(f's_mov_b32 s12, s{PT[mat]}\ns_mov_b32 s13, s{PT[mat]+1}')
        for ii in range(16):
            gb, j = ii >> 2, (ii & 3) * 4
            if mat == 'o': so = e_of(hi, gb, j) * 1024; vo = (tO0, tO1)[gb & 1]
            else: so = (d_of(0, gb, j) + 256 * hi) * 8192; vo = (tD0, tD1)[gb & 1]
            A(f's_add_u32 m0, {s(sM0w)}, {reg + ii * 1024}')
            A(f's_mov_b32 {s(sT0)}, {so}')
            A(f'buffer_load_dwordx4 {v(vo)}, s[12:15], {s(sT0)} offen lds')
    TMPF = 28
    def dest(u, f):
        mat, hi = units[u]
        if u >= 6: return ('v', TMPF + f * 8)
        if mat == 'q': return ('a', (hi * 8 + f) * 8)
        if mat == 'v': return ('a', 128 + (hi * 8 + f) * 8)
        if mat == 'k': return ('v', WK0 + f * 8)
        return ('v', WO0 + f * 8)
    def read_unit(u):
        mat, hi = units[u]; reg = (REG_A, REG_B)[u & 1]
        for f in range(8):
            if mat == 'o':
                A(f'v_xor_b32 {v(tA)}, {f}, {v(tF)}')
                A(f'v_lshl_add_u32 {v(tA)}, {v(tA)}, 5, {v(tTrO)}')
                A(f'v_add_u32 {v(tA)}, {reg}, {v(tA)}')
            else:
                lam, tt = f >> 1, f & 1
                A(f's_xor_b32 {s(sT0)}, {s(sWV)}, {lam}')
                A(f's_lshl_b32 {s(sT0)}, {s(sT0)}, 15')
                A(f's_add_u32 {s(sT0)}, {s(sT0)}, {reg}')
                A(f'v_add_u32 {v(tA)}, {s(sT0)}, {v((tTr0, tTr1)[tt])}')
            fl, d = dest(u, f)
            for t in range(4):
                A(f'ds_read_b64_tr_b16 {fl}[{d+2*t}:{d+2*t+1}], {v(tA)} offset:{t*1024}')
    dma_unit(0); dma_unit(1)
    A(f'''
    v_lshlrev_b32 {v(vT0)}, 4, {v(vL)}
    v_and_b32 {v(vT1)}, 1, {v(vL)}
    v_mov_b32 {v(vIdx)}, 0xffff4444
    v_mov_b32 {v(vT2)}, 0xffffeeee
    v_cmp_ne_u32 vcc, 0, {v(vT1)}
    v_cndmask_b32 {v(vIdx)}, {v(vIdx)}, {v(vT2)}, vcc
    s_lshl_b32 {s(sT0)}, {s(sWV)}, 10
    v_add_u32 {v(vMw)}, {s(sT0)}, {v(vT0)}
    s_add_u32 {s(sT1)}, {s(sM0w)}, {REG_A}
    v_add_u32 {v(vWkL)}, {s(sT1)}, {v(vT0)}
    v_add_u32 {v(vKXr)}, {LDS_KX}, {v(vT0)}
    v_and_b32 {v(t7)}, 7, {v(vL)}
    s_lshl_b32 {s(sT1)}, {s(sWV)}, 6
    v_mul_u32_u24 {v(vXQw)}, {4*XQP}, {v(tG)}
    v_lshl_add_u32 {v(vXQw)}, {v(tN)}, 2, {v(vXQw)}
    s_add_u32 {s(sT2)}, {s(sT1)}, {LDS_XQ}
    v_add_u32 {v(vXQw)}, {s(sT2)}, {v(vXQw)}
    v_mul_u32_u24 {v(vXQr)}, {2*XQP}, {v(t7)}
    v_lshl_add_u32 {v(vXQr)}, {v(tG)}, 4, {v(vXQr)}
    v_add_u32 {v(vXQr)}, {LDS_XQ}, {v(vXQr)}
    v_lshrrev_b32 {v(tX)}, 2, {v(tN)}
    v_lshl_add_u32 {v(tX)}, {v(tX)}, 1, {v(vT1)}
    v_mul_u32_u24 {v(vXKr)}, {2*XQP}, {v(tX)}
    v_lshl_add_u32 {v(vXKr)}, {v(tG)}, 4, {v(vXKr)}
    v_add_u32 {v(vXKr)}, {LDS_XQ + XQP}, {v(vXKr)}
    v_mul_u32_u24 {v(vXOw)}, {XOP}, {v(t7)}
    v_lshl_add_u32 {v(vXOw)}, {v(tG)}, 4, {v(vXOw)}
    s_add_u32 {s(sT2)}, {s(sT1)}, {LDS_XO}
    v_add_u32 {v(vXOw)}, {s(sT2)}, {v(vXOw)}
    v_lshrrev_b32 {v(tX)}, 1, {v(tN)}
    v_mul_u32_u24 {v(vXOr)}, {XOP}, {v(tX)}
    v_lshl_add_u32 {v(vXOr)}, {v(tG)}, 4, {v(vXOr)}
    v_lshl_add_u32 {v(vXOr)}, {v(vT1)}, 6, {v(vXOr)}
    v_add_u32 {v(vXOr)}, {LDS_XO}, {v(vXOr)}
    s_lshl_b32 {s(sT2)}, {s(sH)}, 12
    s_add_u32 {s(sT2)}, {s(sT2)}, {WS_K}
    v_add_u32 {v(vKXg)}, {s(sT2)}, {v(vMw)}
    v_lshlrev_b32 {v(vVXg)}, 6, {v(tN)}
    v_lshl_add_u32 {v(vVXg)}, {v(tG)}, 4, {v(vVXg)}
    s_lshl_b32 {s(sT2)}, {s(sH)}, 13
    s_lshl_b32 {s(sT0)}, {s(sWV)}, 11
    s_add_u32 {s(sT2)}, {s(sT2)}, {s(sT0)}
    s_add_u32 {s(sT2)}, {s(sT2)}, {WS_VT}
    v_add_u32 {v(vVXg)}, {s(sT2)}, {v(vVXg)}
    v_lshrrev_b32 {v(vPs)}, 2, {v(tN)}
    v_lshlrev_b32 {v(vPs)}, 13, {v(vPs)}
    v_lshl_add_u32 {v(vPs)}, {v(tG)}, 6, {v(vPs)}
    v_lshl_add_u32 {v(vPs)}, {v(tC)}, 4, {v(vPs)}
    s_lshl_b32 {s(sT2)}, {s(sWV)}, 16
    s_lshl_b32 {s(sT0)}, {s(sH)}, 8
    s_add_u32 {s(sT2)}, {s(sT2)}, {s(sT0)}
    v_add_u32 {v(vPs)}, {s(sT2)}, {v(vPs)}
    v_lshlrev_b32 {v(vPl)}, 11, {v(tR)}
    v_lshl_add_u32 {v(vPl)}, {v(tG)}, 9, {v(vPl)}
    v_lshl_add_u32 {v(vPl)}, {v(tC)}, 4, {v(vPl)}
    s_lshl_b32 {s(sT2)}, {s(sH)}, 13
    s_add_u32 {s(sT2)}, {s(sT2)}, {s(sT1)}
    v_add_u32 {v(vPl)}, {s(sT2)}, {v(vPl)}
    v_bfe_u32 {v(vMs)}, {v(vL)}, 2, 1
    v_lshlrev_b32 {v(vMs)}, 5, {v(vMs)}
    v_lshl_add_u32 {v(vMs)}, {v(tG)}, 3, {v(vMs)}
    v_bfe_u32 {v(tX)}, {v(vL)}, 1, 1
    v_lshl_add_u32 {v(vMs)}, {v(tX)}, 2, {v(vMs)}
    s_lshl_b32 {s(sT2)}, {s(sH)}, 8
    s_add_u32 {s(sT2)}, {s(sT2)}, {s(sT1)}
    v_add_u32 {v(vMs)}, {s(sT2)}, {v(vMs)}
    v_and_b32 {v(tX)}, 9, {v(vL)}
    v_cmp_ne_u32 vcc, 0, {v(tX)}
    v_mov_b32 {v(tX)}, 0x7ffffff0
    v_cndmask_b32 {v(vMs)}, {v(vMs)}, {v(tX)}, vcc
    ; SEL[d] = ((l&7)>>1 == d) ? ((l&1) ? 0x3f800000 : 0x00003f80) : 0
    v_lshlrev_b32 {v(tX)}, 4, {v(vT1)}
    v_mov_b32 {v(tY)}, 0x3f80
    v_lshlrev_b32 {v(tY)}, {v(tX)}, {v(tY)}
    v_lshrrev_b32 {v(tX)}, 1, {v(t7)}
    v_cmp_eq_u32 vcc, 0, {v(tX)}
    v_cndmask_b32 {v(SEL)}, 0, {v(tY)}, vcc
    v_cmp_eq_u32 vcc, 1, {v(tX)}
    v_cndmask_b32 {v(SEL+1)}, 0, {v(tY)}, vcc
    v_cmp_eq_u32 vcc, 2, {v(tX)}
    v_cndmask_b32 {v(SEL+2)}, 0, {v(tY)}, vcc
    v_cmp_eq_u32 vcc, 3, {v(tX)}
    v_cndmask_b32 {v(SEL+3)}, 0, {v(tY)}, vcc
    v_lshlrev_b32 {v(vKMs)}, 9, {v(tG)}
    v_lshl_add_u32 {v(vKMs)}, {v(tN)}, 2, {v(vKMs)}
    s_lshl_b32 {s(sT2)}, {s(sH)}, 11
    s_add_u32 {s(sT2)}, {s(sT2)}, {s(sT1)}
    s_add_u32 {s(sT2)}, {s(sT2)}, {WS_KM}
    v_add_u32 {v(vKMs)}, {s(sT2)}, {v(vKMs)}
    v_lshlrev_b32 {v(vVMs)}, 4, {v(tN)}
    v_lshl_add_u32 {v(vVMs)}, {v(tG)}, 2, {v(vVMs)}
    s_lshl_b32 {s(sT2)}, {s(sH)}, 11
    s_lshl_b32 {s(sT0)}, {s(sWV)}, 9
    s_add_u32 {s(sT2)}, {s(sT2)}, {s(sT0)}
    s_add_u32 {s(sT2)}, {s(sT2)}, {WS_VM}
    v_add_u32 {v(vVMs)}, {s(sT2)}, {v(vVMs)}
    s_mov_b32 {s(sC)}, {f2u(SM_C)}
    s_mov_b32 {s(sSent)}, 0xfffeffff
    s_mov_b32 {s(sC+1)}, {f2u(SM_C)}
    v_mov_b32 {v(ONES)}, 0x3f803f80
    v_mov_b32 {v(ONES+1)}, 0x3f803f80
    v_mov_b32 {v(ONES+2)}, 0x3f803f80
    v_mov_b32 {v(ONES+3)}, 0x3f803f80
    v_mov_b32 {v(SP+1)}, 0
    v_mov_b32 {v(SP+3)}, 0
    ''')
    for u in range(8):
        A(f's_waitcnt vmcnt({16 if u < 7 else 0})')
        A('s_barrier')
        read_unit(u)
        A('s_waitcnt lgkmcnt(0)')
        A('s_barrier')
        if u + 2 < 8: dma_unit(u + 2)
        if u >= 6:
            for f in range(8):
                for hf in range(2):
                    A(f'ds_write_b128 {v(vWkL)}, {v(TMPF + f*8 + hf*4, 4)} offset:{(u-6)*16384 + f*2048 + hf*1024}')
            A('s_waitcnt lgkmcnt(0)')
    if dbg: A('s_memrealtime s[74:75]\ns_waitcnt lgkmcnt(0)\ns_sub_u32 s99, s74, s96')
    A(f'''
    s_mov_b32 {s(sStep)}, 0
    s_mov_b32 {s(sPc0)}, {WS_PART}
    s_mov_b32 {s(sPc1)}, {WS_PART + 32768}
    s_mov_b32 {s(sPp)}, {WS_PART + 0x40000}
    s_mov_b32 {s(sCur0)}, {WS_MF}
    s_mov_b32 {s(sCur1)}, {WS_MF + 4096}
    s_mov_b32 {s(sNext)}, {WS_MF + 8192}
    s_mov_b32 {s(sKXo)}, 0
    s_mov_b32 {s(sVXo)}, 0
    s_mov_b32 {s(sKMo)}, 0
    s_lshl_b32 {s(sKXm)}, {s(sWV)}, 10
    s_add_u32 {s(sKXm)}, {s(sKXm)}, {LDS_KX}
    s_mov_b32 {s(sReady)}, {0 if fused else 16}
    s_lshr_b32 {s(sFlag)}, {s(sH)}, 1
    s_lshl_b32 {s(sFlag)}, {s(sFlag)}, 6
    s_add_u32 {s(sFlag)}, {s(sFlag)}, {WS_FLAG}
    s_lshl_b32 {s(sProg)}, {s(sH)}, 7
    s_add_u32 {s(sProg)}, {s(sProg)}, {worker.F_PROG}
    s_cmp_eq_u32 {s(sWV)}, 0
    s_cselect_b32 {s(sProg)}, {s(sProg)}, 0x7ffffff0
    s_mov_b32 {s(sT1)}, 0
    ''')
    ensure(A, 'p', inline=True)
    A(f'''
    s_mov_b32 m0, {s(sKXm)}
    s_add_u32 {s(sT0)}, {s(sKXo)}, {16*8192}
    buffer_load_dwordx4 {v(vKXg)}, s[4:7], {s(sKXo)} offen sc1 lds
    s_add_u32 m0, {s(sKXm)}, 4096
    s_nop 0
    buffer_load_dwordx4 {v(vKXg)}, s[4:7], {s(sT0)} offen sc1 lds
    s_add_u32 {s(sKXo)}, {s(sKXo)}, {32*8192}
    s_xor_b32 {s(sKXm)}, {s(sKXm)}, {LDS_KX ^ (LDS_KX + 8192)}
    ''')
    if dbg:
        for i in range(76, 90): A(f's_mov_b32 s{i}, 0')
        A('s_memrealtime s[92:93]\ns_memtime s[94:95]\ns_waitcnt lgkmcnt(0)\ns_mov_b32 s90, s92\ns_mov_b32 s91, s94\ns_sub_u32 s97, s92, s96')
    A(f'''
    s_bitcmp1_b32 {s(sRank)}, 8
    s_cbranch_scc1 L_rec_slow_entry
    ''')
    gen_loop(A, 'f', '', dbg, nsteps, d1, d2, ps)
    A.label('L_rec_slow_entry')
    gen_loop(A, 's', ' sc1', dbg, nsteps, d1, d2, ps)
    A.label('L_rec_fin')
    A(f'v_mov_b32 {v(vT0)}, {nsteps}\ns_waitcnt vmcnt(0)\ns_barrier\nbuffer_store_dword {v(vT0)}, off, s[4:7], {s(sProg)} sc1')
    if dbg:
        A(f'''
        s_memrealtime s[92:93]
        s_memtime s[94:95]
        s_waitcnt lgkmcnt(0)
        s_sub_u32 s90, s92, s90
        s_sub_u32 s91, s94, s91
        s_lshl_b32 {s(sT0)}, {s(sH)}, 2
        s_add_u32 {s(sT0)}, {s(sT0)}, {s(sWV)}
        s_lshl_b32 {s(sT0)}, {s(sT0)}, 6
        s_add_u32 {s(sT0)}, {s(sT0)}, {WS_DBG}
        v_mov_b32 v30, 0
        ''')
        A('s_lshl_b32 s98, s98, 20\ns_lshl_b32 s99, s99, 10\ns_or_b32 s87, s98, s99\ns_lshr_b32 s97, s97, 2\ns_or_b32 s87, s87, s97')
        for i in range(16):
            A(f'v_mov_b32 v31, s{76+i}\nbuffer_store_dword v31, v30, s[4:7], {s(sT0)} offen offset:{4*i}')
    A.label('L_rec_exit')
    A('s_endpgm')
    if fused: worker.gen_worker(A, sWV)
    return kernel_head(name) + A.finalize(), kernel_desc(name, 512, 102, 256)

def gen_loop(A, sfx, stf, dbg, nsteps, d1, d2, ps):
    L = Cnt(A, 'lgkmcnt', 15); V = Cnt(A, 'vmcnt', 63)
    def stamp(i):
        if dbg: A(f's_memtime s[{52+2*i}:{53+2*i}]')
    def delay(n):
        while n > 0:
            k = min(n, 16); A(f's_nop {k-1}'); n -= k
    def zero(base, n):
        for i in range(0, n, 2): A(f'v_mov_b64 {v(base+i,2)}, 0')
    def ring_prefetch():
        for f in range(4):
            for hf in range(2):
                L.issue(f'ds_read_b128 {v(RING + f*8 + hf*4, 4)}, {v(vWkL)} offset:{f*2048 + hf*1024}')
    def neg1():
        for i in range(4): A(f'v_mov_b32 {v(VX+i)}, -1')
    def resets():
        A(f'buffer_store_dwordx4 {v(VX,4)}, {v(vPl)}, s[4:7], {s(sPp)} offen{stf}')
        A(f'buffer_store_dwordx4 {v(VX,4)}, {v(vPl)}, s[4:7], {s(sPp)} offen offset:256{stf}')
        A(f'buffer_store_dword {v(VX)}, {v(vMs)}, s[4:7], {s(sNext)} offen{stf}')
    def gather_issue():
        V.issue(f'buffer_load_dwordx4 {v(MF,4)}, {v(vMw)}, s[4:7], {s(sCur0)} offen sc1')
        V.issue(f'buffer_load_dwordx4 {v(MF+4,4)}, {v(vMw)}, s[4:7], {s(sCur1)} offen sc1')
    def retry_loop(tag, issue, base, t0, t1, back):
        A.label(f'L_{tag}f_{sfx}')
        A('s_mov_b64 exec, vcc')
        issue()
        A(f's_add_u32 {s(sSpin)}, {s(sSpin)}, 1')
        A(f's_cmp_lt_u32 {s(sSpin)}, {SPIN_LIMIT}\ns_cbranch_scc0 L_rec_exit')
        A('s_waitcnt vmcnt(0)')
        A(f'v_max_u32 {v(t0)}, {v(base)}, {v(base+4)}')
        A(f'v_cmp_lt_u32 vcc, {s(sSent)}, {v(t0)}')
        A(f's_cbranch_vccnz L_{tag}f_{sfx}')
        A(f's_mov_b64 exec, -1')
    def add(d, x, y): A(f'v_add_f32 {v(d)}, {v(x)}, {v(y)}')
    def cvt(d, x, y): A(f'v_cvt_pk_bf16_f32 {v(d)}, {v(x)}, {v(y)}')
    def wq(o, tt): lam, hi = o >> 1, o & 1; return a_(((hi * 4 + lam) * 2 + tt) * 8, 8)
    def wv(o, tt): lam, hi = o >> 1, o & 1; return a_(128 + ((hi * 4 + lam) * 2 + tt) * 8, 8)
    def wk(o, tt):
        lam, hi = o >> 1, o & 1
        return v(WK0 + (lam * 2 + tt) * 8, 8) if hi == 0 else v(RING + ((lam * 2 + tt) & 3) * 8, 8)
    QA, KA, VA = (Q0, Q1), (K0, K1), (V0, V1)
    def mq(o, tt): smf(A, QA[tt], MF + 4 * o, wq(o, tt))
    def mk(o, tt): smf(A, KA[tt], MF + 4 * o, wk(o, tt))
    def mv(o, tt): smf(A, VA[tt], MF + 4 * o, wv(o, tt))
    ring_prefetch(); zero(ACC, 24)
    A(f's_mov_b32 {s(sSpin)}, 0')
    gather_issue()
    A('s_waitcnt vmcnt(0)')
    A.label(f'L_loop_{sfx}')
    A('s_waitcnt vmcnt(0)')
    A(f'v_max_u32 {v(vT0)}, {v(MF)}, {v(MF+4)}')
    L.issue(f'ds_write_b128 {v(vMw)}, {v(MF,4)}')
    A(f'v_cmp_lt_u32 vcc, {s(sSent)}, {v(vT0)}')
    L.issue(f'ds_write_b128 {v(vMw)}, {v(MF+4,4)} offset:4096')
    A(f's_cbranch_vccnz L_gf_{sfx}')
    A.label(f'L_gok_{sfx}')
    mq(0, 0); mk(0, 0); mq(0, 1)
    if dbg: A(f's_add_u32 s88, s88, {s(sSpin)}')
    stamp(0)
    mk(0, 1)
    for lam in (1, 2, 3): A(f'v_xor_b32 {v(vT0 + lam)}, {lam*1024}, {v(vMw)}')
    L.wait_all()
    A('s_barrier')
    stamp(1)
    mft = {}
    def mfread(o):
        lam, hi = o >> 1, o & 1
        mft[o] = L.issue(f'ds_read_b128 {v(MF + 4*o, 4)}, {v(vT0 + lam)} offset:{hi*4096}')
    mfread(2); mfread(3)
    mq(1, 0); mfread(4)
    rt = {}
    def refill(lam, tt, hf):
        f = lam * 2 + tt
        rt[(lam, tt)] = L.issue(f'ds_read_b128 {v(RING + (f & 3)*8 + hf*4, 4)}, {v(vWkL)} offset:{f*2048 + hf*1024}')
    kxt = {}
    def kxload(i):
        kxt[i] = L.issue(f'ds_read_b128 {v(RING + 4*i, 4)}, {v(vKXr)} offset:{i*1024}')
    mk(1, 0); mfread(5)
    mq(1, 1); mfread(6)
    mk(1, 1); mfread(7)
    L.wait(mft[2])
    mq(2, 0); refill(2, 0, 0)
    A(f'v_mov_b32 {v(vT0)}, {s(sStep)}')
    mk(2, 0); refill(2, 0, 1)
    mq(2, 1); refill(2, 1, 0)
    mk(2, 1); refill(2, 1, 1)
    V.issue(f'buffer_store_dword {v(vIdx)}, {v(vMs)}, s[4:7], {s(sNext)} offen{stf}')
    L.wait(mft[3])
    mq(3, 0)
    tv0 = V.issue(f'buffer_load_dwordx4 {v(VX,4)}, {v(vVXg)}, s[4:7], {s(sVXo)} offen sc1')
    mk(3, 0); refill(3, 0, 0)
    mq(3, 1); refill(3, 0, 1)
    mk(3, 1); refill(3, 1, 0)
    L.wait(mft[4])
    mq(4, 0); refill(3, 1, 1)
    mk(4, 0)
    tvx = V.issue(f'buffer_load_dwordx4 {v(VX+4,4)}, {v(vVXg)}, s[4:7], {s(sVXo)} offen offset:1024 sc1')
    mq(4, 1)
    A(f's_mov_b32 m0, {s(sKXm)}')
    mk(4, 1)
    V.issue(f'buffer_load_dwordx4 {v(vKXg)}, s[4:7], {s(sKXo)} offen sc1 lds')
    L.wait(rt[(2, 1)])
    mq(5, 0)
    A(f's_add_u32 m0, {s(sKXm)}, 4096')
    mk(5, 0); kxload(0)
    mq(5, 1); kxload(1)
    mk(5, 1); kxload(2)
    mq(6, 0); kxload(3)
    mk(6, 0)
    V.issue(f'buffer_store_dword {v(vT0)}, off, s[4:7], {s(sProg)} sc1')
    A(f's_add_u32 {s(sT0)}, {s(sKXo)}, {16*8192}')
    mq(7, 0)
    V.issue(f'buffer_load_dwordx4 {v(vKXg)}, s[4:7], {s(sT0)} offen sc1 lds')
    L.wait(rt[(3, 1)])
    mk(7, 0); kxload(4)
    mq(6, 1); kxload(5)
    mk(6, 1); add(Q0, Q0, Q0 + 1)
    mq(7, 1); add(Q0 + 1, Q0 + 2, Q0 + 3)
    mk(7, 1)
    stamp(2)
    add(K0, K0, K0 + 1); add(K0 + 1, K0 + 2, K0 + 3)
    add(Q1, Q1, Q1 + 1); add(Q1 + 1, Q1 + 2, Q1 + 3)
    cvt(vT0, Q0, Q1); cvt(vT1, Q0 + 1, Q1 + 1)
    L.issue(f'ds_write2_b32 {v(vXQw)}, {v(vT0)}, {v(vT1)} offset0:0 offset1:{2*XQP//4}')
    add(K1, K1, K1 + 1); add(K1 + 1, K1 + 2, K1 + 3)
    cvt(vT2, K0, K1); cvt(vT3, K0 + 1, K1 + 1)
    L.issue(f'ds_write2_b32 {v(vXQw)}, {v(vT2)}, {v(vT3)} offset0:{XQP//4} offset1:{3*XQP//4}')
    mv(0, 0); kxload(6)
    mv(0, 1); kxload(7)
    mv(1, 0)
    V.issue(f'buffer_store_dword {v(vT2)}, {v(vKMs)}, s[4:7], {s(sKMo)} offen sc1')
    mv(1, 1)
    V.issue(f'buffer_store_dword {v(vT3)}, {v(vKMs)}, s[4:7], {s(sKMo)} offen offset:256 sc1')
    mv(2, 0)
    L.wait_all()
    A('s_barrier')
    stamp(3)
    QF, KMF, SA = ACC, MF, MF + 16
    qt, kt = {}, {}
    def qread(ks): qt[ks] = L.issue(f'ds_read_b128 {v(QF + 4*ks, 4)}, {v(vXQr)} offset:{ks*64}')
    def kread(ks): kt[ks] = L.issue(f'ds_read_b128 {v(KMF + 4*ks, 4)}, {v(vXKr)} offset:{ks*64}')
    qread(0); qread(1)
    mv(2, 1); qread(2)
    mv(3, 0); qread(3)
    mv(3, 1); kread(0)
    mv(4, 0); kread(1)
    mv(4, 1); kread(2)
    mv(5, 0); kread(3)
    mv(5, 1)
    V.issue(f'buffer_store_dwordx4 {v(vIdx,4)}, {v(vPl)}, s[4:7], {s(sPp)} offen{stf}')
    mv(6, 0); mv(6, 1); mv(7, 0); mv(7, 1)
    V.issue(f'buffer_store_dwordx4 {v(vIdx,4)}, {v(vPl)}, s[4:7], {s(sPp)} offen offset:256{stf}')
    TX0, TX1, TM = SA, SA + 4, SA + 8
    def mm(d, a, b, c, k=32):
        n = 4 if k == 32 else 2
        A(f'v_mfma_f32_16x16x{k}_bf16 {v(d,4)}, {v(a,n)}, {v(b,n)}, {c}')
    L.wait(qt[3])
    for ks in range(4):
        mm(TX0, RING + 4 * ks, QF + 4 * ks, '0' if ks == 0 else v(TX0, 4))
        if ks == 2: add(V0, V0, V0 + 1); add(V0 + 1, V0 + 2, V0 + 3)
        if ks == 3: cvt(SP, V0, V0 + 1); cvt(SP + 2, V1, V1 + 1)
        mm(TX1, RING + 16 + 4 * ks, QF + 4 * ks, '0' if ks == 0 else v(TX1, 4))
        if ks == 2: add(V1, V1, V1 + 1); add(V1 + 1, V1 + 2, V1 + 3)
    L.wait(kt[3])
    M_, T_ = vT2, vT3
    mm(TM, KMF, QF, '0')
    V.issue(f'buffer_store_dword {v(SP)}, {v(vVMs)}, s[4:7], {s(sKMo)} offen sc1')
    mm(TM, KMF + 4, QF + 4, v(TM, 4))
    V.issue(f'buffer_store_dword {v(SP+2)}, {v(vVMs)}, s[4:7], {s(sKMo)} offen offset:256 sc1')
    A(f's_cmp_eq_u32 {s(sStep)}, {nsteps-1}')
    mm(TM, KMF + 8, QF + 8, v(TM, 4))
    A(f'v_max3_f32 {v(M_)}, {v(TX0)}, {v(TX0+1)}, {v(TX0+2)}')
    A(f'v_max3_f32 {v(T_)}, {v(TX0+3)}, {v(TX1)}, {v(TX1+1)}')
    mm(TM, KMF + 12, QF + 12, v(TM, 4))
    A(f's_cbranch_scc1 L_rec_fin')
    stamp(4)
    wt = {}
    def wofill(T, hf):
        wt[T] = L.issue(f'ds_read_b128 {v(MF + (T & 3)*8 + hf*4, 4)}, {v(vWkL)} offset:{16384 + T*2048 + hf*1024}')
    PM, PX = ACC, ACC + 4
    OL, O0_, O1_ = ACC + 8, V0, V1
    A(f'''
    v_max3_f32 {v(M_)}, {v(M_)}, {v(TX1+2)}, {v(TX1+3)}
    v_max_f32 {v(M_)}, {v(M_)}, {v(T_)}
    ''')
    wofill(0, 0); wofill(0, 1); wofill(1, 0); wofill(1, 1)
    A(f'''
    v_max3_f32 {v(T_)}, {v(M_)}, {v(TM)}, {v(TM+1)}
    v_max3_f32 {v(M_)}, {v(M_)}, {v(TM)}, {v(TM+1)}
    v_mov_b32 {v(PM+1)}, 0
    v_permlane32_swap_b32 {v(M_)}, {v(T_)}
    v_max_f32 {v(vT0)}, {v(M_)}, {v(T_)}
    v_max_f32 {v(vT1)}, {v(M_)}, {v(T_)}
    v_permlane16_swap_b32 {v(vT0)}, {v(vT1)}
    v_max_f32 {v(M_)}, {v(vT0)}, {v(vT1)}
    v_mul_f32 {v(M_)}, {s(sC)}, {v(M_)}
    ''')
    def pkf(x): A(f'v_pk_fma_f32 {v(x,2)}, {v(x,2)}, {s(sC,2)}, {v(M_,2)} op_sel_hi:[1,1,0] neg_lo:[0,0,1] neg_hi:[0,0,1]')
    def ex(x): A(f'v_exp_f32 {v(x)}, {v(x)}')
    pkf(TM); pkf(TX0); pkf(TX0 + 2); pkf(TX1); pkf(TX1 + 2)
    ex(TM); ex(TM + 1); ex(TX0)
    cvt(PM, TM, TM + 1)
    ex(TX0 + 1); ex(TX0 + 2)
    mm(OL, ONES, PM, '0', 16)
    ex(TX0 + 3); cvt(PX, TX0, TX0 + 1)
    mm(O0_, SP, PM, '0', 16)
    ex(TX1); cvt(PX + 1, TX0 + 2, TX0 + 3)
    mm(O1_, SP + 2, PM, '0', 16)
    ex(TX1 + 1); ex(TX1 + 2); ex(TX1 + 3)
    cvt(PX + 2, TX1, TX1 + 1); cvt(PX + 3, TX1 + 2, TX1 + 3)
    stamp(5)
    V.wait(tvx)
    mm(OL, ONES, PX, v(OL, 4))
    wofill(2, 0); wofill(2, 1)
    mm(O0_, VX, PX, v(O0_, 4))
    wofill(3, 0); wofill(3, 1)
    mm(O1_, VX + 4, PX, v(O1_, 4))
    WA = RING
    A(f'v_rcp_f32 {v(M_)}, {v(OL)}')
    zero(WA, 2)
    OX = ACC + 12
    def mul(x): A(f'v_mul_f32 {v(x)}, {v(M_)}, {v(x)}')
    for r in range(4): mul(O0_ + r)
    cvt(OX, O0_, O0_ + 1); cvt(OX + 1, O0_ + 2, O0_ + 3)
    for r in range(4): mul(O1_ + r)
    cvt(OX + 2, O1_, O1_ + 1); cvt(OX + 3, O1_ + 2, O1_ + 3)
    L.issue(f'ds_write_b128 {v(vXOw)}, {v(OX,4)}')
    zero(WA + 2, 30)
    stamp(6)
    L.wait_all()
    A('s_barrier')
    stamp(7)
    OA = V0
    ot0 = L.issue(f'ds_read_b128 {v(OA,4)}, {v(vXOr)}')
    ot1 = L.issue(f'ds_read_b128 {v(OA+4,4)}, {v(vXOr)} offset:128')
    A(f'''
    s_add_u32 {s(sKXo)}, {s(sKXo)}, {32*8192}
    s_xor_b32 {s(sKXm)}, {s(sKXm)}, {LDS_KX ^ (LDS_KX + 8192)}
    s_add_u32 {s(sVXo)}, {s(sVXo)}, {32*128*64}
    s_add_u32 {s(sKMo)}, {s(sKMo)}, {32*2048}
    v_xor_b32 {v(vKXr)}, {LDS_KX ^ (LDS_KX + 8192)}, {v(vKXr)}
    ''')
    L.wait(ot0)
    PO = ACC
    PU = VX
    def hs(T, j): add(PO + 2 * T + j, WA + 4 * T + 2 * j, WA + 4 * T + 2 * j + 1)
    def pk(P):
        Qd, p = P >> 1, P & 1
        for j in range(2): cvt(PU + 4 * Qd + 2 * j + p, PO + 4 * P + j, PO + 4 * P + 2 + j)
        if p == 0: A(f'v_min_u32 {v(PU+4*Qd)}, {s(sSent)}, {v(PU+4*Qd)}')
    def pstore(Qd):
        V.issue(f'buffer_store_dwordx4 {v(PU+4*Qd,4)}, {v(vPs)}, s[4:7], {s((sPc0, sPc1)[Qd])} offen{stf}')
    for T in range(8):
        smf(A, WA + 4 * T, OA, v(WO0 + 8 * T, 8))
        if T == 0: L.wait(ot1)
        if T >= 2: hs(T - 2, 0)
        if T >= 4: L.wait(wt[T])
        if T == 6: pstore(0)
        smf(A, WA + 4 * T, OA + 4, v(MF + (T & 3) * 8, 8))
        if T < 4: wofill(T + 4, 0); wofill(T + 4, 1)
        if T >= 2: hs(T - 2, 1)
        if T >= 3 and T % 2 == 1: pk((T - 3) // 2)
    hs(6, 0); hs(6, 1); hs(7, 0); hs(7, 1); pk(3); pstore(1)
    stamp(8)
    RL, RD = MF + 16, vT0
    A(f's_mov_b32 {s(sSpin)}, 0')
    ring_prefetch(); zero(ACC, 24)
    def red_issue():
        for i in range(2):
            V.issue(f'buffer_load_dwordx4 {v(RL + 4*i, 4)}, {v(vPl)}, s[4:7], {s(sPc0)} offen offset:{i*256} sc1')
    A(f's_add_u32 {s(sT1)}, {s(sStep)}, 2\ns_lshr_b32 {s(sT1)}, {s(sT1)}, 2\ns_min_u32 {s(sT1)}, {s(sT1)}, 15')
    A(f's_cmp_lt_u32 {s(sT1)}, {s(sReady)}\ns_cbranch_scc0 L_need_{sfx}')
    A.label(f'L_have_{sfx}')
    delay(d1)
    red_issue()
    A('s_waitcnt vmcnt(0)')
    A(f'v_max_u32 {v(MF)}, {v(RL)}, {v(RL+4)}')
    mm(RD, RL, SEL, '0')
    A(f'v_cmp_lt_u32 vcc, {s(sSent)}, {v(MF)}')
    mm(RD, RL + 4, SEL, v(RD, 4))
    A(f's_cbranch_vccnz L_rf_{sfx}')
    A.label(f'L_rok_{sfx}')
    stamp(9)
    if dbg: A(f's_add_u32 s89, s89, {s(sSpin)}')
    A(f'''
    v_permlane32_swap_b32 {v(RD)}, {v(RD+2)}
    v_permlane32_swap_b32 {v(RD+1)}, {v(RD+3)}
    v_add_f32 {v(RD)}, {v(RD)}, {v(RD+2)}
    v_add_f32 {v(RD+1)}, {v(RD+1)}, {v(RD+3)}
    v_permlane16_swap_b32 {v(RD)}, {v(RD+1)}
    v_add_f32 {v(RD)}, {v(RD)}, {v(RD+1)}
    v_mov_b32_dpp {v(RD+1)}, {v(RD)} quad_perm:[1,0,3,2] row_mask:0xf bank_mask:0xf
    v_cvt_pk_bf16_f32 {v(RD)}, {v(RD)}, {v(RD+1)}
    v_min_u32 {v(RD)}, {s(sSent)}, {v(RD)}
    buffer_store_dword {v(RD)}, {v(vMs)}, s[4:7], {s(sNext)} offen{stf}
    s_mov_b32 {s(sPp)}, {s(sPc0)}
    s_xor_b32 {s(sCur0)}, {s(sCur0)}, 8192
    s_xor_b32 {s(sCur1)}, {s(sCur1)}, 8192
    s_xor_b32 {s(sNext)}, {s(sNext)}, 8192
    s_xor_b32 {s(sPc0)}, {s(sPc0)}, 0x40000
    s_xor_b32 {s(sPc1)}, {s(sPc1)}, 0x40000
    s_add_u32 {s(sStep)}, {s(sStep)}, 1
    s_mov_b32 {s(sSpin)}, 0
    ''')
    stamp(10)
    delay(d2)
    gather_issue()
    if dbg:
        A('s_waitcnt lgkmcnt(0)')
        for i in range(10):
            A(f's_sub_u32 {s(sT0)}, s{52+2*(i+1)}, s{52+2*i}\ns_add_u32 s{76+i}, s{76+i}, {s(sT0)}')
        A(f'''
        s_cmp_lg_u32 {s(sStep)}, 31
        s_cbranch_scc1 L_nodump_{sfx}
        s_lshl_b32 {s(sT0)}, {s(sH)}, 2
        s_add_u32 {s(sT0)}, {s(sT0)}, {s(sWV)}
        s_lshl_b32 {s(sT0)}, {s(sT0)}, 6
        s_add_u32 {s(sT0)}, {s(sT0)}, {WS_DBG + 8192}
        v_mov_b32 {v(vT0)}, 0
        ''')
        for i in range(11):
            A(f'v_mov_b32 {v(vT1)}, s{52+2*i}\nbuffer_store_dword {v(vT1)}, {v(vT0)}, s[4:7], {s(sT0)} offen offset:{4*i}')
        A(f's_waitcnt vmcnt(0)\nL_nodump_{sfx}:')
        A(f's_sub_u32 {s(sT0)}, s52, s87\ns_cmp_eq_u32 {s(sStep)}, 1\ns_cselect_b32 {s(sT0)}, 0, {s(sT0)}\ns_add_u32 s86, s86, {s(sT0)}\ns_mov_b32 s87, s72')
    A(f's_branch L_loop_{sfx}')
    A.label(f'L_need_{sfx}')
    ensure(A, sfx)
    A(f's_branch L_have_{sfx}')
    retry_loop('g', gather_issue, MF, vT0, vT1, f'L_gw_{sfx}')
    A.label(f'L_gw_{sfx}')
    A(f'ds_write_b128 {v(vMw)}, {v(MF,4)}')
    A(f'ds_write_b128 {v(vMw)}, {v(MF+4,4)} offset:4096')
    A(f's_branch L_gok_{sfx}')
    retry_loop('r', red_issue, RL, MF, MF + 1, f'L_rw_{sfx}')
    A.label(f'L_rw_{sfx}')
    mm(RD, RL, SEL, '0')
    mm(RD, RL + 4, SEL, v(RD, 4))
    A(f's_branch L_rok_{sfx}')

HDR = '; @launch grid=(256,1,1) block=(256,1,1) lds=163840\n.amdgcn_target "amdgcn-amd-amdhsa--gfx950"\n'
if __name__ == '__main__':
    import sys
    kw = dict(a.split('=') for a in sys.argv[1:] if '=' in a)
    body, desc = gen_rec('rec_kernel', dbg=('dbg' in sys.argv), d1=int(kw.get('d1', 0)), d2=int(kw.get('d2', 0)), ps=int(kw.get('ps', 20)))
    open(kw.get('out', 'rec.s'), 'w').write(HDR + body + desc)
```

```python
from asmlib import *
from layout import *
import gemm1 as g
import struct
def f2u(x): return struct.unpack('<I', struct.pack('<f', x))[0]
def v(i, n=1): return f'v{i}' if n == 1 else f'v[{i}:{i+n-1}]'
def a_(i, n=1): return f'a{i}' if n == 1 else f'a[{i}:{i+n-1}]'
def s(i, n=1): return f's{i}' if n == 1 else f's[{i}:{i+n-1}]'
F_KVQ, F_H1, F_ATT, F_PROG = WS_FLAG, WS_FLAG + 1024, WS_FLAG + 4096, WS_FLAG + 8192
N_G1, N_G2, N_ATT = 880, 64, 512
LB = 160000
gTk, wSp, wA, wB, wC, wD, wSeg = 74, 75, 81, 82, 83, 84, 85
vZ, vLB, vTk = 12, 13, 14
WSPIN = 1 << 18

def wait_flag(A, tag, soff, cmp, val, far=None, slp=8):
    A(f'''
    s_mov_b32 {s(wSp)}, 0
L_wf_{tag}:
    buffer_load_dword {v(vTk)}, {v(vZ)}, s[4:7], {s(soff)} offen sc0 sc1
    s_add_u32 {s(wSp)}, {s(wSp)}, 1
    s_cmp_lt_u32 {s(wSp)}, {WSPIN}
    s_cbranch_scc0 L_rec_exit
    s_waitcnt vmcnt(0)
    v_readfirstlane_b32 {s(wD)}, {v(vTk)}
    s_cmp_{cmp}_u32 {s(wD)}, {val}
    s_cbranch_scc1 L_wfd_{tag}
    s_sleep {slp}
    {'' if far is None else far}
    s_branch L_wf_{tag}
L_wfd_{tag}:
    ''')

def signal(A, soff, val):
    A(f'''
    s_waitcnt vmcnt(0)
    s_barrier
    s_cmp_lg_u32 {s(g.gW)}, 0
    s_cbranch_scc1 L_wk_next
    v_mov_b32 {v(vTk)}, {val}
    s_mov_b64 exec, 1
    buffer_atomic_add {v(vTk)}, {v(vZ)}, s[4:7], {s(soff)} offen
    s_mov_b64 exec, -1
    s_branch L_wk_next
    ''')

def gen_att_task(A):
    vL = g.gL
    vG, vN, vQ, vKM, vVX, vVM, vT0, vT1, vM, vT = 160, 161, 162, 163, 164, 165, 166, 167, 168, 169
    ONES = 172
    QF, KX, KM, VX, VM = 16, 48, 80, 96, 128
    SA, PM, PX, OL, O = 176, 188, 192, 196, 200
    OUT = 216
    A(f'''
L_att:
    s_sub_u32 {s(wA)}, {s(gTk)}, {N_G1 + N_G2}
    s_lshr_b32 s24, {s(wA)}, 3
    s_and_b32 s25, {s(wA)}, 7
    s_lshl_b32 s25, s25, 2
    s_add_u32 s25, s25, {s(g.gW)}
    s_lshr_b32 {s(wA)}, s25, 1
    s_lshl_b32 {s(wA)}, {s(wA)}, 4
    s_lshr_b32 {s(wB)}, s24, 2
    s_add_u32 {s(wA)}, {s(wA)}, {s(wB)}
    s_lshl_b32 {s(wA)}, {s(wA)}, 2
    s_add_u32 {s(wA)}, {s(wA)}, {F_KVQ}
    v_lshrrev_b32 {v(vG)}, 4, {v(vL)}
    v_and_b32 {v(vN)}, 15, {v(vL)}
    v_lshlrev_b32 {v(vQ)}, 4, {v(vL)}
    s_lshl_b32 s26, s24, 18
    s_lshl_b32 s27, s25, 12
    s_add_u32 s26, s26, s27
    s_add_u32 s27, s26, {WS_Q}
    s_add_u32 s28, s27, {16*8192}
    s_add_u32 s29, s26, {WS_K}
    s_add_u32 s30, s29, {16*8192}
    s_add_u32 s34, s26, {WS_O}
    s_add_u32 s35, s34, {16*8192}
    s_lshl_b32 s31, s24, 5
    s_add_u32 s31, s31, s25
    s_lshl_b32 s36, s31, 11
    s_add_u32 s37, s36, {WS_VM}
    s_add_u32 s36, s36, {WS_KM}
    s_lshl_b32 s32, s31, 13
    s_add_u32 s32, s32, {WS_VT}
    s_add_u32 s33, s32, 4096
    v_lshrrev_b32 {v(vT0)}, 2, {v(vN)}
    v_and_b32 {v(vT1)}, 1, {v(vN)}
    v_lshl_add_u32 {v(vT0)}, {v(vT0)}, 1, {v(vT1)}
    v_lshlrev_b32 {v(vKM)}, 8, {v(vT0)}
    v_lshl_add_u32 {v(vKM)}, {v(vG)}, 4, {v(vKM)}
    v_lshlrev_b32 {v(vVX)}, 6, {v(vN)}
    v_lshl_add_u32 {v(vVX)}, {v(vG)}, 4, {v(vVX)}
    v_lshlrev_b32 {v(vVM)}, 4, {v(vN)}
    v_lshl_add_u32 {v(vVM)}, {v(vG)}, 2, {v(vVM)}
    ''')
    wait_flag(A, 'a1', wA, 'eq', '258')
    ld = lambda d, a, so, off: A(f'buffer_load_dwordx4 {v(d,4)}, {v(a)}, s[4:7], s{so} offen offset:{off} sc1')
    for ks in range(4): ld(QF + 4 * ks, vQ, 27, ks * 1024)
    for ks in range(4): ld(KX + 4 * ks, vQ, 29, ks * 1024)
    for ks in range(4): ld(QF + 16 + 4 * ks, vQ, 28, ks * 1024)
    for ks in range(4): ld(KX + 16 + 4 * ks, vQ, 30, ks * 1024)
    for ft in range(8): ld(VX + 4 * ft, vVX, 32 + (ft >> 2), (ft & 3) * 1024)
    for ft in range(8): A(f'v_mov_b32 {v(VM + 2*ft + 1)}, 0')
    for i in range(4): A(f'v_mov_b32 {v(ONES+i)}, 0x3f803f80')
    A(f'v_lshlrev_b32 {v(vT0)}, 2, {v(vG)}')
    for r in range(4):
        A(f'v_add_u32 {v(vT1)}, {r}, {v(vT0)}')
        A(f'v_cmp_le_u32 s[{40+2*r}:{41+2*r}], {v(vT1)}, {v(vN)}')
    A(f's_mov_b32 s48, {f2u(SM_C)}\nv_mov_b32 {v(vT0)}, 0xf149f2ca\nv_mov_b32 {v(PM+1)}, 0')
    A(f's_lshl_b32 {s(wA)}, s25, 7\ns_add_u32 {s(wA)}, {s(wA)}, {F_PROG}')
    wait_flag(A, 'a2', wA, 'gt', 's24', far=f's_cmp_ge_u32 {s(wD)}, s24\ns_cbranch_scc1 L_wf_a2\ns_sleep 48', slp=4)
    for ks in range(4): ld(KM + 4 * ks, vKM, 36, ks * 64)
    for ft in range(8): A(f'buffer_load_dword {v(VM + 2*ft)}, {v(vVM)}, s[4:7], s37 offen offset:{ft*256} sc1')
    def mm(d, a, b, c, k=32):
        n = 4 if k == 32 else 2
        A(f'v_mfma_f32_16x16x{k}_bf16 {v(d,4)}, {v(a,n)}, {v(b,n)}, {c}')
    TM, TX0, TX1 = SA, SA + 4, SA + 8
    for qt in range(2):
        q = QF + 16 * qt
        for ks in range(4):
            mm(TX0, KX + 4 * ks, q + 4 * ks, '0' if ks == 0 else v(TX0, 4))
            if qt == 1: mm(TX1, KX + 16 + 4 * ks, q + 4 * ks, '0' if ks == 0 else v(TX1, 4))
        if qt == 0: A('s_waitcnt vmcnt(8)')
        for ks in range(4):
            mm(TM, KM + 4 * ks, q + 4 * ks, '0' if ks == 0 else v(TM, 4))
        D = TX0 if qt == 0 else TX1
        for r in range(4): A(f'v_cndmask_b32 {v(D+r)}, {v(vT0)}, {v(D+r)}, s[{40+2*r}:{41+2*r}]')
        A(f'v_max3_f32 {v(vM)}, {v(TX0+3)}, {v(TX0+1)}, {v(TX0+2)}')
        if qt == 1:
            A(f'v_max3_f32 {v(vM)}, {v(vM)}, {v(TX1)}, {v(TX1+1)}')
            A(f'v_max3_f32 {v(vM)}, {v(vM)}, {v(TX1+2)}, {v(TX1+3)}')
        A(f'v_max_f32 {v(vM)}, {v(vM)}, {v(TX0)}')
        A(f'v_max3_f32 {v(vM)}, {v(vM)}, {v(TM)}, {v(TM+1)}')
        for p in ('32', '16'):
            A(f'v_mov_b32 {v(vT)}, {v(vM)}\nv_permlane{p}_swap_b32 {v(vM)}, {v(vT)}\nv_max_f32 {v(vM)}, {v(vM)}, {v(vT)}')
        A(f'v_mul_f32 {v(vM)}, s48, {v(vM)}')
        regs = [TM, TM + 1] + [TX0 + r for r in range(4)] + ([TX1 + r for r in range(4)] if qt else [])
        for x in regs: A(f'v_fma_f32 {v(x)}, {v(x)}, s48, -{v(vM)}')
        for x in regs: A(f'v_exp_f32 {v(x)}, {v(x)}')
        A(f'v_cvt_pk_bf16_f32 {v(PM)}, {v(TM)}, {v(TM+1)}')
        A(f'v_cvt_pk_bf16_f32 {v(PX)}, {v(TX0)}, {v(TX0+1)}\nv_cvt_pk_bf16_f32 {v(PX+1)}, {v(TX0+2)}, {v(TX0+3)}')
        if qt: A(f'v_cvt_pk_bf16_f32 {v(PX+2)}, {v(TX1)}, {v(TX1+1)}\nv_cvt_pk_bf16_f32 {v(PX+3)}, {v(TX1+2)}, {v(TX1+3)}')
        else: A(f'v_mov_b32 {v(PX+2)}, 0\nv_mov_b32 {v(PX+3)}, 0')
        if qt == 0: A('s_waitcnt vmcnt(0)')
        mm(OL, ONES, PM, '0', 16)
        def pv(ks, first=False):
            for b in range(2):
                o = O + (ks & 1) * 8 + 4 * b; ft = 2 * ks + b
                mm(o, VM + 2 * ft, PM, '0', 16)
            if first: mm(OL, ONES, PX, v(OL, 4))
            for b in range(2):
                o = O + (ks & 1) * 8 + 4 * b; ft = 2 * ks + b
                mm(o, VX + 4 * ft, PX, v(o, 4))
        def fin(ks):
            o = O + (ks & 1) * 8; e = OUT + (ks & 1) * 4
            for i in range(8): A(f'v_mul_f32 {v(o+i)}, {v(vT1)}, {v(o+i)}')
            for r in range(4): A(f'v_cvt_pk_bf16_f32 {v(e+r)}, {v(o+r)}, {v(o+4+r)}')
            A(f'buffer_store_dwordx4 {v(e,4)}, {v(vQ)}, s[4:7], s{34+qt} offen offset:{ks*1024} sc1')
        pv(0, True)
        A(f'v_rcp_f32 {v(vT1)}, {v(OL)}')
        pv(1); fin(0); pv(2); fin(1); pv(3); fin(2); fin(3)
    A(f's_lshl_b32 {s(wA)}, s24, 6\ns_add_u32 {s(wA)}, {s(wA)}, {F_ATT}')
    signal(A, wA, 1)

def gen_g2_task(A):
    vL = g.gL
    vG, vN, vA, vW, vR, vX, vS, vT0 = 1, 2, 3, 4, 5, 6, 7, 8
    ACC, FW, XR, FA = 16, 32, 40, 44
    NR = 52
    RED = 131072
    A(f'''
L_g2:
    s_sub_u32 {s(wA)}, {s(gTk)}, {N_G1}
    s_and_b32 s24, {s(wA)}, 15
    s_lshr_b32 {s(wSeg)}, {s(wA)}, 4
    s_load_dwordx4 s[28:31], s[0:1], 72
    s_load_dwordx2 s[32:33], s[0:1], 0
    v_lshrrev_b32 {v(vG)}, 4, {v(vL)}
    v_and_b32 {v(vN)}, 15, {v(vL)}
    s_lshl_b32 s25, {s(g.gW)}, 15
    s_lshl_b32 s26, {s(g.gW)}, 10
    v_lshlrev_b32 {v(vS)}, 4, {v(vL)}
    v_add_u32 {v(vA)}, s26, {v(vS)}
    v_bfe_u32 {v(vW)}, {v(vL)}, 2, 1
    v_lshlrev_b32 {v(vW)}, 4, {v(vW)}
    v_lshrrev_b32 {v(vT0)}, 5, {v(vL)}
    v_lshl_add_u32 {v(vW)}, {v(vT0)}, 2, {v(vW)}
    v_bfe_u32 {v(vT0)}, {v(vL)}, 3, 2
    v_add_u32 {v(vW)}, {v(vW)}, {v(vT0)}
    v_lshlrev_b32 {v(vW)}, 10, {v(vW)}
    v_and_b32 {v(vT0)}, 3, {v(vL)}
    v_lshl_add_u32 {v(vW)}, {v(vT0)}, 4, {v(vW)}
    s_lshl_b32 s27, s24, 6
    s_add_u32 {s(wA)}, s27, s25
    v_add_u32 {v(vW)}, {s(wA)}, {v(vW)}
    v_bfe_u32 {v(vR)}, {v(vL)}, 2, 2
    v_lshl_add_u32 {v(vR)}, {v(vG)}, 3, {v(vR)}
    v_lshlrev_b32 {v(vR)}, 6, {v(vR)}
    v_lshl_add_u32 {v(vR)}, {v(vT0)}, 4, {v(vR)}
    v_add_u32 {v(vR)}, s25, {v(vR)}
    v_lshlrev_b32 {v(vX)}, 10, {v(vN)}
    v_lshl_add_u32 {v(vX)}, {v(vG)}, 4, {v(vX)}
    s_and_b32 {s(wA)}, {s(g.gW)}, 1
    s_lshl_b32 {s(wA)}, {s(wA)}, 14
    s_add_u32 {s(wA)}, {s(wA)}, s27
    v_add_u32 {v(vX)}, {s(wA)}, {v(vX)}
    s_mov_b32 s12, s22
    s_mov_b32 s13, s23
    s_mov_b32 s14, 0x400000
    s_waitcnt lgkmcnt(0)
    s_mov_b32 s40, s30
    s_mov_b32 s41, s31
    s_mov_b32 s42, 0x200000
    s_mov_b32 s43, 0x20000
    s_mov_b32 s44, s32
    s_mov_b32 s45, s33
    s_mov_b32 s46, 0x200000
    s_mov_b32 s47, 0x20000
    ''')
    def stage(lb0, n):
        for j in range(n):
            for i in range(2):
                A(f's_add_u32 m0, s25, {j*2048 + i*1024}')
                A(f's_mov_b32 s34, {(lb0 + j)*4*32*1024 + i*8*1024}')
                A(f'buffer_load_dwordx4 {v(vW)}, s[12:15], s34 offen lds')
    for half in range(2):
        stage(half * 16, 16)
        A('s_waitcnt vmcnt(0)')
        for j in range(16):
            for bt in range(2):
                for t in range(2):
                    d = ((half * 16 + j) * 2 + bt) * 4 + 2 * t
                    A(f'ds_read_b64_tr_b16 {a_(d, 2)}, {v(vR)} offset:{j*2048 + t*256 + bt*8}')
            if j % 3 == 2: A('s_waitcnt lgkmcnt(0)')
        A('s_waitcnt lgkmcnt(0)')
    A(f's_mov_b32 s12, s28\ns_mov_b32 s13, s29\ns_mov_b32 s14, {1792*1024}')
    stage(0, 14)
    A(f'''
L_g2_seg:
    s_lshr_b32 {s(wA)}, {s(wSeg)}, 2
    s_lshl_b32 {s(wA)}, {s(wA)}, 2
    s_add_u32 {s(wA)}, {s(wA)}, {F_H1}
    ''')
    wait_flag(A, 'g1', wA, 'eq', '7')
    A(f'''
    s_mul_i32 s35, {s(wSeg)}, {2*57344}
    s_add_u32 s35, s35, {WS_H1}
    s_lshl_b32 s36, {s(wSeg)}, 15
    buffer_load_dwordx4 {v(XR,4)}, {v(vX)}, s[44:47], s36 offen
    ''')
    for lb in range(14):
        for tt in range(2):
            A(f's_add_u32 s34, s35, {tt*57344 + lb*4096}')
            A(f'buffer_load_dwordx4 {v(FA + (lb*2+tt)*4, 4)}, {v(vA)}, s[4:7], s34 offen sc1')
    for lb in range(14):
        for bt in range(2):
            for t in range(2):
                A(f'ds_read_b64_tr_b16 {v(FW + bt*4 + 2*t, 2)}, {v(vR)} offset:{lb*2048 + t*256 + bt*8}')
        A(f's_waitcnt vmcnt({2*(13-lb)}) lgkmcnt(0)')
        for bt in range(2):
            for tt in range(2):
                ac = v(ACC + (tt*2+bt)*4, 4)
                A(f'v_mfma_f32_16x16x32_bf16 {ac}, {v(FW + bt*4, 4)}, {v(FA + (lb*2+tt)*4, 4)}, {"0" if lb == 0 else ac}')
    A(f's_lshl_b32 {s(wA)}, {s(wSeg)}, 6\ns_add_u32 {s(wA)}, {s(wA)}, {F_ATT}')
    A(f's_lshl_b32 s35, {s(wSeg)}, 18\ns_add_u32 s35, s35, {WS_O}')
    wait_flag(A, 'g2', wA, 'eq', '8')
    def ldo(i):
        lb, tt = i >> 1, i & 1
        A(f's_add_u32 s34, s35, {tt*131072 + lb*4096}')
        A(f'buffer_load_dwordx4 {v(FA + (i % NR)*4, 4)}, {v(vA)}, s[4:7], s34 offen sc1')
    for i in range(NR): ldo(i)
    issued = NR
    for lb in range(32):
        A(f's_waitcnt vmcnt({issued - 2*lb - 2})')
        for bt in range(2):
            for tt in range(2):
                ac = v(ACC + (tt*2+bt)*4, 4)
                A(f'v_mfma_f32_16x16x32_bf16 {ac}, {a_((lb*2+bt)*4, 4)}, {v(FA + ((lb*2+tt) % NR)*4, 4)}, {ac}')
        for k in range(2):
            if issued < 64: ldo(issued); issued += 1
    A(f's_lshl_b32 {s(wA)}, {s(g.gW)}, 12\ns_add_u32 {s(wA)}, {s(wA)}, {RED}\nv_add_u32 {v(vT0)}, {s(wA)}, {v(vS)}')
    for i in range(4): A(f'ds_write_b128 {v(vT0)}, {v(ACC + 4*i, 4)} offset:{i*1024}')
    A(f'''
    s_lshl_b32 {s(wA)}, {s(g.gW)}, 11
    s_add_u32 {s(wA)}, {s(wA)}, {RED}
    v_add_u32 {v(vT0)}, {s(wA)}, {v(vS)}
    s_waitcnt lgkmcnt(0)
    s_barrier
    s_cmp_ge_u32 {s(g.gW)}, 2
    s_cbranch_scc1 L_g2_skip
    ''')
    for sw in range(4):
        for bt in range(2):
            A(f'ds_read_b128 {v(FA + (sw*2+bt)*4, 4)}, {v(vT0)} offset:{sw*4096 + bt*1024}')
    A('s_waitcnt lgkmcnt(0)')
    for i in range(8):
        A(f'v_add_f32 {v(FA+i)}, {v(FA+i)}, {v(FA+8+i)}')
        A(f'v_add_f32 {v(FA+16+i)}, {v(FA+16+i)}, {v(FA+24+i)}')
    for i in range(8): A(f'v_add_f32 {v(FA+i)}, {v(FA+i)}, {v(FA+16+i)}')
    for d in range(4):
        A(f'v_lshlrev_b32 {v(FW)}, 16, {v(XR+d)}\nv_and_b32 {v(FW+1)}, 0xffff0000, {v(XR+d)}')
        A(f'v_add_f32 {v(FA+2*d)}, {v(FA+2*d)}, {v(FW)}\nv_add_f32 {v(FA+2*d+1)}, {v(FA+2*d+1)}, {v(FW+1)}')
        A(f'v_cvt_pk_bf16_f32 {v(FA+32+d)}, {v(FA+2*d)}, {v(FA+2*d+1)}')
    A(f'''
    buffer_store_dwordx4 {v(FA+32,4)}, {v(vX)}, s[40:43], s36 offen
L_g2_skip:
    s_barrier
    s_add_u32 {s(wSeg)}, {s(wSeg)}, 4
    s_cmp_lt_u32 {s(wSeg)}, 64
    s_cbranch_scc1 L_g2_seg
    s_endpgm
    ''')

def gen_worker(A, sWV):
    A(f'''
L_worker:
    s_mov_b32 {s(g.gW)}, {s(sWV)}
    v_and_b32 {v(g.gL)}, 63, v0
    ''')
    g.g1_setup(A)
    A(f'''
    v_mov_b32 {v(vZ)}, 0
    v_mov_b32 {v(vLB)}, {LB}
L_wk_next:
    s_cmp_lg_u32 {s(g.gW)}, 0
    s_cbranch_scc1 L_wk_bar
    v_mov_b32 {v(vTk)}, 1
    s_mov_b64 exec, 1
    buffer_atomic_add {v(vTk)}, {v(vZ)}, s[8:11], 0 offen offset:72 sc0
    s_waitcnt vmcnt(0)
    ds_write_b32 {v(vLB)}, {v(vTk)}
    s_mov_b64 exec, -1
    s_waitcnt lgkmcnt(0)
L_wk_bar:
    s_barrier
    ds_read_b32 {v(vTk)}, {v(vLB)}
    s_waitcnt lgkmcnt(0)
    v_readfirstlane_b32 {s(gTk)}, {v(vTk)}
    s_cmp_ge_u32 {s(gTk)}, {N_G1 + N_G2 + N_ATT}
    s_cbranch_scc1 L_rec_exit
    s_cmp_ge_u32 {s(gTk)}, {N_G1 + N_G2}
    s_cbranch_scc1 L_att
    s_cmp_ge_u32 {s(gTk)}, {N_G1}
    s_cbranch_scc1 L_g2
    s_lshr_b32 {s(g.gMB)}, {s(gTk)}, 5
    s_and_b32 {s(g.gNB)}, {s(gTk)}, 31
    s_add_u32 {s(g.gNB)}, {s(g.gNB)}, 16
    s_cmp_lt_u32 {s(gTk)}, 512
    s_cbranch_scc1 L_wk_go
    s_sub_u32 {s(g.gT0)}, {s(gTk)}, 512
    s_mul_i32 {s(g.gMB)}, {s(g.gT0)}, {(1 << 16) // 23 + 1}
    s_lshr_b32 {s(g.gMB)}, {s(g.gMB)}, 16
    s_mul_i32 {s(g.gT1)}, {s(g.gMB)}, 23
    s_sub_u32 {s(g.gNB)}, {s(g.gT0)}, {s(g.gT1)}
    s_add_u32 {s(g.gT1)}, {s(g.gNB)}, 32
    s_cmp_ge_u32 {s(g.gNB)}, 16
    s_cselect_b32 {s(g.gNB)}, {s(g.gT1)}, {s(g.gNB)}
L_wk_go:
    ''')
    g.g1_tile(A, 'wk')
    A(f'''
    s_and_b32 {s(wA)}, {s(g.gNB)}, 15
    s_lshl_b32 {s(wA)}, {s(wA)}, 4
    s_cmp_eq_u32 {s(g.gType)}, 3
    s_cselect_b32 {s(wA)}, 256, {s(wA)}
    s_add_u32 {s(wA)}, {s(wA)}, {s(g.gMB)}
    s_lshl_b32 {s(wA)}, {s(wA)}, 2
    s_add_u32 {s(wA)}, {s(wA)}, {F_KVQ}
    s_cmp_eq_u32 {s(g.gType)}, 0
    s_cselect_b32 {s(wB)}, 256, 1
    ''')
    signal(A, wA, s(wB))
    gen_att_task(A)
    gen_g2_task(A)
for u in range(368): assert (u * ((1 << 16) // 23 + 1)) >> 16 == u // 23
```

```python
import sys
import pre, rec
NAME = 'parallel_sum__memory_aug_recurrent_mem_tr__dense_activation_silu__prompt'
def build(path, dbg=False, **kw):
    L = []
    def add(part, line): L.append((part, line))
    add(pre.gen_pre('pre_kernel'), 'kernel=pre_kernel grid=(128,1,1) block=(256,1,1) lds=0')
    add(rec.gen_rec('rec_kernel', fused=True, dbg=dbg, **kw), 'kernel=rec_kernel grid=(256,1,1) block=(256,1,1) lds=163840')
    hdr = '; generated by my own generator scripts (gen/*.py)\n' + ''.join(f'; @launch {l}\n' for _, l in L) + '.amdgcn_target "amdgcn-amd-amdhsa--gfx950"\n'
    open(path, 'w').write(hdr + ''.join(p[0][0] for p in L) + ''.join(p[0][1] for p in L))
if __name__ == '__main__':
    build(f'cdna_kernels/{NAME}.s', d1=56, d2=60)
    build('fused_dbg.s', dbg=True, d1=56, d2=60)
```

```python
from asmlib import *
from layout import *
import struct
def f2u(x): return struct.unpack('<I', struct.pack('<f', x))[0]

def row_sum(A, x, t):
    for d in ('row_ror:4', 'row_ror:8'):
        A(f'v_add_f32_dpp v{x}, v{x}, v{x} {d} row_mask:0xf bank_mask:0xf')
    for p in ('16', '32'):
        A(f'v_mov_b32 v{t}, v{x}')
        A(f'v_permlane{p}_swap_b32 v{x}, v{t}')
        A(f'v_add_f32 v{x}, v{x}, v{t}')

def rnd_bf16(A, x):
    A(f'v_cvt_pk_bf16_f32 v{x}, v{x}, v{x}')
    A(f'v_and_b32 v{x}, 0xffff0000, v{x}')

def gen_pre(name):
    A = Asm()
    X, U, D = 8, 24, 56
    A(f'''
    s_cmp_ge_u32 s2, 128
    s_cbranch_scc1 L_pre_exit
    s_load_dwordx4 s[12:15], s[0:1], 0
    s_load_dwordx2 s[16:17], s[0:1], 96
    v_lshrrev_b32 v1, 6, v0
    v_and_b32 v2, 3, v0
    v_lshl_add_u32 v1, v1, 2, v2
    v_bfe_u32 v2, v0, 2, 4
    v_lshlrev_b32 v3, 10, v1
    v_lshl_add_u32 v3, v2, 4, v3
    v_lshlrev_b32 v4, 8, v2
    v_lshl_add_u32 v4, v1, 4, v4
    s_lshl_b32 s3, s2, 14
    s_waitcnt lgkmcnt(0)
    s_mov_b32 s4, s16
    s_mov_b32 s5, s17
    s_mov_b32 s6, {WS_SIZE}
    s_mov_b32 s7, 0x20000
    s_mov_b32 s8, s12
    s_mov_b32 s9, s13
    s_mov_b32 s10, 0x200000
    s_mov_b32 s11, 0x20000
    s_mov_b32 s20, s14
    s_mov_b32 s21, s15
    s_mov_b32 s22, 8192
    s_mov_b32 s23, 0x20000
    ''')
    for i in range(4): A(f'buffer_load_dwordx4 v[{X+4*i}:{X+4*i+3}], v3, s[8:11], s3 offen offset:{i*256}')
    A(f'''
    v_lshlrev_b32 v5, 4, v0
    v_mov_b32 v{D}, -1
    v_mov_b32 v{D+1}, -1
    v_mov_b32 v{D+2}, -1
    v_mov_b32 v{D+3}, -1
    s_lshl_b32 s18, s2, 12
    s_add_u32 s19, s18, {WS_PART}
    buffer_store_dwordx4 v[{D}:{D+3}], v5, s[4:7], s19 offen
    s_cmp_ge_u32 s2, 4
    s_cbranch_scc1 L_pre_nf
    v_mov_b32 v{D+8}, 0
    v_mov_b32 v{D+9}, 0
    v_mov_b32 v{D+10}, 0
    v_mov_b32 v{D+11}, 0
    s_add_u32 s19, s18, {WS_FLAG}
    buffer_store_dwordx4 v[{D+8}:{D+11}], v5, s[4:7], s19 offen
L_pre_nf:
    v_lshlrev_b32 v5, 2, v0
    s_cmp_ge_u32 s2, 16
    s_cbranch_scc1 L_pre_ln
    s_lshl_b32 s18, s2, 10
    s_add_u32 s19, s18, {WS_MF}
    v_mov_b32 v6, -1
    s_cmp_ge_u32 s2, 8
    s_cbranch_scc1 L_pre_mf_store
    v_and_b32 v{D+4}, 1, v0
    v_lshlrev_b32 v{D+4}, 5, v{D+4}
    v_bfe_u32 v{D+5}, v0, 1, 1
    v_add_u32 v{D+4}, v{D+4}, v{D+5}
    v_lshrrev_b32 v{D+5}, 6, v0
    v_lshl_add_u32 v{D+4}, v{D+5}, 2, v{D+4}
    v_bfe_u32 v{D+5}, v0, 2, 1
    v_lshl_add_u32 v{D+4}, v{D+5}, 1, v{D+4}
    v_bfe_u32 v{D+5}, v0, 3, 3
    v_lshl_add_u32 v{D+4}, v{D+5}, 9, v{D+4}
    v_lshlrev_b32 v{D+4}, 1, v{D+4}
    s_and_b32 s24, s2, 3
    s_lshl_b32 s24, s24, 8
    s_lshr_b32 s25, s2, 2
    s_lshl_b32 s25, s25, 7
    s_add_u32 s24, s24, s25
    buffer_load_ushort v{D+6}, v{D+4}, s[20:23], s24 offen
    buffer_load_ushort v{D+7}, v{D+4}, s[20:23], s24 offen offset:32
    s_waitcnt vmcnt(0)
    v_lshl_or_b32 v6, v{D+7}, 16, v{D+6}
    v_min_u32 v6, 0xfffeffff, v6
L_pre_mf_store:
    buffer_store_dword v6, v5, s[4:7], s19 offen
L_pre_ln:
    s_waitcnt vmcnt(0)
    ''')
    def unpack():
        for i in range(16):
            A(f'v_lshlrev_b32 v{U+2*i}, 16, v{X+i}')
            A(f'v_and_b32 v{U+2*i+1}, 0xffff0000, v{X+i}')
    def pack():
        for i in range(16): A(f'v_cvt_pk_bf16_f32 v{X+i}, v{U+2*i}, v{U+2*i+1}')
    unpack()
    for i in range(16): A(f'v_add_f32 v{D+i}, v{U+i}, v{U+16+i}')
    for st in (8, 4, 2, 1):
        for i in range(st): A(f'v_add_f32 v{D+i}, v{D+i}, v{D+st+i}')
    A(f'v_mov_b32 v5, v{D}')
    row_sum(A, 5, 6)
    A(f'v_mul_f32 v5, {f2u(1/512)}, v5')
    for i in range(32): A(f'v_sub_f32 v{D+i}, v{U+i}, v5')
    A(f'v_mul_f32 v7, v{D}, v{D}\nv_mul_f32 v2, v{D+1}, v{D+1}')
    for i in range(2, 32): A(f'v_fmac_f32 v{(7, 2)[i & 1]}, v{D+i}, v{D+i}')
    A('v_add_f32 v7, v7, v2')
    row_sum(A, 7, 6)
    A(f'v_mul_f32 v7, {f2u(1/512)}, v7')
    rnd_bf16(A, 5); rnd_bf16(A, 7)
    A(f'v_add_f32 v7, {f2u(1e-5)}, v7')
    rnd_bf16(A, 7)
    A('v_sqrt_f32 v7, v7')
    rnd_bf16(A, 7)
    A('v_rcp_f32 v7, v7')
    for i in range(32): A(f'v_sub_f32 v{U+i}, v{U+i}, v5')
    pack(); unpack()
    for i in range(32): A(f'v_mul_f32 v{U+i}, v{U+i}, v7')
    pack()
    A(f's_add_u32 s3, s3, {WS_XN}')
    for i in range(4):
        A(f'buffer_store_dwordx4 v[{X+4*i}:{X+4*i+3}], v4, s[4:7], s3 offen')
        if i < 3: A('s_add_u32 s3, s3, 4096')
    A('L_pre_exit:\ns_endpgm')
    return kernel_head(name) + A.finalize(), kernel_desc(name, 88, 32, 88)
```

```python
from asmlib import *
from layout import *
import worker
import struct

def f2u(x): return struct.unpack('<I', struct.pack('<f', x))[0]

LDS_M, LDS_KX, LDS_XQ, LDS_XO, LDS_MISC = 0, 8192, 24576, 29184, 31744
REG_A, REG_B = 32768, 49152
XQP, XOP = 272, 272
SPIN_LIMIT = 1 << 20
EXP = {'pl2'}

(vIdx, vMw, vWkL, vXQw, vXQr, vXKr, vKXr, vVXg, vXOw, vXOr,
 vPs, vPl, vMs, vMask, vMr1, vMr2) = range(16)
SEL = 16
ONES = 20
vT0, vT1, vT2, vT3 = 24, 25, 26, 27
VX, MF, ACC, RING, SP = 28, 36, 68, 92, 124
Q0, K0, Q1, K1, V0, V1 = 68, 72, 76, 80, 84, 88
WK0, WO0 = 128, 192
sH, sWV, sStep, sTag, sCur0, sCur1, sNext, sKXo, sVXo, sKMo, sT0, sT1, sT2, sM0w = range(24, 38)
sC, sSpin, sXcc, sRank, sKXm = 44, 46, 47, 48, 49
sTb, sTa, sTg, sSent = 40, 41, 42, 43
sReady, sFlag, sProg = 38, 39, 27
sHw, sHr, sSt1 = 100, 101, 3
WS_HINT = WS_FLAG + 12288

def v(i, n=1): return f'v{i}' if n == 1 else f'v[{i}:{i+n-1}]'
def a_(i, n=1): return f'a{i}' if n == 1 else f'a[{i}:{i+n-1}]'
def s(i, n=1): return f's{i}' if n == 1 else f's[{i}:{i+n-1}]'

class Cnt:
    def __init__(self, A, name, mx): self.A, self.name, self.mx, self.n = A, name, mx, 0
    def issue(self, text):
        self.A(text); self.n += 1; return self.n
    def wait(self, tok):
        k = min(self.n - tok, self.mx)
        self.A(f's_waitcnt {self.name}({k})')
    def wait_all(self): self.A(f's_waitcnt {self.name}(0)')

def smf(A, d, a, b): A(f'v_smfmac_f32_16x16x64_bf16 {v(d,4)}, {v(a,4)}, {b}, {v(vIdx)}')

def ensure(A, tag, inline=False):
    A(f'''
    s_mov_b32 {s(sT2)}, 0
L_ens_{tag}:
    s_cmp_lt_u32 {s(sT1)}, {s(sReady)}
    s_cbranch_scc1 L_ensd_{tag}
    v_mbcnt_lo_u32_b32 {v(vT0)}, -1, 0
    v_mbcnt_hi_u32_b32 {v(vT0)}, -1, {v(vT0)}
    v_and_b32 {v(vT0)}, 15, {v(vT0)}
    v_lshlrev_b32 {v(vT0)}, 2, {v(vT0)}
    buffer_load_dword {v(vT1)}, {v(vT0)}, s[4:7], {s(sFlag)} offen sc0 sc1
    s_add_u32 {s(sT2)}, {s(sT2)}, 1
    s_cmp_lt_u32 {s(sT2)}, {SPIN_LIMIT}
    s_cbranch_scc0 L_rec_exit
    s_waitcnt vmcnt(0)
    v_and_b32 {v(vT1)}, 255, {v(vT1)}
    v_cmp_ne_u32 vcc, 2, {v(vT1)}
    s_or_b32 {s(sT0)}, vcc_lo, 0x10000
    s_ff1_i32_b32 {s(sReady)}, {s(sT0)}
    s_branch L_ens_{tag}
L_ensd_{tag}:
    ''')

def gen_rec(name, nwg=256, dbg=False, nsteps=NSEG, dl=(30, 70, 60, 20, 20, 0, 1, 1, 30), fused=False):
    A = Asm()
    vL = 99
    A(f'''
    s_cmp_ge_u32 s2, {nwg}
    s_cbranch_scc1 L_rec_exit
    {'s_memrealtime s[96:97]' if dbg else ''}
    s_load_dwordx8 s[16:23], s[0:1], 16
    s_load_dwordx4 s[36:39], s[0:1], 88
    s_load_dwordx2 s[50:51], s[0:1], 64
    v_lshrrev_b32 v1, 6, v0
    v_and_b32 {v(vL)}, 63, v0
    s_nop 0
    v_readfirstlane_b32 {s(sWV)}, v1
    s_waitcnt lgkmcnt(0)
    s_mov_b32 s4, s38
    s_mov_b32 s5, s39
    s_mov_b32 s6, {WS_SIZE}
    s_mov_b32 s7, 0x20000
    s_mov_b32 s8, s36
    s_mov_b32 s9, s37
    s_mov_b32 s10, 256
    s_mov_b32 s11, 0x20000
    s_mov_b32 s12, s16
    s_mov_b32 s13, s17
    s_mov_b32 s14, 0x400000
    s_mov_b32 s15, 0x20000
    s_cmp_lg_u32 {s(sWV)}, 0
    s_cbranch_scc1 L_rec_elected
    s_getreg_b32 {s(sXcc)}, hwreg(HW_REG_XCC_ID)
    s_and_b32 {s(sXcc)}, {s(sXcc)}, 15
    s_lshl_b32 {s(sT0)}, {s(sXcc)}, 2
    s_add_u32 {s(sXcc)}, {s(sXcc)}, 1
    v_mov_b32 v1, 1
    v_mov_b32 v2, {s(sT0)}
    v_mov_b32 v3, 64
    v_mov_b32 v6, 68
    s_mov_b64 exec, 1
    buffer_atomic_add v1, v2, s[8:11], 0 offen sc0
    s_waitcnt vmcnt(0)
    v_readfirstlane_b32 {s(sRank)}, v1
    s_mov_b32 {s(sSpin)}, 0
    s_cmp_lg_u32 {s(sRank)}, 31
    s_cbranch_scc1 L_rec_poll_w
    v_mov_b32 v4, {s(sXcc)}
    v_mov_b32 v5, 0
    buffer_atomic_cmpswap v[4:5], v3, s[8:11], 0 offen
L_rec_poll_w:
    buffer_load_dword v1, v3, s[8:11], 0 offen sc0 sc1
    s_waitcnt vmcnt(0)
    v_readfirstlane_b32 {s(sT0)}, v1
    s_cmp_lg_u32 {s(sT0)}, 0
    s_cbranch_scc1 L_rec_got_w
    s_add_u32 {s(sSpin)}, {s(sSpin)}, 1
    s_cmp_lt_u32 {s(sSpin)}, 20000
    s_cbranch_scc1 L_rec_poll_w
    v_mov_b32 v4, 99
    v_mov_b32 v5, 0
    buffer_atomic_cmpswap v[4:5], v3, s[8:11], 0 offen
    s_waitcnt vmcnt(0)
    s_branch L_rec_poll_w
L_rec_got_w:
    s_mov_b32 {s(sT1)}, -1
    s_cmp_eq_u32 {s(sT0)}, 99
    s_cbranch_scc1 L_rec_fallback
    s_cmp_lg_u32 {s(sT0)}, {s(sXcc)}
    s_cbranch_scc1 L_rec_role
    s_cmp_lt_u32 {s(sRank)}, 32
    s_cselect_b32 {s(sT1)}, {s(sRank)}, -1
    s_branch L_rec_role
L_rec_fallback:
    v_mov_b32 v1, 1
    buffer_atomic_add v1, v6, s[8:11], 0 offen sc0
    s_waitcnt vmcnt(0)
    v_readfirstlane_b32 {s(sT0)}, v1
    s_or_b32 {s(sT2)}, {s(sT0)}, 0x100
    s_cmp_lt_u32 {s(sT0)}, 32
    s_cselect_b32 {s(sT1)}, {s(sT2)}, -1
L_rec_role:
    v_mov_b32 v1, {s(sT1)}
    v_mov_b32 v2, {LDS_MISC}
    ds_write_b32 v2, v1
    s_mov_b64 exec, -1
    s_waitcnt lgkmcnt(0)
L_rec_elected:
    s_barrier
    v_mov_b32 v2, {LDS_MISC}
    ds_read_b32 v1, v2
    s_waitcnt lgkmcnt(0)
    v_readfirstlane_b32 {s(sRank)}, v1
    s_cmp_lt_i32 {s(sRank)}, 0
    s_cbranch_scc1 {'L_worker' if fused else 'L_rec_exit'}
    s_and_b32 {s(sH)}, {s(sRank)}, 31
    ''')
    if dbg: A('s_memrealtime s[74:75]\ns_waitcnt lgkmcnt(0)\ns_sub_u32 s98, s74, s96')
    tG, tR, tC, tF, tRow, tD0, tD1, tO0, tO1, tTr0, tTr1, tTrO, tA, tN, t7, tX, tY = range(100, 117)
    A(f'''
    v_lshrrev_b32 {v(tG)}, 4, {v(vL)}
    v_bfe_u32 {v(tR)}, {v(vL)}, 2, 2
    v_and_b32 {v(tC)}, 3, {v(vL)}
    v_and_b32 {v(tF)}, 1, {v(tG)}
    v_lshl_or_b32 {v(tF)}, {v(tF)}, 2, {v(tR)}
    v_lshl_add_u32 {v(tRow)}, {v(tG)}, 4, {v(tR)}
    v_lshlrev_b32 {v(tRow)}, 8, {v(tRow)}
    v_lshl_add_u32 {v(tRow)}, {v(tC)}, 3, {v(tRow)}
    s_lshl_b32 {s(sT0)}, {s(sWV)}, 1
    v_xor_b32 {v(tTr0)}, {s(sT0)}, {v(tF)}
    v_lshl_add_u32 {v(tTr0)}, {v(tTr0)}, 5, {v(tRow)}
    s_or_b32 {s(sT0)}, {s(sT0)}, 1
    v_xor_b32 {v(tTr1)}, {s(sT0)}, {v(tF)}
    v_lshl_add_u32 {v(tTr1)}, {v(tTr1)}, 5, {v(tRow)}
    s_lshl_b32 {s(sM0w)}, {s(sWV)}, 15
    v_add_u32 {v(tTrO)}, {s(sM0w)}, {v(tRow)}
    v_and_b32 {v(tN)}, 15, {v(vL)}
    v_lshlrev_b32 {v(vT1)}, 1, {v(tG)}
    v_xor_b32 {v(vT0)}, {v(tN)}, {v(vT1)}
    v_lshlrev_b32 {v(vT0)}, 4, {v(vT0)}
    v_xor_b32 {v(vT1)}, 0x80, {v(vT0)}
    v_lshrrev_b32 {v(vT2)}, 1, {v(tG)}
    v_and_b32 {v(vT3)}, 1, {v(tG)}
    ; D-type: (2*j1 + 16*j0)*8192 + h*256 + 128*w*8192
    v_lshlrev_b32 {v(tX)}, 14, {v(vT2)}
    v_lshl_add_u32 {v(tX)}, {v(vT3)}, 17, {v(tX)}
    s_lshl_b32 {s(sT0)}, {s(sWV)}, 20
    s_lshl_b32 {s(sT1)}, {s(sH)}, 8
    s_add_u32 {s(sT0)}, {s(sT0)}, {s(sT1)}
    v_add_u32 {v(tX)}, {s(sT0)}, {v(tX)}
    v_add_u32 {v(tD0)}, {v(tX)}, {v(vT0)}
    v_add_u32 {v(tD1)}, {v(tX)}, {v(vT1)}
    ; O-type: (32*j1 + j0)*1024 + h*131072 + w*256
    v_lshlrev_b32 {v(tX)}, 15, {v(vT2)}
    v_lshl_add_u32 {v(tX)}, {v(vT3)}, 10, {v(tX)}
    s_lshl_b32 {s(sT0)}, {s(sH)}, 17
    s_lshl_b32 {s(sT1)}, {s(sWV)}, 8
    s_add_u32 {s(sT0)}, {s(sT0)}, {s(sT1)}
    v_add_u32 {v(tX)}, {s(sT0)}, {v(tX)}
    v_add_u32 {v(tO0)}, {v(tX)}, {v(vT0)}
    v_add_u32 {v(tO1)}, {v(tX)}, {v(vT1)}
    ''')
    units = [('q', 0), ('q', 1), ('v', 0), ('v', 1), ('k', 0), ('o', 0), ('k', 1), ('o', 1)]
    PT = {'q': 16, 'k': 18, 'v': 20, 'o': 22}
    def dma_unit(u):
        mat, hi = units[u]; reg = (REG_A, REG_B)[u & 1]
        A(f's_mov_b32 s12, s{PT[mat]}\ns_mov_b32 s13, s{PT[mat]+1}')
        for ii in range(16):
            gb, j = ii >> 2, (ii & 3) * 4
            if mat == 'o': so = e_of(hi, gb, j) * 1024; vo = (tO0, tO1)[gb & 1]
            else: so = (d_of(0, gb, j) + 64 * hi) * 8192; vo = (tD0, tD1)[gb & 1]
            A(f's_add_u32 m0, {s(sM0w)}, {reg + ii * 1024}')
            A(f's_mov_b32 {s(sT0)}, {so}')
            A(f'buffer_load_dwordx4 {v(vo)}, s[12:15], {s(sT0)} offen lds')
    TMPF = 28
    def dest(u, f):
        mat, hi = units[u]
        if u >= 6: return ('v', TMPF + f * 8)
        if mat == 'q': return ('a', (hi * 8 + f) * 8)
        if mat == 'v': return ('a', 128 + (hi * 8 + f) * 8)
        if mat == 'k': return ('v', WK0 + f * 8)
        return ('v', WO0 + f * 8)
    def read_unit(u):
        mat, hi = units[u]; reg = (REG_A, REG_B)[u & 1]
        for f in range(8):
            if mat == 'o':
                A(f'v_xor_b32 {v(tA)}, {f}, {v(tF)}')
                A(f'v_lshl_add_u32 {v(tA)}, {v(tA)}, 5, {v(tTrO)}')
                A(f'v_add_u32 {v(tA)}, {reg}, {v(tA)}')
            else:
                lam, tt = f >> 1, f & 1
                A(f's_xor_b32 {s(sT0)}, {s(sWV)}, {lam}')
                A(f's_lshl_b32 {s(sT0)}, {s(sT0)}, 15')
                A(f's_add_u32 {s(sT0)}, {s(sT0)}, {reg}')
                A(f'v_add_u32 {v(tA)}, {s(sT0)}, {v((tTr0, tTr1)[tt])}')
            fl, d = dest(u, f)
            for t in range(4):
                A(f'ds_read_b64_tr_b16 {fl}[{d+2*t}:{d+2*t+1}], {v(tA)} offset:{t*1024}')
    dma_unit(0); dma_unit(1)
    A(f'''
    v_lshlrev_b32 {v(vT0)}, 4, {v(vL)}
    v_and_b32 {v(vT1)}, 1, {v(vL)}
    v_mov_b32 {v(vIdx)}, 0xffff4444
    v_mov_b32 {v(vT2)}, 0xffffeeee
    v_cmp_ne_u32 vcc, 0, {v(vT1)}
    v_cndmask_b32 {v(vIdx)}, {v(vIdx)}, {v(vT2)}, vcc
    s_lshl_b32 {s(sT0)}, {s(sWV)}, 10
    v_add_u32 {v(vMw)}, {s(sT0)}, {v(vT0)}
    s_add_u32 {s(sT1)}, {s(sM0w)}, {REG_A}
    v_add_u32 {v(vWkL)}, {s(sT1)}, {v(vT0)}
    v_add_u32 {v(vKXr)}, {LDS_KX}, {v(vT0)}
    v_and_b32 {v(t7)}, 7, {v(vL)}
    s_lshl_b32 {s(sT1)}, {s(sWV)}, 6
    v_mul_u32_u24 {v(vXQw)}, {4*XQP}, {v(tG)}
    v_lshl_add_u32 {v(vXQw)}, {v(tN)}, 2, {v(vXQw)}
    s_add_u32 {s(sT2)}, {s(sT1)}, {LDS_XQ}
    v_add_u32 {v(vXQw)}, {s(sT2)}, {v(vXQw)}
    v_mul_u32_u24 {v(vXQr)}, {2*XQP}, {v(t7)}
    v_lshl_add_u32 {v(vXQr)}, {v(tG)}, 4, {v(vXQr)}
    v_add_u32 {v(vXQr)}, {LDS_XQ}, {v(vXQr)}
    v_lshrrev_b32 {v(tX)}, 2, {v(tN)}
    v_lshl_add_u32 {v(tX)}, {v(tX)}, 1, {v(vT1)}
    v_mul_u32_u24 {v(vXKr)}, {2*XQP}, {v(tX)}
    v_lshl_add_u32 {v(vXKr)}, {v(tG)}, 4, {v(vXKr)}
    v_add_u32 {v(vXKr)}, {LDS_XQ + XQP}, {v(vXKr)}
    v_mul_u32_u24 {v(vXOw)}, {XOP}, {v(t7)}
    v_lshl_add_u32 {v(vXOw)}, {v(tG)}, 4, {v(vXOw)}
    s_add_u32 {s(sT2)}, {s(sT1)}, {LDS_XO}
    v_add_u32 {v(vXOw)}, {s(sT2)}, {v(vXOw)}
    v_lshrrev_b32 {v(tX)}, 1, {v(tN)}
    v_mul_u32_u24 {v(vXOr)}, {XOP}, {v(tX)}
    v_lshl_add_u32 {v(vXOr)}, {v(tG)}, 4, {v(vXOr)}
    v_lshl_add_u32 {v(vXOr)}, {v(vT1)}, 6, {v(vXOr)}
    v_add_u32 {v(vXOr)}, {LDS_XO}, {v(vXOr)}
    v_xor_b32 {v(vMr1)}, 1024, {v(vMw)}
    v_xor_b32 {v(vMr2)}, 2048, {v(vMw)}
    v_mov_b32 {v(vMask)}, 0xfffe0000
    v_lshlrev_b32 {v(vVXg)}, 6, {v(tN)}
    v_lshl_add_u32 {v(vVXg)}, {v(tG)}, 4, {v(vVXg)}
    s_lshl_b32 {s(sT2)}, {s(sH)}, 13
    s_lshl_b32 {s(sT0)}, {s(sWV)}, 11
    s_add_u32 {s(sT2)}, {s(sT2)}, {s(sT0)}
    s_add_u32 {s(sT2)}, {s(sT2)}, {WS_VT}
    v_add_u32 {v(vVXg)}, {s(sT2)}, {v(vVXg)}
    v_lshrrev_b32 {v(vPs)}, 2, {v(tN)}
    v_lshlrev_b32 {v(vPs)}, 14, {v(vPs)}
    v_lshrrev_b32 {v(tX)}, 5, {v(vL)}
    v_lshl_add_u32 {v(vPs)}, {v(tX)}, 13, {v(vPs)}
    v_and_b32 {v(tX)}, 1, {v(tG)}
    v_lshl_add_u32 {v(vPs)}, {v(tX)}, {11 if 'pl2' in EXP else 6}, {v(vPs)}
    v_lshl_add_u32 {v(vPs)}, {v(tC)}, 4, {v(vPs)}
    s_lshl_b32 {s(sT2)}, {s(sWV)}, 16
    s_lshl_b32 {s(sT0)}, {s(sH)}, {6 if 'pl2' in EXP else 8}
    s_add_u32 {s(sT2)}, {s(sT2)}, {s(sT0)}
    s_add_u32 {s(sT2)}, {s(sT2)}, {WS_PART}
    v_add_u32 {v(vPs)}, {s(sT2)}, {v(vPs)}
    v_lshlrev_b32 {v(vPl)}, {6 if 'pl2' in EXP else 11}, {v(tR)}
    v_lshl_add_u32 {v(vPl)}, {v(tG)}, {8 if 'pl2' in EXP else 9}, {v(vPl)}
    v_lshl_add_u32 {v(vPl)}, {v(tC)}, 4, {v(vPl)}
    s_lshl_b32 {s(sT2)}, {s(sH)}, 13
    s_lshl_b32 {s(sT0)}, {s(sWV)}, {11 if 'pl2' in EXP else 6}
    s_add_u32 {s(sT2)}, {s(sT2)}, {s(sT0)}
    s_add_u32 {s(sT2)}, {s(sT2)}, {WS_PART}
    v_add_u32 {v(vPl)}, {s(sT2)}, {v(vPl)}
    v_bfe_u32 {v(vMs)}, {v(vL)}, 2, 1
    v_lshlrev_b32 {v(vMs)}, 5, {v(vMs)}
    v_lshl_add_u32 {v(vMs)}, {v(tG)}, 3, {v(vMs)}
    v_bfe_u32 {v(tX)}, {v(vL)}, 1, 1
    v_lshl_add_u32 {v(vMs)}, {v(tX)}, 2, {v(vMs)}
    s_lshl_b32 {s(sT2)}, {s(sH)}, 7
    s_lshr_b32 {s(sT0)}, {s(sWV)}, 1
    s_lshl_b32 {s(sT0)}, {s(sT0)}, 12
    s_add_u32 {s(sT2)}, {s(sT2)}, {s(sT0)}
    s_and_b32 {s(sT0)}, {s(sWV)}, 1
    s_lshl_b32 {s(sT0)}, {s(sT0)}, 6
    s_add_u32 {s(sT2)}, {s(sT2)}, {s(sT0)}
    v_add_u32 {v(vMs)}, {s(sT2)}, {v(vMs)}
    v_and_b32 {v(tX)}, 9, {v(vL)}
    v_cmp_ne_u32 vcc, 0, {v(tX)}
    v_mov_b32 {v(tX)}, 0x7ffffff0
    v_cndmask_b32 {v(vMs)}, {v(vMs)}, {v(tX)}, vcc
    ; SEL[d] = ((l&7)>>1 == d) ? ((l&1) ? 0x3f800000 : 0x00003f80) : 0
    v_lshlrev_b32 {v(tX)}, 4, {v(vT1)}
    v_mov_b32 {v(tY)}, 0x3f80
    v_lshlrev_b32 {v(tY)}, {v(tX)}, {v(tY)}
    v_lshrrev_b32 {v(tX)}, 1, {v(t7)}
    v_cmp_eq_u32 vcc, 0, {v(tX)}
    v_cndmask_b32 {v(SEL)}, 0, {v(tY)}, vcc
    v_cmp_eq_u32 vcc, 1, {v(tX)}
    v_cndmask_b32 {v(SEL+1)}, 0, {v(tY)}, vcc
    v_cmp_eq_u32 vcc, 2, {v(tX)}
    v_cndmask_b32 {v(SEL+2)}, 0, {v(tY)}, vcc
    v_cmp_eq_u32 vcc, 3, {v(tX)}
    v_cndmask_b32 {v(SEL+3)}, 0, {v(tY)}, vcc
    s_mov_b32 {s(sC)}, {f2u(SM_C)}
    s_mov_b32 {s(sSent)}, 0xfffeffff
    s_mov_b32 {s(sC+1)}, {f2u(SM_C)}
    v_mov_b32 {v(ONES)}, 0x3f803f80
    v_mov_b32 {v(ONES+1)}, 0x3f803f80
    v_mov_b32 {v(ONES+2)}, 0x3f803f80
    v_mov_b32 {v(ONES+3)}, 0x3f803f80
    ''')
    for u in range(8):
        A(f's_waitcnt vmcnt({16 if u < 7 else 0})')
        A('s_barrier')
        read_unit(u)
        A('s_waitcnt lgkmcnt(0)')
        A('s_barrier')
        if u + 2 < 8: dma_unit(u + 2)
        if u >= 6:
            for f in range(8):
                for hf in range(2):
                    A(f'ds_write_b128 {v(vWkL)}, {v(TMPF + f*8 + hf*4, 4)} offset:{(u-6)*16384 + f*2048 + hf*1024}')
            A('s_waitcnt lgkmcnt(0)')
    if dbg: A('s_memrealtime s[74:75]\ns_waitcnt lgkmcnt(0)\ns_sub_u32 s99, s74, s96')
    A(f'''
    s_mov_b32 {s(sStep)}, 0
    s_mov_b32 {s(sTg)}, 0
    s_mov_b32 {s(sTb)}, 0
    s_mov_b32 {s(sTa)}, 0x10000
    s_mov_b32 {s(sCur0)}, {WS_MF}
    s_mov_b32 {s(sCur1)}, {WS_MF + 4096}
    s_mov_b32 {s(sNext)}, {WS_MF + 8192}
    s_lshl_b32 {s(sKXo)}, {s(sH)}, 12
    s_add_u32 {s(sKMo)}, {s(sKXo)}, {WS_KM}
    s_add_u32 {s(sKXo)}, {s(sKXo)}, {WS_K}
    s_mov_b32 {s(sVXo)}, 0
    s_lshl_b32 {s(sKXm)}, {s(sWV)}, 10
    s_add_u32 {s(sKXm)}, {s(sKXm)}, {LDS_KX}
    s_mov_b32 {s(sReady)}, {0 if fused else 16}
    s_lshr_b32 {s(sFlag)}, {s(sH)}, 1
    s_lshl_b32 {s(sFlag)}, {s(sFlag)}, 6
    s_add_u32 {s(sFlag)}, {s(sFlag)}, {WS_FLAG}
    s_lshl_b32 {s(sProg)}, {s(sH)}, 7
    s_add_u32 {s(sProg)}, {s(sProg)}, {worker.F_PROG}
    s_cmp_eq_u32 {s(sWV)}, 0
    s_cselect_b32 {s(sProg)}, {s(sProg)}, 0x7ffffff0
    s_lshl_b32 {s(sHw)}, {s(sH)}, 2
    s_add_u32 {s(sHw)}, {s(sHw)}, {WS_HINT}
    s_cmp_eq_u32 {s(sWV)}, 0
    s_cselect_b32 {s(sHw)}, {s(sHw)}, 0x7ffffff0
    s_lshl_b32 {s(sHr)}, {s(sH)}, 7
    s_add_u32 {s(sHr)}, {s(sHr)}, {WS_HINT}
    {'s_mov_b32 s101, 4096' if 'pl2' in EXP else ''}
    s_mov_b32 {s(sT1)}, 0
    ''')
    ensure(A, 'p', inline=True)
    A(f'''
    s_mov_b32 m0, {s(sKXm)}
    s_add_u32 {s(sT0)}, {s(sKXo)}, {16*8192}
    buffer_load_dwordx4 {v(vMw)}, s[4:7], {s(sKXo)} offen sc1 lds
    s_add_u32 m0, {s(sKXm)}, 4096
    s_nop 0
    buffer_load_dwordx4 {v(vMw)}, s[4:7], {s(sT0)} offen sc1 lds
    s_add_u32 {s(sKXo)}, {s(sKXo)}, {32*8192}
    s_xor_b32 {s(sKXm)}, {s(sKXm)}, {LDS_KX ^ (LDS_KX + 8192)}
    ''')
    if dbg:
        for i in range(76, 90): A(f's_mov_b32 s{i}, 0')
        A('s_memrealtime s[92:93]\ns_memtime s[94:95]\ns_waitcnt lgkmcnt(0)\ns_mov_b32 s90, s92\ns_mov_b32 s91, s94\ns_sub_u32 s97, s92, s96')
    A(f'''
    s_bitcmp1_b32 {s(sRank)}, 8
    s_cbranch_scc1 L_rec_slow_entry
    ''')
    gen_loop(A, 'f', '', dbg, nsteps, dl)
    A.label('L_rec_slow_entry')
    gen_loop(A, 's', ' sc1', dbg, nsteps, dl)
    A.label('L_rec_fin')
    A(f'v_mov_b32 {v(vT0)}, {nsteps}\ns_waitcnt vmcnt(0)\ns_barrier\nbuffer_store_dword {v(vT0)}, off, s[4:7], {s(sProg)} sc1')
    if dbg:
        A(f'''
        s_memrealtime s[92:93]
        s_memtime s[94:95]
        s_waitcnt lgkmcnt(0)
        s_sub_u32 s90, s92, s90
        s_sub_u32 s91, s94, s91
        s_lshl_b32 {s(sT0)}, {s(sH)}, 2
        s_add_u32 {s(sT0)}, {s(sT0)}, {s(sWV)}
        s_lshl_b32 {s(sT0)}, {s(sT0)}, 6
        s_add_u32 {s(sT0)}, {s(sT0)}, {WS_DBG}
        v_mov_b32 v30, 0
        ''')
        A('s_lshl_b32 s98, s98, 20\ns_lshl_b32 s99, s99, 10\ns_or_b32 s87, s98, s99\ns_lshr_b32 s97, s97, 2\ns_or_b32 s87, s87, s97')
        if dbg == 2: A('s_mov_b32 s87, s74')
        for i in range(16):
            A(f'v_mov_b32 v31, s{76+i}\nbuffer_store_dword v31, v30, s[4:7], {s(sT0)} offen offset:{4*i}')
    A.label('L_rec_exit')
    A('s_endpgm')
    if fused: worker.gen_worker(A, sWV)
    return kernel_head(name) + A.finalize(), kernel_desc(name, 512, 102, 256)

def gen_loop(A, sfx, stf, dbg, nsteps, dl):
    d1a, d1b, d2a, d2b, ps, nd, e2, e3, ef = dl
    L = Cnt(A, 'lgkmcnt', 15); V = Cnt(A, 'vmcnt', 63)
    def stamp(i):
        if dbg: A(f's_mem{"real" if dbg == 2 else ""}time s[{52+2*i}:{53+2*i}]')
    def delay(n):
        while n > 0:
            k = min(n, 16); A(f's_nop {k-1}'); n -= k
    def wdelay(tag, na, nb):
        delay(min(na, nb))
        if na != nb:
            A(f's_cmp_lt_u32 {s(sWV)}, 2\ns_cbranch_scc{1 if na < nb else 0} L_wd{tag}_{sfx}')
            delay(abs(na - nb))
            A.label(f'L_wd{tag}_{sfx}')
    def zero(base, n):
        for i in range(0, n, 2): A(f'v_mov_b64 {v(base+i,2)}, 0')
    def ring_prefetch():
        for f in range(4):
            for hf in range(2):
                L.issue(f'ds_read_b128 {v(RING + f*8 + hf*4, 4)}, {v(vWkL)} offset:{f*2048 + hf*1024}')
    GA = (MF, VX, VX + 4)
    GB = (MF + 16, VX, VX + 4)
    RS = (MF + 20, MF + 4, MF + 12)
    sF = 50
    def gatherA(k=0): return V.issue(f'buffer_load_dwordx4 {v(GA[k],4)}, {v(vMw)}, s[4:7], {s(sCur0)} offen sc1')
    def gatherB(k=0): return V.issue(f'buffer_load_dwordx4 {v(GB[k],4)}, {v(vMw)}, s[4:7], {s(sCur1)} offen sc1')
    def poll_tail(tag, per, sets, nreg, issue, check, finish, blind=0):
        A.label(f'L_{tag}f0_{sfx}')
        A(f's_mov_b64 exec, vcc\ns_mov_b64 {s(sF,2)}, vcc')
        if blind == 0: issue(1); delay(ps)
        if blind <= 1: issue(2)
        A.label(f'L_{tag}l_{sfx}')
        for k in (1, 2):
            A(f's_add_u32 {s(sSpin)}, {s(sSpin)}, 1')
            A(f's_waitcnt vmcnt({per})')
            check(k)
            A(f's_andn2_b64 exec, {s(sF,2)}, vcc')
            for i in range(0, nreg, 2): A(f'v_mov_b64 {v(sets[0]+i,2)}, {v(sets[k]+i,2)}')
            A(f's_and_b64 {s(sF,2)}, {s(sF,2)}, vcc')
            A(f's_cbranch_scc0 L_{tag}d_{sfx}')
            A(f's_mov_b64 exec, {s(sF,2)}')
            issue(k)
        A(f's_cmp_lt_u32 {s(sSpin)}, {SPIN_LIMIT}\ns_cbranch_scc1 L_{tag}l_{sfx}\ns_endpgm')
        A.label(f'L_{tag}d_{sfx}')
        A('s_mov_b64 exec, -1')
        finish()
    def add(d, x, y): A(f'v_add_f32 {v(d)}, {v(x)}, {v(y)}')
    def cvt(d, x, y): A(f'v_cvt_pk_bf16_f32 {v(d)}, {v(x)}, {v(y)}')
    def wq(o, tt): return a_((o * 2 + tt) * 8, 8)
    def wv(o, tt): return a_(128 + (o * 2 + tt) * 8, 8)
    def wk(o, tt):
        lam, hi = o & 3, o >> 2
        return v(WK0 + (lam * 2 + tt) * 8, 8) if hi == 0 else v(RING + ((lam * 2 + tt) & 3) * 8, 8)
    QA, KA, VA = (Q0, Q1), (K0, K1), (V0, V1)
    def mq(o, tt): smf(A, QA[tt], MF + 4 * o, wq(o, tt))
    def mk(o, tt): smf(A, KA[tt], MF + 4 * o, wk(o, tt))
    def mv(o, tt): smf(A, VA[tt], MF + 4 * o, wv(o, tt))
    def chkA(k=0): A(f'v_cmp_lt_u32 vcc, {s(sSent)}, {v(GA[k])}')
    def chkB(k=0): A(f'v_cmp_lt_u32 vcc, {s(sSent)}, {v(GB[k])}')
    ring_prefetch(); zero(ACC, 24)
    A(f's_mov_b32 {s(sSpin)}, 0')
    for k in range(e3 + 1): gatherA(k)
    if nd == 2: gatherB()
    A.label(f'L_loop_{sfx}')
    A(f's_waitcnt vmcnt({e3 + (nd == 2)})')
    chkA()
    L.issue(f'ds_write_b128 {v(vMw)}, {v(MF,4)}')
    A(f's_cbranch_vccnz L_af0_{sfx}')
    A.label(f'L_aok_{sfx}')
    if nd == 0: gatherB()
    stamp(0)
    mq(0, 0)
    A(f'v_xor_b32 {v(vT3)}, 3072, {v(vMw)}')
    mk(0, 0); mq(0, 1); mk(0, 1)
    L.wait_all()
    A('s_barrier')
    stamp(1)
    MR = {1: vMr1, 2: vMr2, 3: vT3}
    mft = {}
    def mfread(o):
        lam, hi = o & 3, o >> 2
        mft[o] = L.issue(f'ds_read_b128 {v(MF + 4*o, 4)}, {v(MR[lam])} offset:{hi*4096}')
    mfread(1); mfread(2); mfread(3)
    mv(0, 0)
    if nd == 1: gatherB()
    mv(0, 1)
    L.wait(mft[1])
    mq(1, 0); mk(1, 0); mq(1, 1); mk(1, 1)
    L.wait(mft[2])
    mq(2, 0); mk(2, 0); mq(2, 1); mk(2, 1)
    L.wait_all()
    mq(3, 0)
    if nd == 1: mk(3, 0); mq(3, 1); mk(3, 1)
    A('s_waitcnt vmcnt(0)')
    chkB()
    L.issue(f'ds_write_b128 {v(vMw)}, {v(MF+16,4)} offset:4096')
    A(f's_cbranch_vccnz L_bf0_{sfx}')
    A.label(f'L_bok_{sfx}')
    if dbg == 1: A(f's_add_u32 s88, s88, {s(sSpin)}')
    if dbg == 2: stamp(2)
    if nd != 1: mk(3, 0); mq(3, 1); mk(3, 1)
    else: mv(1, 0); mv(1, 1); mv(2, 0)
    mq(4, 0)
    L.wait_all()
    A('s_barrier')
    rt = {}
    def refill(lam, tt, hf):
        f = lam * 2 + tt
        rt[(lam, tt)] = L.issue(f'ds_read_b128 {v(RING + (f & 3)*8 + hf*4, 4)}, {v(vWkL)} offset:{f*2048 + hf*1024}')
    kxt = {}
    def kxload(i):
        kxt[i] = L.issue(f'ds_read_b128 {v(RING + 4*i, 4)}, {v(vKXr)} offset:{i*1024}')
    mfread(5); mfread(6); mfread(7)
    mk(4, 0); refill(2, 0, 0)
    mq(4, 1); refill(2, 0, 1)
    mk(4, 1); refill(2, 1, 0)
    (mv(1, 0) if nd != 1 else mv(2, 1)); refill(2, 1, 1)
    V.issue(f'buffer_store_dword {v(vIdx)}, {v(vMs)}, s[4:7], {s(sNext)} offen{stf}')
    L.wait(mft[5])
    mq(5, 0)
    V.issue(f'buffer_load_dwordx4 {v(VX,4)}, {v(vVXg)}, s[4:7], {s(sVXo)} offen sc1')
    mk(5, 0); refill(3, 0, 0)
    mq(5, 1); refill(3, 0, 1)
    mk(5, 1); refill(3, 1, 0)
    L.wait(rt[(2, 0)])
    mq(6, 0); refill(3, 1, 1)
    mk(6, 0); kxload(0)
    tvx = V.issue(f'buffer_load_dwordx4 {v(VX+4,4)}, {v(vVXg)}, s[4:7], {s(sVXo)} offen offset:1024 sc1')
    mq(7, 0); kxload(1)
    L.wait(rt[(3, 0)])
    mk(7, 0); kxload(4)
    mq(6, 1); kxload(5)
    mk(6, 1); add(Q0, Q0, Q0 + 1)
    L.wait(rt[(3, 1)])
    mq(7, 1); add(Q0 + 1, Q0 + 2, Q0 + 3)
    mk(7, 1)
    if dbg != 2: stamp(2)
    add(K0, K0, K0 + 1); add(K0 + 1, K0 + 2, K0 + 3)
    add(Q1, Q1, Q1 + 1); add(Q1 + 1, Q1 + 2, Q1 + 3)
    cvt(vT0, Q0, Q1); cvt(vT1, Q0 + 1, Q1 + 1)
    L.issue(f'ds_write2_b32 {v(vXQw)}, {v(vT0)}, {v(vT1)} offset0:0 offset1:{2*XQP//4}')
    add(K1, K1, K1 + 1); add(K1 + 1, K1 + 2, K1 + 3)
    cvt(SP + 1, K0, K1); cvt(SP + 3, K0 + 1, K1 + 1)
    L.issue(f'ds_write2_b32 {v(vXQw)}, {v(SP+1)}, {v(SP+3)} offset0:{XQP//4} offset1:{3*XQP//4}')
    VL = [(o, t) for o in range(8) for t in range(2)][(3 if nd != 1 else 6):]
    def nv():
        if VL: mv(*VL.pop(0))
    nv(); kxload(2)
    nv(); kxload(3)
    nv(); kxload(6)
    nv(); kxload(7)
    nv()
    L.wait_all()
    A('s_barrier')
    stamp(3)
    if 'trace' in EXP: A('s_memrealtime s[52:53]')
    QF, KMF, SA = ACC, MF, MF + 16
    qt, kt = {}, {}
    def qread(ks): qt[ks] = L.issue(f'ds_read_b128 {v(QF + 4*ks, 4)}, {v(vXQr)} offset:{ks*64}')
    def kread(ks): kt[ks] = L.issue(f'ds_read_b128 {v(KMF + 4*ks, 4)}, {v(vXKr)} offset:{ks*64}')
    qread(0); qread(1)
    nv(); qread(2)
    nv(); qread(3)
    nv(); kread(0)
    nv(); kread(1)
    nv(); kread(2)
    nv(); kread(3)
    nv()
    A(f's_mov_b32 m0, {s(sKXm)}')
    nv()
    TX0, TX1, TM = SA, SA + 4, SA + 8
    def mm(d, a, b, c, k=32):
        n = 4 if k == 32 else 2
        A(f'v_mfma_f32_16x16x{k}_bf16 {v(d,4)}, {v(a,n)}, {v(b,n)}, {c}')
    L.wait(qt[3])
    for ks in range(4):
        mm(TX0, RING + 4 * ks, QF + 4 * ks, '0' if ks == 0 else v(TX0, 4))
        if ks == 0 and 'nodma' not in EXP: V.issue(f'buffer_load_dwordx4 {v(vMw)}, s[4:7], {s(sKXo)} offen sc1 lds')
        if ks == 1 and 'nodma' not in EXP: V.issue(f'buffer_load_dwordx4 {v(vMw)}, s[4:7], {s(sT0)} offen sc1 lds')
        if ks == 2: add(V0, V0, V0 + 1); add(V0 + 1, V0 + 2, V0 + 3)
        if ks == 3: cvt(SP, V0, V0 + 1); cvt(SP + 2, V1, V1 + 1)
        mm(TX1, RING + 16 + 4 * ks, QF + 4 * ks, '0' if ks == 0 else v(TX1, 4))
        if ks == 0: A(f's_add_u32 m0, {s(sKXm)}, 4096\ns_add_u32 {s(sT0)}, {s(sKXo)}, {16*8192}')
        if ks == 1: A(f'v_mov_b32 {v(vT0)}, {s(sStep)}')
        if ks == 2: add(V1, V1, V1 + 1); add(V1 + 1, V1 + 2, V1 + 3)
    L.wait(kt[3])
    M_, T_ = vT2, vT3
    mm(TM, KMF, QF, '0')
    if 'nokv' not in EXP: V.issue(f'buffer_store_dwordx4 {v(SP,4)}, {v(vMw)}, s[4:7], {s(sKMo)} offen sc1')
    mm(TM, KMF + 4, QF + 4, v(TM, 4))
    if 'nokv' not in EXP: V.issue(f'buffer_store_dword {v(vT0)}, off, s[4:7], {s(sProg)} sc1')
    if 'trace' in EXP:
        A(f's_lshl_b32 s54, {s(sH)}, 8\ns_lshl_b32 s55, {s(sStep)}, 2\ns_add_u32 s54, s54, s55\ns_add_u32 s54, s54, {WS_DBG + 65536}\ns_cmp_eq_u32 {s(sWV)}, 0\ns_cselect_b32 s54, s54, 0x7ffffff0\nv_mov_b32 {v(vT1)}, s52')
        V.issue(f'buffer_store_dword {v(vT1)}, off, s[4:7], s54')
    A(f's_cmp_eq_u32 {s(sStep)}, {nsteps-1}')
    mm(TM, KMF + 8, QF + 8, v(TM, 4))
    A(f'v_max3_f32 {v(M_)}, {v(TX0)}, {v(TX0+1)}, {v(TX0+2)}')
    A(f'v_max3_f32 {v(T_)}, {v(TX0+3)}, {v(TX1)}, {v(TX1+1)}')
    mm(TM, KMF + 12, QF + 12, v(TM, 4))
    A(f's_cbranch_scc1 L_rec_fin')
    stamp(4)
    wt = {}
    def wofill(T, hf):
        wt[T] = L.issue(f'ds_read_b128 {v(MF + (T & 3)*8 + hf*4, 4)}, {v(vWkL)} offset:{16384 + T*2048 + hf*1024}')
    PM, PX = ACC, ACC + 4
    OL, O0_, O1_ = ACC + 8, V0, V1
    A(f'''
    v_max3_f32 {v(M_)}, {v(M_)}, {v(TX1+2)}, {v(TX1+3)}
    v_max_f32 {v(M_)}, {v(M_)}, {v(T_)}
    ''')
    wofill(0, 0); wofill(0, 1); wofill(1, 0); wofill(1, 1)
    A(f'''
    v_max3_f32 {v(T_)}, {v(M_)}, {v(TM)}, {v(TM+1)}
    v_max3_f32 {v(M_)}, {v(M_)}, {v(TM)}, {v(TM+1)}
    v_mov_b32 {v(PM+1)}, 0
    v_permlane32_swap_b32 {v(M_)}, {v(T_)}
    v_max_f32 {v(vT0)}, {v(M_)}, {v(T_)}
    v_max_f32 {v(vT1)}, {v(M_)}, {v(T_)}
    v_permlane16_swap_b32 {v(vT0)}, {v(vT1)}
    v_max_f32 {v(M_)}, {v(vT0)}, {v(vT1)}
    v_mul_f32 {v(M_)}, {s(sC)}, {v(M_)}
    ''')
    def pkf(x): A(f'v_pk_fma_f32 {v(x,2)}, {v(x,2)}, {s(sC,2)}, {v(M_,2)} op_sel_hi:[1,1,0] neg_lo:[0,0,1] neg_hi:[0,0,1]')
    def ex(x): A(f'v_exp_f32 {v(x)}, {v(x)}')
    pkf(TM); pkf(TX0); pkf(TX0 + 2); pkf(TX1); pkf(TX1 + 2)
    ex(TM); ex(TM + 1); ex(TX0)
    cvt(PM, TM, TM + 1)
    ex(TX0 + 1); ex(TX0 + 2)
    mm(OL, ONES, PM, '0', 16)
    ex(TX0 + 3); cvt(PX, TX0, TX0 + 1)
    mm(O0_, SP, PM, '0', 16)
    ex(TX1); cvt(PX + 1, TX0 + 2, TX0 + 3)
    mm(O1_, SP + 2, PM, '0', 16)
    ex(TX1 + 1); ex(TX1 + 2); ex(TX1 + 3)
    cvt(PX + 2, TX1, TX1 + 1); cvt(PX + 3, TX1 + 2, TX1 + 3)
    stamp(5)
    V.wait(tvx)
    mm(OL, ONES, PX, v(OL, 4))
    wofill(2, 0); wofill(2, 1)
    mm(O0_, VX, PX, v(O0_, 4))
    wofill(3, 0); wofill(3, 1)
    mm(O1_, VX + 4, PX, v(O1_, 4))
    WA = RING
    A(f'v_rcp_f32 {v(M_)}, {v(OL)}')
    zero(WA, 2)
    OX = ACC + 12
    def mul(x): A(f'v_mul_f32 {v(x)}, {v(M_)}, {v(x)}')
    for r in range(4): mul(O0_ + r)
    cvt(OX, O0_, O0_ + 1); cvt(OX + 1, O0_ + 2, O0_ + 3)
    for r in range(4): mul(O1_ + r)
    cvt(OX + 2, O1_, O1_ + 1); cvt(OX + 3, O1_ + 2, O1_ + 3)
    L.issue(f'ds_write_b128 {v(vXOw)}, {v(OX,4)}')
    zero(WA + 2, 30)
    if 'hint' in EXP:
        A(f'''
        s_add_u32 {s(sSt1)}, {s(sStep)}, 1
        v_and_b32 {v(ACC+8)}, 0x1f0, {v(vMw)}
        v_lshrrev_b32 {v(vT3)}, 2, {v(ACC+8)}
        v_lshlrev_b32 {v(ACC+8)}, 3, {v(ACC+8)}
        v_mov_b32 {v(ACC+9)}, {s(sSt1)}
        ''')
    stamp(6)
    L.wait_all()
    A('s_barrier')
    if dbg != 2: stamp(7)
    OA = V0
    ot0 = L.issue(f'ds_read_b128 {v(OA,4)}, {v(vXOr)}')
    ot1 = L.issue(f'ds_read_b128 {v(OA+4,4)}, {v(vXOr)} offset:128')
    if 'hint' in EXP: V.issue(f'buffer_store_dword {v(ACC+9)}, {v(ACC+8)}, s[4:7], {s(sHw)} offen{stf}')
    ht = {}
    def hpoll(k): ht[k] = V.issue(f'buffer_load_dword {v(vT0+k)}, {v(vT3)}, s[4:7], {s(sHr)} offen sc1')
    def hchk(k): A(f'v_cmp_gt_u32 vcc, {s(sSt1)}, {v(vT0+k)}')
    A(f'''
    s_add_u32 {s(sKXo)}, {s(sKXo)}, {32*8192}
    s_xor_b32 {s(sKXm)}, {s(sKXm)}, {LDS_KX ^ (LDS_KX + 8192)}
    s_add_u32 {s(sVXo)}, {s(sVXo)}, {32*128*64}
    s_add_u32 {s(sKMo)}, {s(sKMo)}, {32*4096}
    v_xor_b32 {v(vKXr)}, {LDS_KX ^ (LDS_KX + 8192)}, {v(vKXr)}
    ''')
    L.wait(ot0)
    PO = ACC
    PU = VX
    def hs(T, j): add(PO + 2 * T + j, WA + 4 * T + 2 * j, WA + 4 * T + 2 * j + 1)
    def tag(Qd):
        x = PO + 8 * Qd
        A(f'v_add_u32 {v(x)}, {s(sTa)}, {v(x)}')
        A(f'v_and_or_b32 {v(x)}, {v(x)}, {v(vMask)}, {s(sTb)}')
    def pk(P):
        Qd, p = P >> 1, P & 1
        for j in range(2): cvt(PU + 4 * Qd + 2 * j + p, PO + 4 * P + j, PO + 4 * P + 2 + j)
    def pstore(Qd):
        if 'pl2' in EXP: V.issue(f'buffer_store_dwordx4 {v(PU+4*Qd,4)}, {v(vPs)}, s[4:7], {(0, s(sHr))[Qd]} offen{stf}')
        else: V.issue(f'buffer_store_dwordx4 {v(PU+4*Qd,4)}, {v(vPs)}, s[4:7], 0 offen offset:{Qd*128}{stf}')
    for T in range(8):
        smf(A, WA + 4 * T, OA, v(WO0 + 8 * T, 8))
        if T == 0: L.wait(ot1)
        if T in (1, 3, 5) and 'hint' in EXP: hpoll(T >> 1)
        if T >= 2: hs(T - 2, 0)
        if T >= 4: L.wait(wt[T])
        smf(A, WA + 4 * T, OA + 4, v(MF + (T & 3) * 8, 8))
        if T < 4: wofill(T + 4, 0); wofill(T + 4, 1)
        if T >= 2: hs(T - 2, 1)
        if T in (2, 6): tag(T >> 2)
        if T >= 3 and T % 2 == 1: pk((T - 3) // 2)
        if T == 5:
            pstore(0)
            if dbg == 2: stamp(7)
    hs(6, 0); hs(6, 1); hs(7, 0); hs(7, 1); pk(3); pstore(1)
    stamp(8)
    RD, RT = vT0, MF + 28
    A(f's_mov_b32 {s(sSpin)}, 0')
    def red_issue(k=0):
        for i in range(2):
            V.issue(f'buffer_load_dwordx4 {v(RS[k] + 4*i, 4)}, {v(vPl)}, s[4:7], 0 offen offset:{i*(1024 if "pl2" in EXP else 256)} sc1')
    def chkR(k=0):
        A(f'v_bitop3_b32 {v(RT)}, {v(RS[k])}, {v(RS[k]+4)}, {s(sTg)} bitop3:0x7e')
        if k == 0: mm(RD, RS[k], SEL, '0')
        A(f'v_and_b32 {v(RT)}, 1, {v(RT)}')
        A(f'v_cmp_ne_u32 vcc, 0, {v(RT)}')
        if k == 0: mm(RD, RS[k] + 4, SEL, v(RD, 4))
    A(f's_add_u32 {s(sT1)}, {s(sStep)}, 2\ns_lshr_b32 {s(sT1)}, {s(sT1)}, 2\ns_min_u32 {s(sT1)}, {s(sT1)}, 15')
    A(f's_cmp_lt_u32 {s(sT1)}, {s(sReady)}\ns_cbranch_scc0 L_need_{sfx}')
    A.label(f'L_have_{sfx}')
    if 'hint' in EXP:
        V.wait(ht[1])
        hchk(0)
        A(f's_cbranch_vccz L_h1_{sfx}')
        hchk(1)
        A(f's_cbranch_vccz L_h2_{sfx}')
        hpoll(0)
        V.wait(ht[2])
        hchk(2)
        A(f's_cbranch_vccnz L_hf_{sfx}')
        delay(e3)
        A.label(f'L_h2_{sfx}')
        delay(e2)
    A.label(f'L_h1_{sfx}')
    wdelay('1', d1a, d1b)
    red_issue(0)
    ring_prefetch(); zero(ACC, 24)
    for k in range(1, e2 + 1):
        delay(ef - 20 if k == 1 else ef); red_issue(k)
    A(f's_waitcnt vmcnt({2*e2})')
    chkR(0)
    A(f's_cbranch_vccnz L_rf0_{sfx}')
    A.label(f'L_rok_{sfx}')
    stamp(9)
    if dbg == 1: A(f's_add_u32 s89, s89, {s(sSpin)}')
    A(f'''
    v_permlane32_swap_b32 {v(RD)}, {v(RD+2)}
    v_permlane32_swap_b32 {v(RD+1)}, {v(RD+3)}
    v_add_f32 {v(RD)}, {v(RD)}, {v(RD+2)}
    v_add_f32 {v(RD+1)}, {v(RD+1)}, {v(RD+3)}
    v_permlane16_swap_b32 {v(RD)}, {v(RD+1)}
    v_add_f32 {v(RD)}, {v(RD)}, {v(RD+1)}
    v_mov_b32_dpp {v(RD+1)}, {v(RD)} quad_perm:[1,0,3,2] row_mask:0xf bank_mask:0xf
    v_cvt_pk_bf16_f32 {v(RD)}, {v(RD)}, {v(RD+1)}
    v_min_u32 {v(RD)}, {s(sSent)}, {v(RD)}
    buffer_store_dword {v(RD)}, {v(vMs)}, s[4:7], {s(sNext)} offen{stf}
    s_xor_b32 {s(sCur0)}, {s(sCur0)}, 8192
    s_xor_b32 {s(sCur1)}, {s(sCur1)}, 8192
    s_xor_b32 {s(sNext)}, {s(sNext)}, 8192
    s_xor_b32 {s(sTg)}, {s(sTg)}, 1
    s_xor_b32 {s(sTb)}, {s(sTb)}, 0x10000
    s_xor_b32 {s(sTa)}, {s(sTa)}, 0x10000
    s_add_u32 {s(sStep)}, {s(sStep)}, 1
    s_mov_b32 {s(sSpin)}, 0
    ''')
    stamp(10)
    wdelay('2', d2a, d2b)
    for k in range(e3 + 1):
        if k: delay(ef)
        gatherA(k)
        if nd == 2 and k == e3: gatherB()
    if dbg == 2:
        A(f's_cmp_lg_u32 {s(sStep)}, 31\ns_cbranch_scc1 L_nd1_{sfx}\ns_waitcnt lgkmcnt(0)')
        for i in range(11): A(f's_mov_b32 s{76+i}, s{52+2*i}')
        A(f'L_nd1_{sfx}:\ns_cmp_lg_u32 {s(sStep)}, 32\ns_cbranch_scc1 L_nd2_{sfx}\ns_waitcnt lgkmcnt(0)')
        A(f's_mov_b32 s88, s52\ns_mov_b32 s89, s56\ns_mov_b32 s74, s58\nL_nd2_{sfx}:')
    elif dbg:
        A('s_waitcnt lgkmcnt(0)')
        for i in range(10):
            A(f's_sub_u32 {s(sT0)}, s{52+2*(i+1)}, s{52+2*i}\ns_add_u32 s{76+i}, s{76+i}, {s(sT0)}')
        A(f's_sub_u32 {s(sT0)}, s52, s87\ns_cmp_eq_u32 {s(sStep)}, 1\ns_cselect_b32 {s(sT0)}, 0, {s(sT0)}\ns_add_u32 s86, s86, {s(sT0)}\ns_mov_b32 s87, s72')
    A(f's_branch L_loop_{sfx}')
    A.label(f'L_need_{sfx}')
    ensure(A, sfx)
    A(f's_branch L_have_{sfx}')
    A.label(f'L_hf_{sfx}')
    hpoll(1)
    A.label(f'L_hl_{sfx}')
    for k in (0, 1):
        A('s_waitcnt vmcnt(1)')
        hchk(k)
        A(f's_cbranch_vccz L_hd_{sfx}')
        hpoll(k)
    A(f's_add_u32 {s(sSpin)}, {s(sSpin)}, 1\ns_cmp_lt_u32 {s(sSpin)}, {SPIN_LIMIT}\ns_cbranch_scc1 L_hl_{sfx}\ns_endpgm')
    A.label(f'L_hd_{sfx}')
    delay(ef)
    A(f's_branch L_h1_{sfx}')
    poll_tail('a', 1, GA, 4, gatherA, chkA, lambda: A(f'ds_write_b128 {v(vMw)}, {v(MF,4)}\ns_branch L_aok_{sfx}'), blind=e3)
    poll_tail('b', 1, GB, 4, gatherB, chkB, lambda: A(f'ds_write_b128 {v(vMw)}, {v(MF+16,4)} offset:4096\ns_branch L_bok_{sfx}'))
    def finR():
        mm(RD, RS[0], SEL, '0'); mm(RD, RS[0] + 4, SEL, v(RD, 4)); A(f's_branch L_rok_{sfx}')
    poll_tail('r', 2, RS, 8, red_issue, chkR, finR, blind=e2)

HDR = '; @launch grid=(256,1,1) block=(256,1,1) lds=163840\n.amdgcn_target "amdgcn-amd-amdhsa--gfx950"\n'
```

```python
from asmlib import *
from layout import *
import gemm1 as g
import struct
def f2u(x): return struct.unpack('<I', struct.pack('<f', x))[0]
def v(i, n=1): return f'v{i}' if n == 1 else f'v[{i}:{i+n-1}]'
def a_(i, n=1): return f'a{i}' if n == 1 else f'a[{i}:{i+n-1}]'
def s(i, n=1): return f's{i}' if n == 1 else f's[{i}:{i+n-1}]'
F_KVQ, F_H1, F_ATT, F_PROG = WS_FLAG, WS_FLAG + 1024, WS_FLAG + 4096, WS_FLAG + 8192
N_G1, N_G2, N_ATT = 880, 128, 512
N_AW = 32
LB = 160000
gTk, wSp, wA, wB, wC, wD, wSeg = 74, 75, 81, 82, 83, 84, 85
vZ, vLB, vTk = 12, 13, 14
WSPIN = 1 << 18
EXP = set()

def wait_flag(A, tag, soff, cmp, val, far=None, slp=8):
    A(f'''
    s_mov_b32 {s(wSp)}, 0
L_wf_{tag}:
    buffer_load_dword {v(vTk)}, {v(vZ)}, s[4:7], {s(soff)} offen sc0 sc1
    s_add_u32 {s(wSp)}, {s(wSp)}, 1
    s_cmp_lt_u32 {s(wSp)}, {WSPIN}
    s_cbranch_scc0 L_rec_exit
    s_waitcnt vmcnt(0)
    v_readfirstlane_b32 {s(wD)}, {v(vTk)}
    s_cmp_{cmp}_u32 {s(wD)}, {val}
    s_cbranch_scc1 L_wfd_{tag}
    s_sleep {slp * (8 if 'slowpoll' in EXP else 1)}
    {'' if far is None else far}
    s_branch L_wf_{tag}
L_wfd_{tag}:
    ''')

def signal(A, soff, val, nxt='L_wk_next'):
    A(f'''
    s_waitcnt vmcnt(0)
    s_barrier
    s_cmp_lg_u32 {s(g.gW)}, 0
    s_cbranch_scc1 {nxt}
    v_mov_b32 {v(vTk)}, {val}
    s_mov_b64 exec, 1
    buffer_atomic_add {v(vTk)}, {v(vZ)}, s[4:7], {s(soff)} offen
    s_mov_b64 exec, -1
    s_branch {nxt}
    ''')

def gen_att_task(A):
    vL = g.gL
    vG, vN, vQ, vKM, vVX, vVM, vT0, vT1, vM, vT = 160, 161, 162, 163, 164, 165, 166, 167, 168, 169
    ONES = 172
    QF, KX, KM, VX, VM = 16, 48, 80, 96, 128
    SA, PM, PX, OL, O = 176, 188, 192, 196, 200
    OUT = 216
    A(f'''
L_att_next:
    s_add_u32 {s(gTk)}, {s(gTk)}, {N_AW}
    s_cmp_ge_u32 {s(gTk)}, {N_G1 + N_G2 + N_ATT}
    s_cbranch_scc1 L_rec_exit
L_att:
    s_sub_u32 {s(wA)}, {s(gTk)}, {N_G1 + N_G2}
    s_lshr_b32 s24, {s(wA)}, 3
    s_and_b32 s25, {s(wA)}, 7
    s_lshl_b32 s25, s25, 2
    s_add_u32 s25, s25, {s(g.gW)}
    s_lshr_b32 {s(wA)}, s25, 1
    s_lshl_b32 {s(wA)}, {s(wA)}, 4
    s_lshr_b32 {s(wB)}, s24, 2
    s_add_u32 {s(wA)}, {s(wA)}, {s(wB)}
    s_lshl_b32 {s(wA)}, {s(wA)}, 2
    s_add_u32 {s(wA)}, {s(wA)}, {F_KVQ}
    v_lshrrev_b32 {v(vG)}, 4, {v(vL)}
    v_and_b32 {v(vN)}, 15, {v(vL)}
    v_lshlrev_b32 {v(vQ)}, 4, {v(vL)}
    s_lshl_b32 s26, s24, 18
    s_lshl_b32 s27, s25, 12
    s_add_u32 s26, s26, s27
    s_add_u32 s27, s26, {WS_Q}
    s_add_u32 s28, s27, {16*8192}
    s_add_u32 s29, s26, {WS_K}
    s_add_u32 s30, s29, {16*8192}
    s_add_u32 s34, s26, {WS_O}
    s_add_u32 s35, s34, {16*8192}
    s_lshl_b32 s31, s24, 5
    s_add_u32 s31, s31, s25
    s_lshl_b32 s36, s31, 12
    s_add_u32 s36, s36, {WS_KM}
    s_lshl_b32 s32, s31, 13
    s_add_u32 s32, s32, {WS_VT}
    s_add_u32 s33, s32, 4096
    v_lshrrev_b32 {v(vT0)}, 2, {v(vN)}
    v_and_b32 {v(vT1)}, 1, {v(vN)}
    v_lshlrev_b32 {v(vKM)}, 8, {v(vT0)}
    v_lshl_add_u32 {v(vKM)}, {v(vG)}, 6, {v(vKM)}
    v_lshl_add_u32 {v(vKM)}, {v(vT1)}, 3, {v(vKM)}
    v_lshlrev_b32 {v(vVX)}, 6, {v(vN)}
    v_lshl_add_u32 {v(vVX)}, {v(vG)}, 4, {v(vVX)}
    ''')
    wait_flag(A, 'a1', wA, 'eq', '258')
    ld = lambda d, a, so, off: A(f'buffer_load_dwordx4 {v(d,4)}, {v(a)}, s[4:7], s{so} offen offset:{off} sc1')
    for ks in range(4): ld(QF + 4 * ks, vQ, 27, ks * 1024)
    for ks in range(4): ld(KX + 4 * ks, vQ, 29, ks * 1024)
    for ks in range(4): ld(QF + 16 + 4 * ks, vQ, 28, ks * 1024)
    for ks in range(4): ld(KX + 16 + 4 * ks, vQ, 30, ks * 1024)
    for ft in range(8): ld(VX + 4 * ft, vVX, 32 + (ft >> 2), (ft & 3) * 1024)
    for i in range(4): A(f'v_mov_b32 {v(ONES+i)}, 0x3f803f80')
    A(f'v_lshlrev_b32 {v(vT0)}, 2, {v(vG)}')
    for r in range(4):
        A(f'v_add_u32 {v(vT1)}, {r}, {v(vT0)}')
        A(f'v_cmp_le_u32 s[{40+2*r}:{41+2*r}], {v(vT1)}, {v(vN)}')
    A(f's_mov_b32 s48, {f2u(SM_C)}\nv_mov_b32 {v(vT0)}, 0xf149f2ca\nv_mov_b32 {v(PM+1)}, 0')
    A(f's_lshl_b32 {s(wA)}, s25, 7\ns_add_u32 {s(wA)}, {s(wA)}, {F_PROG}')
    wait_flag(A, 'a2', wA, 'gt', 's24', far=f's_cmp_ge_u32 {s(wD)}, s24\ns_cbranch_scc1 L_wf_a2\ns_sleep 48', slp=4)
    for ks in range(4):
        for i in range(4): A(f'buffer_load_dword {v(KM + 4*ks + i)}, {v(vKM)}, s[4:7], s36 offen offset:{ks*1024 + i*16 + 4} sc1')
    for w in range(4): ld(VM + 4 * w, vQ, 36, w * 1024)
    def mm(d, a, b, c, k=32):
        n = 4 if k == 32 else 2
        A(f'v_mfma_f32_16x16x{k}_bf16 {v(d,4)}, {v(a,n)}, {v(b,n)}, {c}')
    TM, TX0, TX1 = SA, SA + 4, SA + 8
    for qt in range(2):
        q = QF + 16 * qt
        for ks in range(4):
            mm(TX0, KX + 4 * ks, q + 4 * ks, '0' if ks == 0 else v(TX0, 4))
            if qt == 1: mm(TX1, KX + 16 + 4 * ks, q + 4 * ks, '0' if ks == 0 else v(TX1, 4))
        if qt == 0: A('s_waitcnt vmcnt(4)')
        for ks in range(4):
            mm(TM, KM + 4 * ks, q + 4 * ks, '0' if ks == 0 else v(TM, 4))
        D = TX0 if qt == 0 else TX1
        for r in range(4): A(f'v_cndmask_b32 {v(D+r)}, {v(vT0)}, {v(D+r)}, s[{40+2*r}:{41+2*r}]')
        A(f'v_max3_f32 {v(vM)}, {v(TX0+3)}, {v(TX0+1)}, {v(TX0+2)}')
        if qt == 1:
            A(f'v_max3_f32 {v(vM)}, {v(vM)}, {v(TX1)}, {v(TX1+1)}')
            A(f'v_max3_f32 {v(vM)}, {v(vM)}, {v(TX1+2)}, {v(TX1+3)}')
        A(f'v_max_f32 {v(vM)}, {v(vM)}, {v(TX0)}')
        A(f'v_max3_f32 {v(vM)}, {v(vM)}, {v(TM)}, {v(TM+1)}')
        for p in ('32', '16'):
            A(f'v_mov_b32 {v(vT)}, {v(vM)}\nv_permlane{p}_swap_b32 {v(vM)}, {v(vT)}\nv_max_f32 {v(vM)}, {v(vM)}, {v(vT)}')
        A(f'v_mul_f32 {v(vM)}, s48, {v(vM)}')
        regs = [TM, TM + 1] + [TX0 + r for r in range(4)] + ([TX1 + r for r in range(4)] if qt else [])
        for x in regs: A(f'v_fma_f32 {v(x)}, {v(x)}, s48, -{v(vM)}')
        for x in regs: A(f'v_exp_f32 {v(x)}, {v(x)}')
        A(f'v_cvt_pk_bf16_f32 {v(PM)}, {v(TM)}, {v(TM+1)}')
        A(f'v_cvt_pk_bf16_f32 {v(PX)}, {v(TX0)}, {v(TX0+1)}\nv_cvt_pk_bf16_f32 {v(PX+1)}, {v(TX0+2)}, {v(TX0+3)}')
        if qt: A(f'v_cvt_pk_bf16_f32 {v(PX+2)}, {v(TX1)}, {v(TX1+1)}\nv_cvt_pk_bf16_f32 {v(PX+3)}, {v(TX1+2)}, {v(TX1+3)}')
        else: A(f'v_mov_b32 {v(PX+2)}, 0\nv_mov_b32 {v(PX+3)}, 0')
        if qt == 0: A('s_waitcnt vmcnt(0)')
        mm(OL, ONES, PM, '0', 16)
        def pv(ks, first=False):
            for b in range(2):
                o = O + (ks & 1) * 8 + 4 * b; ft = 2 * ks + b
                mm(o, VM + 2 * ft, PM, '0', 16)
            if first: mm(OL, ONES, PX, v(OL, 4))
            for b in range(2):
                o = O + (ks & 1) * 8 + 4 * b; ft = 2 * ks + b
                mm(o, VX + 4 * ft, PX, v(o, 4))
        def fin(ks):
            o = O + (ks & 1) * 8; e = OUT + (ks & 1) * 4
            for i in range(8): A(f'v_mul_f32 {v(o+i)}, {v(vT1)}, {v(o+i)}')
            for r in range(4): A(f'v_cvt_pk_bf16_f32 {v(e+r)}, {v(o+r)}, {v(o+4+r)}')
            A(f'buffer_store_dwordx4 {v(e,4)}, {v(vQ)}, s[4:7], s{34+qt} offen offset:{ks*1024} sc1')
        pv(0, True)
        A(f'v_rcp_f32 {v(vT1)}, {v(OL)}')
        pv(1); fin(0); pv(2); fin(1); pv(3); fin(2); fin(3)
    A(f's_lshl_b32 {s(wA)}, s24, 6\ns_add_u32 {s(wA)}, {s(wA)}, {F_ATT}')
    signal(A, wA, 1, 'L_att_next')

def gen_g2_task(A):
    vL = g.gL
    vG, vN, vA, vW, vR, vX, vS, vT0 = 1, 2, 3, 4, 5, 6, 7, 8
    ACC, FW, XR, FA = 16, 32, 40, 44
    NR = 52
    RED = 131072
    A(f'''
L_g2:
    s_sub_u32 {s(wA)}, {s(gTk)}, {N_G1}
    s_and_b32 s24, {s(wA)}, 15
    s_lshr_b32 {s(wSeg)}, {s(wA)}, 4
    s_load_dwordx4 s[28:31], s[0:1], 72
    s_load_dwordx2 s[32:33], s[0:1], 0
    v_lshrrev_b32 {v(vG)}, 4, {v(vL)}
    v_and_b32 {v(vN)}, 15, {v(vL)}
    s_lshl_b32 s25, {s(g.gW)}, 15
    s_lshl_b32 s26, {s(g.gW)}, 10
    v_lshlrev_b32 {v(vS)}, 4, {v(vL)}
    v_add_u32 {v(vA)}, s26, {v(vS)}
    v_bfe_u32 {v(vW)}, {v(vL)}, 2, 1
    v_lshlrev_b32 {v(vW)}, 4, {v(vW)}
    v_lshrrev_b32 {v(vT0)}, 5, {v(vL)}
    v_lshl_add_u32 {v(vW)}, {v(vT0)}, 2, {v(vW)}
    v_bfe_u32 {v(vT0)}, {v(vL)}, 3, 2
    v_add_u32 {v(vW)}, {v(vW)}, {v(vT0)}
    v_lshlrev_b32 {v(vW)}, 10, {v(vW)}
    v_and_b32 {v(vT0)}, 3, {v(vL)}
    v_lshl_add_u32 {v(vW)}, {v(vT0)}, 4, {v(vW)}
    s_lshl_b32 s27, s24, 6
    s_add_u32 {s(wA)}, s27, s25
    v_add_u32 {v(vW)}, {s(wA)}, {v(vW)}
    v_bfe_u32 {v(vR)}, {v(vL)}, 2, 2
    v_lshl_add_u32 {v(vR)}, {v(vG)}, 3, {v(vR)}
    v_lshlrev_b32 {v(vR)}, 6, {v(vR)}
    v_lshl_add_u32 {v(vR)}, {v(vT0)}, 4, {v(vR)}
    v_add_u32 {v(vR)}, s25, {v(vR)}
    v_lshlrev_b32 {v(vX)}, 10, {v(vN)}
    v_lshl_add_u32 {v(vX)}, {v(vG)}, 4, {v(vX)}
    s_and_b32 {s(wA)}, {s(g.gW)}, 1
    s_lshl_b32 {s(wA)}, {s(wA)}, 14
    s_add_u32 {s(wA)}, {s(wA)}, s27
    v_add_u32 {v(vX)}, {s(wA)}, {v(vX)}
    s_mov_b32 s12, s22
    s_mov_b32 s13, s23
    s_mov_b32 s14, 0x400000
    s_waitcnt lgkmcnt(0)
    s_mov_b32 s40, s30
    s_mov_b32 s41, s31
    s_mov_b32 s42, 0x200000
    s_mov_b32 s43, 0x20000
    s_mov_b32 s44, s32
    s_mov_b32 s45, s33
    s_mov_b32 s46, 0x200000
    s_mov_b32 s47, 0x20000
    ''')
    def stage(lb0, n):
        for j in range(n):
            for i in range(2):
                A(f's_add_u32 m0, s25, {j*2048 + i*1024}')
                A(f's_mov_b32 s34, {(lb0 + j)*4*32*1024 + i*8*1024}')
                A(f'buffer_load_dwordx4 {v(vW)}, s[12:15], s34 offen lds')
    for half in range(2):
        stage(half * 16, 16)
        A('s_waitcnt vmcnt(0)')
        for j in range(16):
            for bt in range(2):
                for t in range(2):
                    d = ((half * 16 + j) * 2 + bt) * 4 + 2 * t
                    A(f'ds_read_b64_tr_b16 {a_(d, 2)}, {v(vR)} offset:{j*2048 + t*256 + bt*8}')
            if j % 3 == 2: A('s_waitcnt lgkmcnt(0)')
        A('s_waitcnt lgkmcnt(0)')
    A(f's_mov_b32 s12, s28\ns_mov_b32 s13, s29\ns_mov_b32 s14, {1792*1024}')
    stage(0, 14)
    A(f'''
L_g2_seg:
    s_lshr_b32 {s(wA)}, {s(wSeg)}, 2
    s_lshl_b32 {s(wA)}, {s(wA)}, 2
    s_add_u32 {s(wA)}, {s(wA)}, {F_H1}
    ''')
    wait_flag(A, 'g1', wA, 'eq', '7')
    A(f'''
    s_mul_i32 s35, {s(wSeg)}, {2*57344}
    s_add_u32 s35, s35, {WS_H1}
    s_lshl_b32 s36, {s(wSeg)}, 15
    buffer_load_dwordx4 {v(XR,4)}, {v(vX)}, s[44:47], s36 offen
    ''')
    for lb in range(14):
        for tt in range(2):
            A(f's_add_u32 s34, s35, {tt*57344 + lb*4096}')
            A(f'buffer_load_dwordx4 {v(FA + (lb*2+tt)*4, 4)}, {v(vA)}, s[4:7], s34 offen sc1')
    for lb in range(14):
        for bt in range(2):
            for t in range(2):
                A(f'ds_read_b64_tr_b16 {v(FW + bt*4 + 2*t, 2)}, {v(vR)} offset:{lb*2048 + t*256 + bt*8}')
        A(f's_waitcnt vmcnt({2*(13-lb)}) lgkmcnt(0)')
        for bt in range(2):
            for tt in range(2):
                ac = v(ACC + (tt*2+bt)*4, 4)
                A(f'v_mfma_f32_16x16x32_bf16 {ac}, {v(FW + bt*4, 4)}, {v(FA + (lb*2+tt)*4, 4)}, {"0" if lb == 0 else ac}')
    A(f's_lshl_b32 {s(wA)}, {s(wSeg)}, 6\ns_add_u32 {s(wA)}, {s(wA)}, {F_ATT}')
    A(f's_lshl_b32 s35, {s(wSeg)}, 18\ns_add_u32 s35, s35, {WS_O}')
    wait_flag(A, 'g2', wA, 'eq', '8')
    def ldo(i):
        lb, tt = i >> 1, i & 1
        A(f's_add_u32 s34, s35, {tt*131072 + lb*4096}')
        A(f'buffer_load_dwordx4 {v(FA + (i % NR)*4, 4)}, {v(vA)}, s[4:7], s34 offen sc1')
    for i in range(NR): ldo(i)
    issued = NR
    for lb in range(32):
        A(f's_waitcnt vmcnt({issued - 2*lb - 2})')
        for bt in range(2):
            for tt in range(2):
                ac = v(ACC + (tt*2+bt)*4, 4)
                A(f'v_mfma_f32_16x16x32_bf16 {ac}, {a_((lb*2+bt)*4, 4)}, {v(FA + ((lb*2+tt) % NR)*4, 4)}, {ac}')
        for k in range(2):
            if issued < 64: ldo(issued); issued += 1
    A(f's_lshl_b32 {s(wA)}, {s(g.gW)}, 12\ns_add_u32 {s(wA)}, {s(wA)}, {RED}\nv_add_u32 {v(vT0)}, {s(wA)}, {v(vS)}')
    for i in range(4): A(f'ds_write_b128 {v(vT0)}, {v(ACC + 4*i, 4)} offset:{i*1024}')
    A(f'''
    s_lshl_b32 {s(wA)}, {s(g.gW)}, 11
    s_add_u32 {s(wA)}, {s(wA)}, {RED}
    v_add_u32 {v(vT0)}, {s(wA)}, {v(vS)}
    s_waitcnt lgkmcnt(0)
    s_barrier
    s_cmp_ge_u32 {s(g.gW)}, 2
    s_cbranch_scc1 L_g2_skip
    ''')
    for sw in range(4):
        for bt in range(2):
            A(f'ds_read_b128 {v(FA + (sw*2+bt)*4, 4)}, {v(vT0)} offset:{sw*4096 + bt*1024}')
    A('s_waitcnt lgkmcnt(0)')
    for i in range(8):
        A(f'v_add_f32 {v(FA+i)}, {v(FA+i)}, {v(FA+8+i)}')
        A(f'v_add_f32 {v(FA+16+i)}, {v(FA+16+i)}, {v(FA+24+i)}')
    for i in range(8): A(f'v_add_f32 {v(FA+i)}, {v(FA+i)}, {v(FA+16+i)}')
    for d in range(4):
        A(f'v_lshlrev_b32 {v(FW)}, 16, {v(XR+d)}\nv_and_b32 {v(FW+1)}, 0xffff0000, {v(XR+d)}')
        A(f'v_add_f32 {v(FA+2*d)}, {v(FA+2*d)}, {v(FW)}\nv_add_f32 {v(FA+2*d+1)}, {v(FA+2*d+1)}, {v(FW+1)}')
        A(f'v_cvt_pk_bf16_f32 {v(FA+32+d)}, {v(FA+2*d)}, {v(FA+2*d+1)}')
    A(f'''
    buffer_store_dwordx4 {v(FA+32,4)}, {v(vX)}, s[40:43], s36 offen
L_g2_skip:
    s_barrier
    s_add_u32 {s(wSeg)}, {s(wSeg)}, {N_G2 // 16}
    s_cmp_lt_u32 {s(wSeg)}, 64
    s_cbranch_scc1 L_g2_seg
    s_endpgm
    ''')

def gen_worker(A, sWV):
    A(f'''
L_worker:
    s_mov_b32 {s(g.gW)}, {s(sWV)}
    v_and_b32 {v(g.gL)}, 63, v0
    ''')
    g.g1_setup(A)
    A(f'''
    v_mov_b32 {v(vZ)}, 0
    v_mov_b32 {v(vLB)}, {LB}
L_wk_next:
    s_cmp_lg_u32 {s(g.gW)}, 0
    s_cbranch_scc1 L_wk_bar
    v_mov_b32 {v(vTk)}, 1
    s_mov_b64 exec, 1
    buffer_atomic_add {v(vTk)}, {v(vZ)}, s[8:11], 0 offen offset:72 sc0
    s_waitcnt vmcnt(0)
    ds_write_b32 {v(vLB)}, {v(vTk)}
    s_mov_b64 exec, -1
    s_waitcnt lgkmcnt(0)
L_wk_bar:
    s_barrier
    ds_read_b32 {v(vTk)}, {v(vLB)}
    s_waitcnt lgkmcnt(0)
    v_readfirstlane_b32 {s(gTk)}, {v(vTk)}
    s_cmp_ge_u32 {s(gTk)}, {N_G1 if 'g1only' in EXP else N_G1 + N_G2 + N_AW}
    s_cbranch_scc1 L_rec_exit
    s_cmp_ge_u32 {s(gTk)}, {N_G1 + N_G2}
    s_cbranch_scc1 L_att
    s_cmp_ge_u32 {s(gTk)}, {N_G1}
    s_cbranch_scc1 {'L_rec_exit' if 'nog2' in EXP else 'L_g2'}
    s_lshr_b32 {s(g.gMB)}, {s(gTk)}, 5
    s_and_b32 {s(g.gNB)}, {s(gTk)}, 31
    s_add_u32 {s(g.gNB)}, {s(g.gNB)}, 16
    s_cmp_lt_u32 {s(gTk)}, 512
    s_cbranch_scc1 L_wk_go
    s_sub_u32 {s(g.gT0)}, {s(gTk)}, 512
    s_mul_i32 {s(g.gMB)}, {s(g.gT0)}, {(1 << 16) // 23 + 1}
    s_lshr_b32 {s(g.gMB)}, {s(g.gMB)}, 16
    s_mul_i32 {s(g.gT1)}, {s(g.gMB)}, 23
    s_sub_u32 {s(g.gNB)}, {s(g.gT0)}, {s(g.gT1)}
    s_add_u32 {s(g.gT1)}, {s(g.gNB)}, 32
    s_cmp_ge_u32 {s(g.gNB)}, 16
    s_cselect_b32 {s(g.gNB)}, {s(g.gT1)}, {s(g.gNB)}
L_wk_go:
    ''')
    g.g1_tile(A, 'wk')
    A(f'''
    s_and_b32 {s(wA)}, {s(g.gNB)}, 15
    s_lshl_b32 {s(wA)}, {s(wA)}, 4
    s_cmp_eq_u32 {s(g.gType)}, 3
    s_cselect_b32 {s(wA)}, 256, {s(wA)}
    s_add_u32 {s(wA)}, {s(wA)}, {s(g.gMB)}
    s_lshl_b32 {s(wA)}, {s(wA)}, 2
    s_add_u32 {s(wA)}, {s(wA)}, {F_KVQ}
    s_cmp_eq_u32 {s(g.gType)}, 0
    s_cselect_b32 {s(wB)}, 256, 1
    ''')
    signal(A, wA, s(wB))
    gen_att_task(A)
    gen_g2_task(A)
for u in range(368): assert (u * ((1 << 16) // 23 + 1)) >> 16 == u // 23
```

```python
import sys
import pre, rec, worker
NAME = 'parallel_sum__memory_aug_recurrent_mem_tr__dense_activation_silu__prompt'
def build(path, dbg=False, fused=True, exp=(), **kw):
    rec.EXP = set(exp) | {'pl2'}
    worker.EXP = set(exp)
    worker.N_AW = 96
    worker.N_G2 = 128
    for e in exp:
        if e.startswith('aw'): worker.N_AW = int(e[2:])
        if e.startswith('gw'): worker.N_G2 = int(e[2:])
    L = []
    def add(part, line): L.append((part, line))
    add(pre.gen_pre('pre_kernel'), 'kernel=pre_kernel grid=(128,1,1) block=(256,1,1) lds=0')
    add(rec.gen_rec('rec_kernel', fused=fused, dbg=dbg, **kw), 'kernel=rec_kernel grid=(256,1,1) block=(256,1,1) lds=163840')
    hdr = '; generated by my own generator scripts (gen/*.py)\n' + ''.join(f'; @launch {l}\n' for _, l in L) + '.amdgcn_target "amdgcn-amd-amdhsa--gfx950"\n'
    open(path, 'w').write(hdr + ''.join(p[0][0] for p in L) + ''.join(p[0][1] for p in L))
if __name__ == '__main__':
    build(f'cdna_kernels/{NAME}.s')
    for a in sys.argv[1:]:
        parts = a.split(':')
        dl = tuple(int(x) for x in parts[0].split(','))
        fl = parts[1].split(',') if len(parts) > 1 else []
        nm = ('x_' if 'n' in fl else 'x_dbg_') + a.replace(',', '_').replace(':', '_') + ('_rt' if 'rt' in fl else '')
        build('exp/%s.s' % nm, dbg=0 if 'n' in fl else 2 if 'rt' in fl else 1, dl=dl, fused='solo' not in fl, exp=fl)
        print('exp/%s.s' % nm)
```

```python
from asmlib import *
from layout import *
import struct
def f2u(x): return struct.unpack('<I', struct.pack('<f', x))[0]
def v(i, n=1): return f'v{i}' if n == 1 else f'v[{i}:{i+n-1}]'
def a_(i, n=1): return f'a{i}' if n == 1 else f'a[{i}:{i+n-1}]'
def s(i, n=1): return f's{i}' if n == 1 else f's[{i}:{i+n-1}]'

gW, gMB, gNB, gK, gXo, gWo, gPitch, gT0, gT1, gT2, gM0a, gM0b, gType, gOut = range(60, 74)
gP4, gP8, gP12, gP32 = 76, 77, 78, 79
gL, gXA, gWB, gRa, gSt, gT = 0, 1, 2, 3, 6, 8
gRb = 144
FX, FW = 16, 80
STG = 32768
WT = False

def g1_setup(A):
    A(f'''
    v_lshlrev_b32 {v(gXA)}, 4, {v(gL)}
    s_lshr_b32 {s(gT1)}, {s(gW)}, 1
    s_and_b32 {s(gT0)}, {s(gW)}, 1
    s_lshl_b32 {s(gT2)}, {s(gT1)}, 12
    v_add_u32 {v(gRa)}, {s(gT2)}, {v(gXA)}
    s_lshl_b32 {s(gM0a)}, {s(gW)}, 11
    s_lshl_b32 {s(gT2)}, {s(gW)}, 15
    s_add_u32 {s(gT2)}, {s(gT2)}, {WS_XN}
    v_add_u32 {v(gXA)}, {s(gT2)}, {v(gXA)}
    s_lshl_b32 {s(gT2)}, {s(gT1)}, 2
    s_add_u32 {s(gT2)}, {s(gT2)}, {s(gT0)}
    s_lshl_b32 {s(gM0b)}, {s(gT2)}, 10
    s_add_u32 {s(gM0b)}, {s(gM0b)}, 16384
    v_lshrrev_b32 {v(gT)}, 4, {v(gL)}
    v_bfe_u32 {v(gT+1)}, {v(gL)}, 2, 2
    v_and_b32 {v(gT+2)}, 1, {v(gT)}
    v_lshl_or_b32 {v(gT+2)}, {v(gT+2)}, 2, {v(gT+1)}
    v_lshl_add_u32 {v(gT+1)}, {v(gT)}, 3, {v(gT+1)}
    v_lshlrev_b32 {v(gT+1)}, 9, {v(gT+1)}
    v_and_b32 {v(gT+3)}, 3, {v(gL)}
    v_lshl_add_u32 {v(gT+1)}, {v(gT+3)}, 3, {v(gT+1)}
    v_lshl_add_u32 {v(gT+1)}, {v(gT+2)}, 5, {v(gT+1)}
    s_lshl_b32 {s(gT2)}, {s(gT0)}, 8
    s_add_u32 {s(gT2)}, {s(gT2)}, 16384
    v_add_u32 {v(gT+1)}, {s(gT2)}, {v(gT+1)}
    ''')
    for ct in range(8): A(f'v_xor_b32 {v(gRb+ct)}, {ct*32}, {v(gT+1)}')
    A(f'v_add_u32 {v(gRa+1)}, 65536, {v(gRa)}')
    for ct in range(8): A(f'v_add_u32 {v(gRb+8+ct)}, 65536, {v(gRb+ct)}')

def g1_tile(A, pfx):
    A(f'''
    s_lshr_b32 {s(gType)}, {s(gNB)}, 4
    s_and_b32 {s(gT0)}, {s(gNB)}, 15
    s_lshl_b32 {s(gWo)}, {s(gT0)}, 9
    s_mov_b32 {s(gPitch)}, 8192
    s_mov_b32 s14, 0x400000
    s_mov_b32 s12, s16
    s_mov_b32 s13, s17
    s_cmp_eq_u32 {s(gType)}, 1
    s_cselect_b32 s12, s18, s12
    s_cselect_b32 s13, s19, s13
    s_cmp_eq_u32 {s(gType)}, 2
    s_cselect_b32 s12, s20, s12
    s_cselect_b32 s13, s21, s13
    s_cmp_eq_u32 {s(gType)}, 3
    s_cselect_b32 s12, s50, s12
    s_cselect_b32 s13, s51, s13
    s_cselect_b32 {s(gPitch)}, 3584, {s(gPitch)}
    s_cselect_b32 s14, {512*3584}, s14
    s_lshl_b32 {s(gXo)}, {s(gMB)}, 17
    s_lshl_b32 {s(gP4)}, {s(gPitch)}, 2
    s_lshl_b32 {s(gP8)}, {s(gPitch)}, 4
    s_add_u32 {s(gP12)}, {s(gP4)}, {s(gP8)}
    s_lshl_b32 {s(gP32)}, {s(gPitch)}, 5
    v_lshrrev_b32 {v(gT)}, 5, {v(gL)}
    s_lshl_b32 {s(gT0)}, {s(gW)}, 1
    v_or_b32 {v(gT+1)}, {s(gT0)}, {v(gT)}
    v_lshlrev_b32 {v(gT+1)}, 1, {v(gT+1)}
    v_and_b32 {v(gT+2)}, 31, {v(gL)}
    v_xor_b32 {v(gT+1)}, {v(gT+1)}, {v(gT+2)}
    v_lshlrev_b32 {v(gT+1)}, 4, {v(gT+1)}
    s_sub_u32 {s(gT0)}, {s(gM0b)}, 16384
    s_lshr_b32 {s(gT0)}, {s(gT0)}, 9
    v_add_u32 {v(gT)}, {s(gT0)}, {v(gT)}
    v_mul_lo_u32 {v(gT)}, {v(gT)}, {s(gPitch)}
    v_add_u32 {v(gWB)}, {v(gT)}, {v(gT+1)}
    ''')
    def dma_list(slot):
        L = []
        for c in range(2):
            L.append(f's_add_u32 m0, {s(gM0a)}, {slot*STG + c*1024}\ns_add_u32 {s(gT0)}, {s(gXo)}, {c*16384}\n'
                     f'buffer_load_dwordx4 {v(gXA)}, s[4:7], {s(gT0)} offen sc1 lds')
        for k, (di, po) in enumerate(((0, None), (2, gP4), (8, gP8), (10, gP12))):
            so = f's_mov_b32 {s(gT0)}, {s(gWo)}' if po is None else f's_add_u32 {s(gT0)}, {s(gWo)}, {s(po)}'
            L.append(f's_add_u32 m0, {s(gM0b)}, {slot*STG + di*1024}\n{so}\n'
                     f'buffer_load_dwordx4 {v(gWB)}, s[12:15], {s(gT0)} offen lds')
        L[-1] += f'\ns_add_u32 {s(gXo)}, {s(gXo)}, 1024\ns_add_u32 {s(gWo)}, {s(gWo)}, {s(gP32)}'
        return L
    def read_list(slot, buf):
        hi, off = slot >> 1, (slot & 1) * STG
        L = []
        for t in range(8):
            if t < 4: L.append(f'ds_read_b128 {v(FX + buf*32 + t*4, 4)}, {v(gRa+hi)} offset:{off + t*1024}')
            for tt in range(2):
                L.append(f'ds_read_b64_tr_b16 {v(FW + buf*32 + t*4 + 2*tt, 2)}, {v(gRb + 8*hi + t)} offset:{off + tt*2048}')
        return L
    for sl in range(3):
        for x in dma_list(sl): A(x)
    for i in range(128): A(f'v_accvgpr_write_b32 a{i}, 0')
    A('s_waitcnt vmcnt(12)\ns_barrier')
    if WT: A('s_memrealtime s[96:97]')
    for x in read_list(0, 0): A(x)
    def step(k4, vtype, do_read, do_dma, vm):
        buf = k4 & 1
        if do_read: A(f's_waitcnt vmcnt({vm}) lgkmcnt(0)\ns_barrier')
        else: A('s_waitcnt lgkmcnt(0)')
        R = read_list((k4 + 1) & 3, buf ^ 1) if do_read else []
        D = dma_list((k4 + 3) & 3) if do_dma else []
        n = 0
        for ct in range(8):
            for tt in range(4):
                ac = a_((ct * 4 + tt) * 4, 4)
                x, w = v(FX + buf*32 + tt*4, 4), v(FW + buf*32 + ct*4, 4)
                if vtype: A(f'v_mfma_f32_16x16x32_bf16 {ac}, {x}, {w}, {ac}')
                else:     A(f'v_mfma_f32_16x16x32_bf16 {ac}, {w}, {x}, {ac}')
                if n < 20 and R: A(R[n])
                if n % 5 == 2 and D and n // 5 < 6: A(D[n // 5])
                n += 1
    A(f's_cmp_eq_u32 {s(gType)}, 2\ns_cbranch_scc1 L_{pfx}_v')
    for vtype in (0, 1):
        if vtype: A.label(f'L_{pfx}_v')
        A(f's_mov_b32 {s(gK)}, 0')
        A.label(f'L_{pfx}_k{vtype}')
        for k4 in range(4): step(k4, vtype, True, True, 6)
        A(f's_add_u32 {s(gK)}, {s(gK)}, 1\ns_cmp_lt_u32 {s(gK)}, 3\ns_cbranch_scc1 L_{pfx}_k{vtype}')
        step(0, vtype, True, True, 6)
        step(1, vtype, True, False, 6)
        step(2, vtype, True, False, 0)
        step(3, vtype, False, False, 0)
        if vtype == 0: A(f's_branch L_{pfx}_epi')
    if WT: A('s_memrealtime s[98:99]')
    E = 16
    A(f'''
    v_and_b32 {v(gT)}, 15, {v(gL)}
    v_lshrrev_b32 {v(gT+1)}, 4, {v(gL)}
    v_lshlrev_b32 {v(gSt)}, 6, {v(gT)}
    v_lshl_add_u32 {v(gSt)}, {v(gT+1)}, 4, {v(gSt)}
    s_lshr_b32 {s(gT0)}, {s(gW)}, 1
    s_lshl_b32 {s(gT1)}, {s(gMB)}, 1
    s_add_u32 {s(gT0)}, {s(gT0)}, {s(gT1)}
    s_lshl_b32 {s(gT0)}, {s(gT0)}, 19
    s_and_b32 {s(gT1)}, {s(gNB)}, 15
    s_lshl_b32 {s(gT1)}, {s(gT1)}, 1
    s_and_b32 {s(gT2)}, {s(gW)}, 1
    s_add_u32 {s(gT1)}, {s(gT1)}, {s(gT2)}
    s_lshl_b32 {s(gT1)}, {s(gT1)}, 13
    s_add_u32 {s(gOut)}, {s(gT0)}, {s(gT1)}
    s_add_u32 {s(gOut)}, {s(gOut)}, {WS_VT}
    ''')
    n = 0
    for sg in range(2):
        for ft in range(8):
            e = E + (n % 4) * 12; n += 1
            for t in range(2):
                for r in range(4): A(f'v_accvgpr_read_b32 {v(e + 4 + t*4 + r)}, a{(ft*4 + 2*sg + t)*4 + r}')
            for d in range(4): A(f'v_cvt_pk_bf16_f32 {v(e+d)}, {v(e+4+2*d)}, {v(e+5+2*d)}')
            A(f's_add_u32 {s(gT0)}, {s(gOut)}, {sg*262144 + (ft>>2)*4096}')
            A(f'buffer_store_dwordx4 {v(e,4)}, {v(gSt)}, s[4:7], {s(gT0)} offen offset:{(ft&3)*1024} sc1')
    A(f's_branch L_{pfx}_done')
    A.label(f'L_{pfx}_epi')
    if WT: A('s_memrealtime s[98:99]')
    A(f'''
    v_lshlrev_b32 {v(gSt)}, 4, {v(gL)}
    s_lshr_b32 {s(gT0)}, {s(gW)}, 1
    s_lshl_b32 {s(gT1)}, {s(gMB)}, 1
    s_add_u32 {s(gT0)}, {s(gT0)}, {s(gT1)}
    s_lshl_b32 {s(gT0)}, {s(gT0)}, 6
    s_mul_i32 {s(gT0)}, {s(gT0)}, {s(gPitch)}
    s_and_b32 {s(gT1)}, {s(gNB)}, 15
    s_lshl_b32 {s(gT1)}, {s(gT1)}, 1
    s_and_b32 {s(gT2)}, {s(gW)}, 1
    s_add_u32 {s(gT1)}, {s(gT1)}, {s(gT2)}
    s_lshl_b32 {s(gT1)}, {s(gT1)}, 12
    s_add_u32 {s(gOut)}, {s(gT0)}, {s(gT1)}
    s_mov_b32 {s(gT1)}, {WS_Q}
    s_cmp_eq_u32 {s(gType)}, 1
    s_cselect_b32 {s(gT1)}, {WS_K}, {s(gT1)}
    s_cmp_eq_u32 {s(gType)}, 3
    s_cselect_b32 {s(gT1)}, {WS_H1}, {s(gT1)}
    s_add_u32 {s(gOut)}, {s(gOut)}, {s(gT1)}
    s_cmp_eq_u32 {s(gType)}, 3
    s_cbranch_scc1 L_{pfx}_epf
    ''')
    for silu in (0, 1):
        if silu: A.label(f'L_{pfx}_epf')
        n = 0
        for tt in range(4):
            for ks in range(4):
                e = E + (n % 4) * 20; n += 1
                for b in range(2):
                    for r in range(4): A(f'v_accvgpr_read_b32 {v(e + 4 + 2*r + b)}, a{((2*ks+b)*4 + tt)*4 + r}')
                for d in range(4): A(f'v_cvt_pk_bf16_f32 {v(e+d)}, {v(e+4+2*d)}, {v(e+5+2*d)}')
                if silu:
                    for d in range(4):
                        A(f'v_lshlrev_b32 {v(e+4+2*d)}, 16, {v(e+d)}')
                        A(f'v_and_b32 {v(e+5+2*d)}, 0xffff0000, {v(e+d)}')
                    for i in range(8): A(f'v_mul_f32 {v(e+12+i)}, {f2u(-1.4426950408889634)}, {v(e+4+i)}')
                    for i in range(8): A(f'v_exp_f32 {v(e+12+i)}, {v(e+12+i)}')
                    for i in range(8): A(f'v_add_f32 {v(e+12+i)}, 1.0, {v(e+12+i)}')
                    for i in range(8): A(f'v_rcp_f32 {v(e+12+i)}, {v(e+12+i)}')
                    for i in range(8): A(f'v_mul_f32 {v(e+4+i)}, {v(e+4+i)}, {v(e+12+i)}')
                    for d in range(4): A(f'v_cvt_pk_bf16_f32 {v(e+d)}, {v(e+4+2*d)}, {v(e+5+2*d)}')
                A(f'buffer_store_dwordx4 {v(e,4)}, {v(gSt)}, s[4:7], {s(gOut)} offen offset:{ks*1024} sc1')
            A(f's_add_u32 {s(gOut)}, {s(gOut)}, {s(gP8)}')
        if not silu: A(f's_branch L_{pfx}_done')
    A.label(f'L_{pfx}_done')
```

```python
from asmlib import *
from layout import *
import struct
def f2u(x): return struct.unpack('<I', struct.pack('<f', x))[0]
X, U, D = 8, 24, 56

def row_sum(A, x, t):
    for d in ('row_ror:4', 'row_ror:8'):
        A(f'v_add_f32_dpp v{x}, v{x}, v{x} {d} row_mask:0xf bank_mask:0xf')
    for p in ('16', '32'):
        A(f'v_mov_b32 v{t}, v{x}')
        A(f'v_permlane{p}_swap_b32 v{x}, v{t}')
        A(f'v_add_f32 v{x}, v{x}, v{t}')

def rnd_bf16(A, x):
    A(f'v_cvt_pk_bf16_f32 v{x}, v{x}, v{x}')
    A(f'v_and_b32 v{x}, 0xffff0000, v{x}')

def ln_addr(A):
    A("""
    v_and_b32 v2, 3, v0
    v_lshl_add_u32 v6, v1, 2, v2
    v_bfe_u32 v2, v0, 2, 4
    v_lshlrev_b32 v3, 10, v6
    v_lshl_add_u32 v3, v2, 4, v3
    v_lshlrev_b32 v4, 8, v2
    v_lshl_add_u32 v4, v6, 4, v4
    s_lshl_b32 s3, s2, 14
    """)

def ln_load(A):
    for i in range(4): A(f'buffer_load_dwordx4 v[{X+4*i}:{X+4*i+3}], v3, s[12:15], s3 offen offset:{i*256}')

def ln_compute(A):
    A('s_waitcnt vmcnt(1)')
    A('s_cmp_eq_u32 s74, 1\ns_cbranch_scc1 L_ln_go\ns_waitcnt vmcnt(0)\nL_ln_go:')
    def unpack():
        for i in range(16):
            A(f'v_lshlrev_b32 v{U+2*i}, 16, v{X+i}')
            A(f'v_and_b32 v{U+2*i+1}, 0xffff0000, v{X+i}')
    def pack():
        for i in range(16): A(f'v_cvt_pk_bf16_f32 v{X+i}, v{U+2*i}, v{U+2*i+1}')
    unpack()
    for i in range(16): A(f'v_add_f32 v{D+i}, v{U+i}, v{U+16+i}')
    for st in (8, 4, 2, 1):
        for i in range(st): A(f'v_add_f32 v{D+i}, v{D+i}, v{D+st+i}')
    A(f'v_mov_b32 v5, v{D}')
    row_sum(A, 5, 6)
    A(f'v_mul_f32 v5, {f2u(1/512)}, v5')
    for i in range(32): A(f'v_sub_f32 v{D+i}, v{U+i}, v5')
    A(f'v_mul_f32 v7, v{D}, v{D}\nv_mul_f32 v2, v{D+1}, v{D+1}')
    for i in range(2, 32): A(f'v_fmac_f32 v{(7, 2)[i & 1]}, v{D+i}, v{D+i}')
    A('v_add_f32 v7, v7, v2')
    row_sum(A, 7, 6)
    A(f'v_mul_f32 v7, {f2u(1/512)}, v7')
    rnd_bf16(A, 5); rnd_bf16(A, 7)
    A(f'v_add_f32 v7, {f2u(1e-5)}, v7')
    rnd_bf16(A, 7)
    A('v_sqrt_f32 v7, v7')
    rnd_bf16(A, 7)
    A('v_rcp_f32 v7, v7')
    for i in range(32): A(f'v_sub_f32 v{U+i}, v{U+i}, v5')
    pack(); unpack()
    for i in range(32): A(f'v_mul_f32 v{U+i}, v{U+i}, v7')
    pack()
    A(f's_add_u32 s3, s3, {WS_XN}')
    for i in range(4):
        A(f'buffer_store_dwordx4 v[{X+4*i}:{X+4*i+3}], v4, s[4:7], s3 offen sc1')
        if i < 3: A('s_add_u32 s3, s3, 4096')
```

```python
from asmlib import *
from layout import *
import worker
import struct

def f2u(x): return struct.unpack('<I', struct.pack('<f', x))[0]

LDS_M, LDS_KX, LDS_XQ, LDS_XO, LDS_MISC = 0, 8192, 24576, 29184, 31744
REG_A, REG_B = 32768, 49152
XQP, XOP = 272, 272
SPIN_LIMIT = 1 << 20
D_CLAIM, D_SLOW, D_RINIT, D_FINIT = 0, 4, 8, 128
EXP = {'pl2'}

(vIdx, vMw, vWkL, vXQw, vXQr, vXKr, vKXr, vVXg, vXOw, vXOr,
 vPs, vPl, vMs, vMask, vMr1, vMr2) = range(16)
SEL = 16
ONES = 20
vT0, vT1, vT2, vT3 = 24, 25, 26, 27
VX, MF, ACC, RING, SP = 28, 36, 68, 92, 124
Q0, K0, Q1, K1, V0, V1 = 68, 72, 76, 80, 84, 88
WK0, WO0 = 128, 192
sH, sWV, sStep, sTag, sCur0, sCur1, sNext, sKXo, sVXo, sKMo, sT0, sT1, sT2, sM0w = range(24, 38)
sC, sSpin, sXcc, sRank, sKXm = 44, 46, 47, 48, 49
sTb, sTa, sTg, sSent = 40, 41, 42, 43
sReady, sFlag, sProg = 38, 39, 27
sHw, sHr, sSt1 = 100, 101, 3
WS_HINT = WS_FLAG + 12288

def v(i, n=1): return f'v{i}' if n == 1 else f'v[{i}:{i+n-1}]'
def a_(i, n=1): return f'a{i}' if n == 1 else f'a[{i}:{i+n-1}]'
def s(i, n=1): return f's{i}' if n == 1 else f's[{i}:{i+n-1}]'

class Cnt:
    def __init__(self, A, name, mx): self.A, self.name, self.mx, self.n = A, name, mx, 0
    def issue(self, text):
        self.A(text); self.n += 1; return self.n
    def wait(self, tok):
        k = min(self.n - tok, self.mx)
        self.A(f's_waitcnt {self.name}({k})')
    def wait_all(self): self.A(f's_waitcnt {self.name}(0)')

def smf(A, d, a, b): A(f'v_smfmac_f32_16x16x64_bf16 {v(d,4)}, {v(a,4)}, {b}, {v(vIdx)}')

def ensure(A, tag, inline=False):
    A(f'''
    s_mov_b32 {s(sT2)}, 0
L_ens_{tag}:
    s_cmp_lt_u32 {s(sT1)}, {s(sReady)}
    s_cbranch_scc1 L_ensd_{tag}
    v_mbcnt_lo_u32_b32 {v(vT0)}, -1, 0
    v_mbcnt_hi_u32_b32 {v(vT0)}, -1, {v(vT0)}
    v_and_b32 {v(vT0)}, 15, {v(vT0)}
    v_lshlrev_b32 {v(vT0)}, 2, {v(vT0)}
    buffer_load_dword {v(vT1)}, {v(vT0)}, s[4:7], {s(sFlag)} offen sc0 sc1
    s_add_u32 {s(sT2)}, {s(sT2)}, 1
    s_cmp_lt_u32 {s(sT2)}, {SPIN_LIMIT}
    s_cbranch_scc0 L_rec_exit
    s_waitcnt vmcnt(0)
    v_and_b32 {v(vT1)}, 255, {v(vT1)}
    v_cmp_ne_u32 vcc, 2, {v(vT1)}
    s_or_b32 {s(sT0)}, vcc_lo, 0x10000
    s_ff1_i32_b32 {s(sReady)}, {s(sT0)}
    s_branch L_ens_{tag}
L_ensd_{tag}:
    ''')

def ln_signal(A, tag, younger):
    A(f'''
    s_waitcnt vmcnt({younger})
    s_barrier
    s_cmp_lg_u32 {s(sWV)}, 1
    s_cbranch_scc1 L_nosig_{tag}
    s_cmp_eq_u32 s75, 0x7ffffff0
    s_cbranch_scc1 L_nosig_{tag}
    s_mov_b32 {s(sSpin)}, 0
    s_branch L_sigc_{tag}
L_sigp_{tag}:
    buffer_load_dword v96, off, s[8:11], 0 offset:{D_FINIT} sc0 sc1
    s_add_u32 {s(sSpin)}, {s(sSpin)}, 1
    s_cmp_lt_u32 {s(sSpin)}, {SPIN_LIMIT}
    s_cbranch_scc0 L_rec_exit
    s_waitcnt vmcnt(0)
L_sigc_{tag}:
    v_readfirstlane_b32 {s(sT0)}, v96
    s_cmp_eq_u32 {s(sT0)}, 0
    s_cbranch_scc1 L_sigp_{tag}
    s_mov_b64 exec, 1
    buffer_atomic_add v96, v98, s[4:7], s75 offen
    s_mov_b64 exec, -1
L_nosig_{tag}:
    s_mov_b32 s75, 0x7ffffff0
    ''')

def gen_rec(name, nwg=256, dbg=False, nsteps=NSEG, dl=(30, 70, 60, 20, 20, 0, 1, 1, 30), fused=False):
    A = Asm()
    vL = 99
    import pre
    A(f'''
    s_cmp_ge_u32 s2, {nwg}
    s_cbranch_scc1 L_rec_exit
    {'s_memrealtime s[96:97]' if dbg or 'wt' in EXP else ''}
    s_load_dwordx4 s[52:55], s[0:1], 0
    s_load_dwordx8 s[16:23], s[0:1], 16
    s_load_dwordx4 s[36:39], s[0:1], 88
    s_load_dwordx2 s[50:51], s[0:1], 64
    v_lshrrev_b32 v1, 6, v0
    v_and_b32 {v(vL)}, 63, v0
    s_getreg_b32 {s(sXcc)}, hwreg(HW_REG_XCC_ID)
    v_readfirstlane_b32 {s(sWV)}, v1
    s_and_b32 {s(sXcc)}, {s(sXcc)}, 15
    ''')
    pre.ln_addr(A)
    A(f'''
    s_waitcnt lgkmcnt(0)
    {'s_mov_b32 s91, s96' if 'wt' in EXP else ''}
    s_mov_b32 s4, s38
    s_mov_b32 s5, s39
    s_mov_b32 s6, {WS_SIZE}
    s_mov_b32 s7, 0x20000
    s_mov_b32 s8, s36
    s_mov_b32 s9, s37
    s_mov_b32 s10, 256
    s_mov_b32 s11, 0x20000
    s_mov_b32 s12, s52
    s_mov_b32 s13, s53
    s_mov_b32 s14, 0x200000
    s_mov_b32 s15, 0x20000
    ''')
    pre.ln_load(A)
    A(f'''
    v_mov_b32 v98, 0
    v_mov_b32 v97, 32
    s_mov_b32 s74, 0
    s_or_b32 {s(sT0)}, {s(sWV)}, {s(sXcc)}
    s_cmp_lg_u32 {s(sT0)}, 0
    s_cbranch_scc1 L_el_skip
    s_mov_b32 s74, 1
    v_mov_b32 v97, 1
    s_mov_b64 exec, 1
    buffer_atomic_add v97, v98, s[8:11], 0 offen offset:{D_CLAIM} sc0
    s_mov_b64 exec, -1
L_el_skip:
    s_cmp_ge_u32 s2, 128
    s_cbranch_scc1 L_no_ln
    ''')
    pre.ln_compute(A)
    A(f'''
    buffer_load_dword v96, off, s[8:11], 0 offset:{D_FINIT} sc0 sc1
    s_lshr_b32 s75, s2, 3
    s_lshl_b32 s75, s75, 7
    s_add_u32 s75, s75, {worker.F_LN}
    s_branch L_sig
L_no_ln:
    s_waitcnt vmcnt(0)
    s_mov_b32 s75, 0x7ffffff0
    s_cmp_lg_u32 s2, 128
    s_cbranch_scc1 {'L_sig' if 'nopf' in EXP else 'L_pf'}
    v_lshlrev_b32 v5, 4, v0
    v_mov_b32 v8, 0
    v_mov_b32 v9, 0
    v_mov_b32 v10, 0
    v_mov_b32 v11, 0
    s_mov_b32 {s(sT0)}, {WS_FLAG}
    buffer_store_dwordx4 v[8:11], v5, s[4:7], {s(sT0)} offen sc1
    s_add_u32 {s(sT0)}, {s(sT0)}, 4096
    buffer_store_dwordx4 v[8:11], v5, s[4:7], {s(sT0)} offen sc1
    s_add_u32 {s(sT0)}, {s(sT0)}, 4096
    buffer_store_dwordx4 v[8:11], v5, s[4:7], {s(sT0)} offen sc1
    s_add_u32 {s(sT0)}, {s(sT0)}, 4096
    buffer_store_dwordx4 v[8:11], v5, s[4:7], {s(sT0)} offen sc1
    v_mov_b32 v12, 1
    s_waitcnt vmcnt(0)
    s_barrier
    buffer_store_dword v12, off, s[8:11], 0 offset:{D_FINIT} sc1
L_sig:
    s_cmp_lg_u32 {s(sXcc)}, 0
    s_cbranch_scc1 L_wk_entry
    s_waitcnt vmcnt(5)
    s_cmp_lg_u32 {s(sWV)}, 0
    s_cbranch_scc1 L_rec_elected
    v_mov_b32 v2, {LDS_MISC}
    s_mov_b64 exec, 1
    ds_write_b32 v2, v97
    s_mov_b64 exec, -1
    s_waitcnt lgkmcnt(0)
L_rec_elected:
    s_barrier
    v_mov_b32 v2, {LDS_MISC}
    ds_read_b32 v1, v2
    s_mov_b32 s14, 0x400000
    s_waitcnt lgkmcnt(0)
    v_readfirstlane_b32 {s(sRank)}, v1
    s_cmp_ge_u32 {s(sRank)}, 32
    s_cbranch_scc1 L_wk_entry
L_rec_start:
    s_and_b32 {s(sH)}, {s(sRank)}, 31
    ''')
    if dbg: A('s_memrealtime s[72:73]\ns_waitcnt lgkmcnt(0)\ns_sub_u32 s98, s72, s96')
    tG, tR, tC, tF, tRow, tD0, tD1, tO0, tO1, tTr0, tTr1, tTrO, tA, tN, t7, tX, tY = range(100, 117)
    A(f'''
    v_lshrrev_b32 {v(tG)}, 4, {v(vL)}
    v_bfe_u32 {v(tR)}, {v(vL)}, 2, 2
    v_and_b32 {v(tC)}, 3, {v(vL)}
    v_and_b32 {v(tF)}, 1, {v(tG)}
    v_lshl_or_b32 {v(tF)}, {v(tF)}, 2, {v(tR)}
    v_lshl_add_u32 {v(tRow)}, {v(tG)}, 4, {v(tR)}
    v_lshlrev_b32 {v(tRow)}, 8, {v(tRow)}
    v_lshl_add_u32 {v(tRow)}, {v(tC)}, 3, {v(tRow)}
    s_lshl_b32 {s(sT0)}, {s(sWV)}, 1
    v_xor_b32 {v(tTr0)}, {s(sT0)}, {v(tF)}
    v_lshl_add_u32 {v(tTr0)}, {v(tTr0)}, 5, {v(tRow)}
    s_or_b32 {s(sT0)}, {s(sT0)}, 1
    v_xor_b32 {v(tTr1)}, {s(sT0)}, {v(tF)}
    v_lshl_add_u32 {v(tTr1)}, {v(tTr1)}, 5, {v(tRow)}
    s_lshl_b32 {s(sM0w)}, {s(sWV)}, 15
    v_add_u32 {v(tTrO)}, {s(sM0w)}, {v(tRow)}
    v_and_b32 {v(tN)}, 15, {v(vL)}
    v_lshlrev_b32 {v(vT1)}, 1, {v(tG)}
    v_xor_b32 {v(vT0)}, {v(tN)}, {v(vT1)}
    v_lshlrev_b32 {v(vT0)}, 4, {v(vT0)}
    v_xor_b32 {v(vT1)}, 0x80, {v(vT0)}
    v_lshrrev_b32 {v(vT2)}, 1, {v(tG)}
    v_and_b32 {v(vT3)}, 1, {v(tG)}
    ; D-type: (2*j1 + 16*j0)*8192 + h*256 + 128*w*8192
    v_lshlrev_b32 {v(tX)}, 14, {v(vT2)}
    v_lshl_add_u32 {v(tX)}, {v(vT3)}, 17, {v(tX)}
    s_lshl_b32 {s(sT0)}, {s(sWV)}, 20
    s_lshl_b32 {s(sT1)}, {s(sH)}, 8
    s_add_u32 {s(sT0)}, {s(sT0)}, {s(sT1)}
    v_add_u32 {v(tX)}, {s(sT0)}, {v(tX)}
    v_add_u32 {v(tD0)}, {v(tX)}, {v(vT0)}
    v_add_u32 {v(tD1)}, {v(tX)}, {v(vT1)}
    ; O-type: (32*j1 + j0)*1024 + h*131072 + w*256
    v_lshlrev_b32 {v(tX)}, 15, {v(vT2)}
    v_lshl_add_u32 {v(tX)}, {v(vT3)}, 10, {v(tX)}
    s_lshl_b32 {s(sT0)}, {s(sH)}, 17
    s_lshl_b32 {s(sT1)}, {s(sWV)}, 8
    s_add_u32 {s(sT0)}, {s(sT0)}, {s(sT1)}
    v_add_u32 {v(tX)}, {s(sT0)}, {v(tX)}
    v_add_u32 {v(tO0)}, {v(tX)}, {v(vT0)}
    v_add_u32 {v(tO1)}, {v(tX)}, {v(vT1)}
    ''')
    units = [('q', 0), ('q', 1), ('v', 0), ('v', 1), ('k', 0), ('o', 0), ('k', 1), ('o', 1)]
    PT = {'q': 16, 'k': 18, 'v': 20, 'o': 22}
    def dma_unit(u):
        mat, hi = units[u]; reg = (REG_A, REG_B)[u & 1]
        A(f's_mov_b32 s12, s{PT[mat]}\ns_mov_b32 s13, s{PT[mat]+1}')
        for ii in range(16):
            gb, j = ii >> 2, (ii & 3) * 4
            if mat == 'o': so = e_of(hi, gb, j) * 1024; vo = (tO0, tO1)[gb & 1]
            else: so = (d_of(0, gb, j) + 64 * hi) * 8192; vo = (tD0, tD1)[gb & 1]
            A(f's_add_u32 m0, {s(sM0w)}, {reg + ii * 1024}')
            A(f's_mov_b32 {s(sT0)}, {so}')
            A(f'buffer_load_dwordx4 {v(vo)}, s[12:15], {s(sT0)} offen lds')
    TMPF = 28
    def dest(u, f):
        mat, hi = units[u]
        if u >= 6: return ('v', TMPF + f * 8)
        if mat == 'q': return ('a', (hi * 8 + f) * 8)
        if mat == 'v': return ('a', 128 + (hi * 8 + f) * 8)
        if mat == 'k': return ('v', WK0 + f * 8)
        return ('v', WO0 + f * 8)
    def read_unit(u):
        mat, hi = units[u]; reg = (REG_A, REG_B)[u & 1]
        for f in range(8):
            if mat == 'o':
                A(f'v_xor_b32 {v(tA)}, {f}, {v(tF)}')
                A(f'v_lshl_add_u32 {v(tA)}, {v(tA)}, 5, {v(tTrO)}')
                A(f'v_add_u32 {v(tA)}, {reg}, {v(tA)}')
            else:
                lam, tt = f >> 1, f & 1
                A(f's_xor_b32 {s(sT0)}, {s(sWV)}, {lam}')
                A(f's_lshl_b32 {s(sT0)}, {s(sT0)}, 15')
                A(f's_add_u32 {s(sT0)}, {s(sT0)}, {reg}')
                A(f'v_add_u32 {v(tA)}, {s(sT0)}, {v((tTr0, tTr1)[tt])}')
            fl, d = dest(u, f)
            for t in range(4):
                A(f'ds_read_b64_tr_b16 {fl}[{d+2*t}:{d+2*t+1}], {v(tA)} offset:{t*1024}')
    A('s_cmp_eq_u32 s75, 0x7ffffff0\ns_cbranch_scc1 L_skipsig')
    ln_signal(A, 'r', 0)
    A.label('L_skipsig')
    dma_unit(0); dma_unit(1)
    A(f'''
    v_lshlrev_b32 {v(vT0)}, 4, {v(vL)}
    v_and_b32 {v(vT1)}, 1, {v(vL)}
    v_mov_b32 {v(vIdx)}, 0xffff4444
    v_mov_b32 {v(vT2)}, 0xffffeeee
    v_cmp_ne_u32 vcc, 0, {v(vT1)}
    v_cndmask_b32 {v(vIdx)}, {v(vIdx)}, {v(vT2)}, vcc
    s_lshl_b32 {s(sT0)}, {s(sWV)}, 10
    v_add_u32 {v(vMw)}, {s(sT0)}, {v(vT0)}
    s_add_u32 {s(sT1)}, {s(sM0w)}, {REG_A}
    v_add_u32 {v(vWkL)}, {s(sT1)}, {v(vT0)}
    v_add_u32 {v(vKXr)}, {LDS_KX}, {v(vT0)}
    v_and_b32 {v(t7)}, 7, {v(vL)}
    s_lshl_b32 {s(sT1)}, {s(sWV)}, 6
    v_mul_u32_u24 {v(vXQw)}, {4*XQP}, {v(tG)}
    v_lshl_add_u32 {v(vXQw)}, {v(tN)}, 2, {v(vXQw)}
    s_add_u32 {s(sT2)}, {s(sT1)}, {LDS_XQ}
    v_add_u32 {v(vXQw)}, {s(sT2)}, {v(vXQw)}
    v_mul_u32_u24 {v(vXQr)}, {2*XQP}, {v(t7)}
    v_lshl_add_u32 {v(vXQr)}, {v(tG)}, 4, {v(vXQr)}
    v_add_u32 {v(vXQr)}, {LDS_XQ}, {v(vXQr)}
    v_lshrrev_b32 {v(tX)}, 2, {v(tN)}
    v_lshl_add_u32 {v(tX)}, {v(tX)}, 1, {v(vT1)}
    v_mul_u32_u24 {v(vXKr)}, {2*XQP}, {v(tX)}
    v_lshl_add_u32 {v(vXKr)}, {v(tG)}, 4, {v(vXKr)}
    v_add_u32 {v(vXKr)}, {LDS_XQ + XQP}, {v(vXKr)}
    v_mul_u32_u24 {v(vXOw)}, {XOP}, {v(t7)}
    v_lshl_add_u32 {v(vXOw)}, {v(tG)}, 4, {v(vXOw)}
    s_add_u32 {s(sT2)}, {s(sT1)}, {LDS_XO}
    v_add_u32 {v(vXOw)}, {s(sT2)}, {v(vXOw)}
    v_lshrrev_b32 {v(tX)}, 1, {v(tN)}
    v_mul_u32_u24 {v(vXOr)}, {XOP}, {v(tX)}
    v_lshl_add_u32 {v(vXOr)}, {v(tG)}, 4, {v(vXOr)}
    v_lshl_add_u32 {v(vXOr)}, {v(vT1)}, 6, {v(vXOr)}
    v_add_u32 {v(vXOr)}, {LDS_XO}, {v(vXOr)}
    v_xor_b32 {v(vMr1)}, 1024, {v(vMw)}
    v_xor_b32 {v(vMr2)}, 2048, {v(vMw)}
    v_mov_b32 {v(vMask)}, 0xfffe0000
    v_lshlrev_b32 {v(vVXg)}, 6, {v(tN)}
    v_lshl_add_u32 {v(vVXg)}, {v(tG)}, 4, {v(vVXg)}
    s_lshl_b32 {s(sT2)}, {s(sH)}, 13
    s_lshl_b32 {s(sT0)}, {s(sWV)}, 11
    s_add_u32 {s(sT2)}, {s(sT2)}, {s(sT0)}
    s_add_u32 {s(sT2)}, {s(sT2)}, {WS_VT}
    v_add_u32 {v(vVXg)}, {s(sT2)}, {v(vVXg)}
    v_lshrrev_b32 {v(vPs)}, 2, {v(tN)}
    v_lshlrev_b32 {v(vPs)}, 14, {v(vPs)}
    v_lshrrev_b32 {v(tX)}, 5, {v(vL)}
    v_lshl_add_u32 {v(vPs)}, {v(tX)}, 13, {v(vPs)}
    v_and_b32 {v(tX)}, 1, {v(tG)}
    v_lshl_add_u32 {v(vPs)}, {v(tX)}, {11 if 'pl2' in EXP else 6}, {v(vPs)}
    v_lshl_add_u32 {v(vPs)}, {v(tC)}, 4, {v(vPs)}
    s_lshl_b32 {s(sT2)}, {s(sWV)}, 16
    s_lshl_b32 {s(sT0)}, {s(sH)}, {6 if 'pl2' in EXP else 8}
    s_add_u32 {s(sT2)}, {s(sT2)}, {s(sT0)}
    s_add_u32 {s(sT2)}, {s(sT2)}, {WS_PART}
    v_add_u32 {v(vPs)}, {s(sT2)}, {v(vPs)}
    v_lshlrev_b32 {v(vPl)}, {6 if 'pl2' in EXP else 11}, {v(tR)}
    v_lshl_add_u32 {v(vPl)}, {v(tG)}, {8 if 'pl2' in EXP else 9}, {v(vPl)}
    v_lshl_add_u32 {v(vPl)}, {v(tC)}, 4, {v(vPl)}
    s_lshl_b32 {s(sT2)}, {s(sH)}, 13
    s_lshl_b32 {s(sT0)}, {s(sWV)}, {11 if 'pl2' in EXP else 6}
    s_add_u32 {s(sT2)}, {s(sT2)}, {s(sT0)}
    s_add_u32 {s(sT2)}, {s(sT2)}, {WS_PART}
    v_add_u32 {v(vPl)}, {s(sT2)}, {v(vPl)}
    v_bfe_u32 {v(vMs)}, {v(vL)}, 2, 1
    v_lshlrev_b32 {v(vMs)}, 5, {v(vMs)}
    v_lshl_add_u32 {v(vMs)}, {v(tG)}, 3, {v(vMs)}
    v_bfe_u32 {v(tX)}, {v(vL)}, 1, 1
    v_lshl_add_u32 {v(vMs)}, {v(tX)}, 2, {v(vMs)}
    s_lshl_b32 {s(sT2)}, {s(sH)}, 7
    s_lshr_b32 {s(sT0)}, {s(sWV)}, 1
    s_lshl_b32 {s(sT0)}, {s(sT0)}, 12
    s_add_u32 {s(sT2)}, {s(sT2)}, {s(sT0)}
    s_and_b32 {s(sT0)}, {s(sWV)}, 1
    s_lshl_b32 {s(sT0)}, {s(sT0)}, 6
    s_add_u32 {s(sT2)}, {s(sT2)}, {s(sT0)}
    v_add_u32 {v(vMs)}, {s(sT2)}, {v(vMs)}
    v_and_b32 {v(tX)}, 9, {v(vL)}
    v_cmp_ne_u32 vcc, 0, {v(tX)}
    v_mov_b32 {v(tX)}, 0x7ffffff0
    v_cndmask_b32 {v(vMs)}, {v(vMs)}, {v(tX)}, vcc
    ; SEL[d] = ((l&7)>>1 == d) ? ((l&1) ? 0x3f800000 : 0x00003f80) : 0
    v_lshlrev_b32 {v(tX)}, 4, {v(vT1)}
    v_mov_b32 {v(tY)}, 0x3f80
    v_lshlrev_b32 {v(tY)}, {v(tX)}, {v(tY)}
    v_lshrrev_b32 {v(tX)}, 1, {v(t7)}
    v_cmp_eq_u32 vcc, 0, {v(tX)}
    v_cndmask_b32 {v(SEL)}, 0, {v(tY)}, vcc
    v_cmp_eq_u32 vcc, 1, {v(tX)}
    v_cndmask_b32 {v(SEL+1)}, 0, {v(tY)}, vcc
    v_cmp_eq_u32 vcc, 2, {v(tX)}
    v_cndmask_b32 {v(SEL+2)}, 0, {v(tY)}, vcc
    v_cmp_eq_u32 vcc, 3, {v(tX)}
    v_cndmask_b32 {v(SEL+3)}, 0, {v(tY)}, vcc
    s_mov_b32 {s(sC)}, {f2u(SM_C)}
    s_mov_b32 {s(sSent)}, 0xfffeffff
    s_mov_b32 {s(sC+1)}, {f2u(SM_C)}
    v_mov_b32 {v(ONES)}, 0x3f803f80
    v_mov_b32 {v(ONES+1)}, 0x3f803f80
    v_mov_b32 {v(ONES+2)}, 0x3f803f80
    v_mov_b32 {v(ONES+3)}, 0x3f803f80
    ''')
    A(f'''
    s_mov_b32 s56, s54
    s_mov_b32 s57, s55
    s_mov_b32 s58, 8192
    s_mov_b32 s59, 0x20000
    v_bfe_u32 {v(tX)}, {v(vL)}, 1, 1
    v_lshl_add_u32 {v(tX)}, {v(tX)}, 5, {v(tG)}
    v_bfe_u32 {v(tY)}, {v(vL)}, 2, 1
    v_lshl_add_u32 {v(tX)}, {v(tY)}, 9, {v(tX)}
    v_lshlrev_b32 {v(tX)}, 1, {v(tX)}
    s_lshr_b32 {s(sT0)}, {s(sH)}, 3
    s_lshl_b32 {s(sT0)}, {s(sT0)}, 8
    s_lshr_b32 {s(sT1)}, {s(sWV)}, 1
    s_lshl_b32 {s(sT1)}, {s(sT1)}, 7
    s_add_u32 {s(sT0)}, {s(sT0)}, {s(sT1)}
    s_bfe_u32 {s(sT1)}, {s(sH)}, 0x20001
    s_lshl_b32 {s(sT1)}, {s(sT1)}, 3
    s_add_u32 {s(sT0)}, {s(sT0)}, {s(sT1)}
    s_and_b32 {s(sT1)}, {s(sH)}, 1
    s_lshl_b32 {s(sT1)}, {s(sT1)}, 12
    s_add_u32 {s(sT0)}, {s(sT0)}, {s(sT1)}
    s_and_b32 {s(sT1)}, {s(sWV)}, 1
    s_lshl_b32 {s(sT1)}, {s(sT1)}, 11
    s_add_u32 {s(sT0)}, {s(sT0)}, {s(sT1)}
    buffer_load_ushort v92, {v(tX)}, s[56:59], {s(sT0)} offen
    buffer_load_ushort v93, {v(tX)}, s[56:59], {s(sT0)} offen offset:32
    v_mov_b32 v120, -1
    v_mov_b32 v121, -1
    v_mov_b32 v122, -1
    v_mov_b32 v123, -1
    s_mov_b32 {s(sT1)}, {WS_MF + 8192}
    buffer_store_dwordx4 v[120:123], {v(vPl)}, s[4:7], 0 offen sc1
    buffer_store_dwordx4 v[120:123], {v(vPl)}, s[4:7], 0 offen offset:1024 sc1
    buffer_store_dword v120, {v(vMs)}, s[4:7], {s(sT1)} offen sc1
    ''')
    for u in range(8):
        if u == 2:
            A(f'''
            v_lshl_or_b32 v92, v93, 16, v92
            v_min_u32 v92, {s(sSent)}, v92
            s_mov_b32 {s(sT1)}, {WS_MF}
            buffer_store_dword v92, {v(vMs)}, s[4:7], {s(sT1)} offen sc1
            ''')
        if u == 4:
            A(f'''
            s_cmp_lg_u32 {s(sWV)}, 0
            s_cbranch_scc1 L_nori
            v_mov_b32 v92, 1
            v_mov_b32 v93, 0
            s_mov_b64 exec, 1
            buffer_atomic_add v92, v93, s[8:11], 0 offen offset:{D_RINIT}
            s_mov_b64 exec, -1
L_nori:
            ''')
        A(f's_waitcnt vmcnt({21 if u == 0 else 0 if u == 7 else 16})')
        A('s_barrier')
        read_unit(u)
        A('s_waitcnt lgkmcnt(0)')
        A('s_barrier')
        if u + 2 < 8: dma_unit(u + 2)
        if u >= 6:
            for f in range(8):
                for hf in range(2):
                    A(f'ds_write_b128 {v(vWkL)}, {v(TMPF + f*8 + hf*4, 4)} offset:{(u-6)*16384 + f*2048 + hf*1024}')
            A('s_waitcnt lgkmcnt(0)')
    if dbg: A('s_memrealtime s[72:73]\ns_waitcnt lgkmcnt(0)\ns_sub_u32 s99, s72, s96')
    A(f'''
    s_mov_b32 {s(sStep)}, 0
    s_mov_b32 {s(sTg)}, 0
    s_mov_b32 {s(sTb)}, 0
    s_mov_b32 {s(sTa)}, 0x10000
    s_mov_b32 {s(sCur0)}, {WS_MF}
    s_mov_b32 {s(sCur1)}, {WS_MF + 4096}
    s_mov_b32 {s(sNext)}, {WS_MF + 8192}
    s_lshl_b32 {s(sKXo)}, {s(sH)}, 12
    s_add_u32 {s(sKMo)}, {s(sKXo)}, {WS_KM}
    s_add_u32 {s(sKXo)}, {s(sKXo)}, {WS_K}
    s_mov_b32 {s(sVXo)}, 0
    s_lshl_b32 {s(sKXm)}, {s(sWV)}, 10
    s_add_u32 {s(sKXm)}, {s(sKXm)}, {LDS_KX}
    s_mov_b32 {s(sReady)}, {0 if fused else 16}
    s_lshr_b32 {s(sFlag)}, {s(sH)}, 1
    s_lshl_b32 {s(sFlag)}, {s(sFlag)}, 6
    s_add_u32 {s(sFlag)}, {s(sFlag)}, {WS_FLAG}
    s_lshl_b32 {s(sProg)}, {s(sH)}, 7
    s_add_u32 {s(sProg)}, {s(sProg)}, {worker.F_PROG}
    s_cmp_eq_u32 {s(sWV)}, 0
    s_cselect_b32 {s(sProg)}, {s(sProg)}, 0x7ffffff0
    s_lshl_b32 {s(sHw)}, {s(sH)}, 2
    s_add_u32 {s(sHw)}, {s(sHw)}, {WS_HINT}
    s_cmp_eq_u32 {s(sWV)}, 0
    s_cselect_b32 {s(sHw)}, {s(sHw)}, 0x7ffffff0
    s_lshl_b32 {s(sHr)}, {s(sH)}, 7
    s_add_u32 {s(sHr)}, {s(sHr)}, {WS_HINT}
    {'s_mov_b32 s101, 4096' if 'pl2' in EXP else ''}
    ''')
    A(f'''
    v_mov_b32 {v(vT0)}, 0
    s_mov_b32 {s(sSpin)}, 0
L_ri_poll:
    buffer_load_dwordx3 {v(MF,3)}, {v(vT0)}, s[8:11], 0 offen offset:{D_CLAIM} sc0 sc1
    buffer_load_dword {v(MF+3)}, {v(vT0)}, s[8:11], 0 offen offset:{D_FINIT} sc0 sc1
    s_add_u32 {s(sSpin)}, {s(sSpin)}, 1
    s_cmp_lt_u32 {s(sSpin)}, {SPIN_LIMIT}
    s_cbranch_scc0 L_rec_exit
    s_waitcnt vmcnt(0)
    v_readfirstlane_b32 {s(sT0)}, {v(MF+2)}
    v_readfirstlane_b32 {s(sT1)}, {v(MF+3)}
    v_readfirstlane_b32 {s(sRank)}, {v(MF+1)}
    s_cmp_lt_u32 {s(sT0)}, 32
    s_cbranch_scc1 L_ri_poll
    s_cmp_lt_u32 {s(sT1)}, 1
    s_cbranch_scc1 L_ri_poll
    s_mov_b32 {s(sT1)}, 0
    ''')
    ensure(A, 'p', inline=True)
    A(f'''
    s_mov_b32 m0, {s(sKXm)}
    s_add_u32 {s(sT0)}, {s(sKXo)}, {16*8192}
    buffer_load_dwordx4 {v(vMw)}, s[4:7], {s(sKXo)} offen sc1 lds
    s_add_u32 m0, {s(sKXm)}, 4096
    s_nop 0
    buffer_load_dwordx4 {v(vMw)}, s[4:7], {s(sT0)} offen sc1 lds
    s_add_u32 {s(sKXo)}, {s(sKXo)}, {32*8192}
    s_xor_b32 {s(sKXm)}, {s(sKXm)}, {LDS_KX ^ (LDS_KX + 8192)}
    ''')
    if dbg:
        for i in range(76, 90): A(f's_mov_b32 s{i}, 0')
        A('s_memrealtime s[92:93]\ns_memtime s[94:95]\ns_waitcnt lgkmcnt(0)\ns_mov_b32 s90, s92\ns_mov_b32 s91, s94\ns_sub_u32 s97, s92, s96')
    A(f'''
    s_cmp_lg_u32 {s(sRank)}, 0
    s_cbranch_scc1 L_rec_slow_entry
    ''')
    gen_loop(A, 'f', '', dbg, nsteps, dl)
    A.label('L_rec_slow_entry')
    gen_loop(A, 's', ' sc1', dbg, nsteps, dl)
    A.label('L_rec_fin')
    A(f'v_mov_b32 {v(vT0)}, {nsteps}\ns_waitcnt vmcnt(0)\ns_barrier\nbuffer_store_dword {v(vT0)}, off, s[4:7], {s(sProg)} sc1')
    if dbg:
        A(f'''
        s_memrealtime s[92:93]
        s_memtime s[94:95]
        s_waitcnt lgkmcnt(0)
        s_sub_u32 s90, s92, s90
        s_sub_u32 s91, s94, s91
        s_lshl_b32 {s(sT0)}, {s(sH)}, 2
        s_add_u32 {s(sT0)}, {s(sT0)}, {s(sWV)}
        s_lshl_b32 {s(sT0)}, {s(sT0)}, 6
        s_add_u32 {s(sT0)}, {s(sT0)}, {WS_DBG}
        v_mov_b32 v30, 0
        ''')
        A('s_lshr_b32 s98, s98, 2\ns_lshr_b32 s99, s99, 2\ns_lshl_b32 s98, s98, 20\ns_lshl_b32 s99, s99, 10\ns_or_b32 s87, s98, s99\ns_lshr_b32 s97, s97, 2\ns_or_b32 s87, s87, s97')
        if dbg == 2: A('s_mov_b32 s87, s74')
        for i in range(16):
            A(f'v_mov_b32 v31, s{76+i}\nbuffer_store_dword v31, v30, s[4:7], {s(sT0)} offen offset:{4*i}')
    A.label('L_rec_exit')
    A('s_endpgm')
    A(f'''
L_pf:
    s_cmp_eq_u32 {s(sXcc)}, 0
    s_cbranch_scc1 L_sig
    s_bfe_u32 {s(sT0)}, s2, 0x20005
    s_mov_b32 s12, s16
    s_mov_b32 s13, s17
    s_cmp_eq_u32 {s(sT0)}, 1
    s_cselect_b32 s12, s18, s12
    s_cselect_b32 s13, s19, s13
    s_cmp_eq_u32 {s(sT0)}, 2
    s_cselect_b32 s12, s20, s12
    s_cselect_b32 s13, s21, s13
    s_cmp_eq_u32 {s(sT0)}, 3
    s_cselect_b32 s12, s22, s12
    s_cselect_b32 s13, s23, s13
    s_mov_b32 s14, 0x400000
    s_and_b32 {s(sT0)}, s2, 31
    s_lshl_b32 {s(sT0)}, {s(sT0)}, 17
    v_lshlrev_b32 v5, 4, v0
    ''')
    for i in range(32):
        A(f'buffer_load_dwordx4 v[{8 + 4*(i%8)}:{11 + 4*(i%8)}], v5, s[12:15], {s(sT0)} offen\ns_add_u32 {s(sT0)}, {s(sT0)}, 4096')
    A.label('L_wk_entry')
    ln_signal(A, 'w', 0)
    if not fused: A('s_endpgm')
    if fused: worker.gen_worker(A, sWV, sXcc, sRank, vL, D_FINIT, D_CLAIM, D_SLOW)
    return kernel_head(name) + A.finalize(), kernel_desc(name, 512, 102, 256)

def gen_loop(A, sfx, stf, dbg, nsteps, dl):
    d1a, d1b, d2a, d2b, ps, nd, e2, e3, ef = dl
    L = Cnt(A, 'lgkmcnt', 15); V = Cnt(A, 'vmcnt', 63)
    def stamp(i):
        if dbg: A(f's_mem{"real" if dbg == 2 else ""}time s[{52+2*i}:{53+2*i}]')
    def delay(n):
        while n > 0:
            k = min(n, 16); A(f's_nop {k-1}'); n -= k
    def wdelay(tag, na, nb):
        delay(min(na, nb))
        if na != nb:
            A(f's_cmp_lt_u32 {s(sWV)}, 2\ns_cbranch_scc{1 if na < nb else 0} L_wd{tag}_{sfx}')
            delay(abs(na - nb))
            A.label(f'L_wd{tag}_{sfx}')
    def zero(base, n):
        for i in range(0, n, 2): A(f'v_mov_b64 {v(base+i,2)}, 0')
    def ring_prefetch():
        for f in range(4):
            for hf in range(2):
                L.issue(f'ds_read_b128 {v(RING + f*8 + hf*4, 4)}, {v(vWkL)} offset:{f*2048 + hf*1024}')
    GA = (MF, VX, VX + 4)
    GB = (MF + 16, VX, VX + 4)
    RS = (MF + 20, MF + 4, MF + 12)
    sF = 50
    def gatherA(k=0): return V.issue(f'buffer_load_dwordx4 {v(GA[k],4)}, {v(vMw)}, s[4:7], {s(sCur0)} offen sc1')
    def gatherB(k=0): return V.issue(f'buffer_load_dwordx4 {v(GB[k],4)}, {v(vMw)}, s[4:7], {s(sCur1)} offen sc1')
    def poll_tail(tag, per, sets, nreg, issue, check, finish, blind=0):
        A.label(f'L_{tag}f0_{sfx}')
        A(f's_mov_b64 exec, vcc\ns_mov_b64 {s(sF,2)}, vcc')
        if blind == 0: issue(1); delay(ps)
        if blind <= 1: issue(2)
        A.label(f'L_{tag}l_{sfx}')
        for k in (1, 2):
            A(f's_add_u32 {s(sSpin)}, {s(sSpin)}, 1')
            A(f's_waitcnt vmcnt({per})')
            check(k)
            A(f's_andn2_b64 exec, {s(sF,2)}, vcc')
            for i in range(0, nreg, 2): A(f'v_mov_b64 {v(sets[0]+i,2)}, {v(sets[k]+i,2)}')
            A(f's_and_b64 {s(sF,2)}, {s(sF,2)}, vcc')
            A(f's_cbranch_scc0 L_{tag}d_{sfx}')
            A(f's_mov_b64 exec, {s(sF,2)}')
            issue(k)
        A(f's_cmp_lt_u32 {s(sSpin)}, {SPIN_LIMIT}\ns_cbranch_scc1 L_{tag}l_{sfx}\ns_endpgm')
        A.label(f'L_{tag}d_{sfx}')
        A('s_mov_b64 exec, -1')
        finish()
    def add(d, x, y): A(f'v_add_f32 {v(d)}, {v(x)}, {v(y)}')
    def cvt(d, x, y): A(f'v_cvt_pk_bf16_f32 {v(d)}, {v(x)}, {v(y)}')
    def wq(o, tt): return a_((o * 2 + tt) * 8, 8)
    def wv(o, tt): return a_(128 + (o * 2 + tt) * 8, 8)
    def wk(o, tt):
        lam, hi = o & 3, o >> 2
        return v(WK0 + (lam * 2 + tt) * 8, 8) if hi == 0 else v(RING + ((lam * 2 + tt) & 3) * 8, 8)
    QA, KA, VA = (Q0, Q1), (K0, K1), (V0, V1)
    def mq(o, tt): smf(A, QA[tt], MF + 4 * o, wq(o, tt))
    def mk(o, tt): smf(A, KA[tt], MF + 4 * o, wk(o, tt))
    def mv(o, tt): smf(A, VA[tt], MF + 4 * o, wv(o, tt))
    def chkA(k=0): A(f'v_cmp_lt_u32 vcc, {s(sSent)}, {v(GA[k])}')
    def chkB(k=0): A(f'v_cmp_lt_u32 vcc, {s(sSent)}, {v(GB[k])}')
    ring_prefetch(); zero(ACC, 24)
    A(f's_mov_b32 {s(sSpin)}, 0')
    for k in range(e3 + 1): gatherA(k)
    if nd == 2: gatherB()
    A.label(f'L_loop_{sfx}')
    A(f's_waitcnt vmcnt({e3 + (nd == 2)})')
    chkA()
    L.issue(f'ds_write_b128 {v(vMw)}, {v(MF,4)}')
    A(f's_cbranch_vccnz L_af0_{sfx}')
    A.label(f'L_aok_{sfx}')
    if nd == 0: gatherB()
    stamp(0)
    mq(0, 0)
    A(f'v_xor_b32 {v(vT3)}, 3072, {v(vMw)}')
    mk(0, 0); mq(0, 1); mk(0, 1)
    L.wait_all()
    A('s_barrier')
    stamp(1)
    MR = {1: vMr1, 2: vMr2, 3: vT3}
    mft = {}
    def mfread(o):
        lam, hi = o & 3, o >> 2
        mft[o] = L.issue(f'ds_read_b128 {v(MF + 4*o, 4)}, {v(MR[lam])} offset:{hi*4096}')
    mfread(1); mfread(2); mfread(3)
    mv(0, 0)
    if nd == 1: gatherB()
    mv(0, 1)
    L.wait(mft[1])
    mq(1, 0); mk(1, 0); mq(1, 1); mk(1, 1)
    L.wait(mft[2])
    mq(2, 0); mk(2, 0); mq(2, 1); mk(2, 1)
    L.wait_all()
    mq(3, 0)
    if nd == 1: mk(3, 0); mq(3, 1); mk(3, 1)
    A('s_waitcnt vmcnt(0)')
    chkB()
    L.issue(f'ds_write_b128 {v(vMw)}, {v(MF+16,4)} offset:4096')
    A(f's_cbranch_vccnz L_bf0_{sfx}')
    A.label(f'L_bok_{sfx}')
    if dbg == 1: A(f's_add_u32 s88, s88, {s(sSpin)}')
    if dbg == 2: stamp(2)
    if nd != 1: mk(3, 0); mq(3, 1); mk(3, 1)
    else: mv(1, 0); mv(1, 1); mv(2, 0)
    mq(4, 0)
    L.wait_all()
    A('s_barrier')
    rt = {}
    def refill(lam, tt, hf):
        f = lam * 2 + tt
        rt[(lam, tt)] = L.issue(f'ds_read_b128 {v(RING + (f & 3)*8 + hf*4, 4)}, {v(vWkL)} offset:{f*2048 + hf*1024}')
    kxt = {}
    def kxload(i):
        kxt[i] = L.issue(f'ds_read_b128 {v(RING + 4*i, 4)}, {v(vKXr)} offset:{i*1024}')
    mfread(5); mfread(6); mfread(7)
    mk(4, 0); refill(2, 0, 0)
    mq(4, 1); refill(2, 0, 1)
    mk(4, 1); refill(2, 1, 0)
    (mv(1, 0) if nd != 1 else mv(2, 1)); refill(2, 1, 1)
    V.issue(f'buffer_store_dword {v(vIdx)}, {v(vMs)}, s[4:7], {s(sNext)} offen{stf}')
    L.wait(mft[5])
    mq(5, 0)
    V.issue(f'buffer_load_dwordx4 {v(VX,4)}, {v(vVXg)}, s[4:7], {s(sVXo)} offen sc1')
    mk(5, 0); refill(3, 0, 0)
    mq(5, 1); refill(3, 0, 1)
    mk(5, 1); refill(3, 1, 0)
    L.wait(rt[(2, 0)])
    mq(6, 0); refill(3, 1, 1)
    mk(6, 0); kxload(0)
    tvx = V.issue(f'buffer_load_dwordx4 {v(VX+4,4)}, {v(vVXg)}, s[4:7], {s(sVXo)} offen offset:1024 sc1')
    mq(7, 0); kxload(1)
    L.wait(rt[(3, 0)])
    mk(7, 0); kxload(4)
    mq(6, 1); kxload(5)
    mk(6, 1); add(Q0, Q0, Q0 + 1)
    L.wait(rt[(3, 1)])
    mq(7, 1); add(Q0 + 1, Q0 + 2, Q0 + 3)
    mk(7, 1)
    if dbg != 2: stamp(2)
    add(K0, K0, K0 + 1); add(K0 + 1, K0 + 2, K0 + 3)
    add(Q1, Q1, Q1 + 1); add(Q1 + 1, Q1 + 2, Q1 + 3)
    cvt(vT0, Q0, Q1); cvt(vT1, Q0 + 1, Q1 + 1)
    L.issue(f'ds_write2_b32 {v(vXQw)}, {v(vT0)}, {v(vT1)} offset0:0 offset1:{2*XQP//4}')
    add(K1, K1, K1 + 1); add(K1 + 1, K1 + 2, K1 + 3)
    cvt(SP + 1, K0, K1); cvt(SP + 3, K0 + 1, K1 + 1)
    L.issue(f'ds_write2_b32 {v(vXQw)}, {v(SP+1)}, {v(SP+3)} offset0:{XQP//4} offset1:{3*XQP//4}')
    VL = [(o, t) for o in range(8) for t in range(2)][(3 if nd != 1 else 6):]
    def nv():
        if VL: mv(*VL.pop(0))
    nv(); kxload(2)
    nv(); kxload(3)
    nv(); kxload(6)
    nv(); kxload(7)
    nv()
    L.wait_all()
    A('s_barrier')
    stamp(3)
    if 'trace' in EXP: A('s_memrealtime s[52:53]')
    QF, KMF, SA = ACC, MF, MF + 16
    qt, kt = {}, {}
    def qread(ks): qt[ks] = L.issue(f'ds_read_b128 {v(QF + 4*ks, 4)}, {v(vXQr)} offset:{ks*64}')
    def kread(ks): kt[ks] = L.issue(f'ds_read_b128 {v(KMF + 4*ks, 4)}, {v(vXKr)} offset:{ks*64}')
    qread(0); qread(1)
    nv(); qread(2)
    nv(); qread(3)
    nv(); kread(0)
    nv(); kread(1)
    nv(); kread(2)
    nv(); kread(3)
    nv()
    A(f's_mov_b32 m0, {s(sKXm)}')
    nv()
    TX0, TX1, TM = SA, SA + 4, SA + 8
    def mm(d, a, b, c, k=32):
        n = 4 if k == 32 else 2
        A(f'v_mfma_f32_16x16x{k}_bf16 {v(d,4)}, {v(a,n)}, {v(b,n)}, {c}')
    L.wait(qt[3])
    for ks in range(4):
        mm(TX0, RING + 4 * ks, QF + 4 * ks, '0' if ks == 0 else v(TX0, 4))
        if ks == 0 and 'nodma' not in EXP: V.issue(f'buffer_load_dwordx4 {v(vMw)}, s[4:7], {s(sKXo)} offen sc1 lds')
        if ks == 1 and 'nodma' not in EXP: V.issue(f'buffer_load_dwordx4 {v(vMw)}, s[4:7], {s(sT0)} offen sc1 lds')
        if ks == 2: add(V0, V0, V0 + 1); add(V0 + 1, V0 + 2, V0 + 3)
        if ks == 3: cvt(SP, V0, V0 + 1); cvt(SP + 2, V1, V1 + 1)
        mm(TX1, RING + 16 + 4 * ks, QF + 4 * ks, '0' if ks == 0 else v(TX1, 4))
        if ks == 0: A(f's_add_u32 m0, {s(sKXm)}, 4096\ns_add_u32 {s(sT0)}, {s(sKXo)}, {16*8192}')
        if ks == 1: A(f'v_mov_b32 {v(vT0)}, {s(sStep)}')
        if ks == 2: add(V1, V1, V1 + 1); add(V1 + 1, V1 + 2, V1 + 3)
    L.wait(kt[3])
    M_, T_ = vT2, vT3
    mm(TM, KMF, QF, '0')
    if 'nokv' not in EXP: V.issue(f'buffer_store_dwordx4 {v(SP,4)}, {v(vMw)}, s[4:7], {s(sKMo)} offen sc1')
    mm(TM, KMF + 4, QF + 4, v(TM, 4))
    if 'nokv' not in EXP: V.issue(f'buffer_store_dword {v(vT0)}, off, s[4:7], {s(sProg)} sc1')
    if 'trace' in EXP:
        A(f's_lshl_b32 s54, {s(sH)}, 8\ns_lshl_b32 s55, {s(sStep)}, 2\ns_add_u32 s54, s54, s55\ns_add_u32 s54, s54, {WS_DBG + 65536}\ns_cmp_eq_u32 {s(sWV)}, 0\ns_cselect_b32 s54, s54, 0x7ffffff0\nv_mov_b32 {v(vT1)}, s52')
        V.issue(f'buffer_store_dword {v(vT1)}, off, s[4:7], s54')
    A(f's_cmp_eq_u32 {s(sStep)}, {nsteps-1}')
    mm(TM, KMF + 8, QF + 8, v(TM, 4))
    A(f'v_max3_f32 {v(M_)}, {v(TX0)}, {v(TX0+1)}, {v(TX0+2)}')
    A(f'v_max3_f32 {v(T_)}, {v(TX0+3)}, {v(TX1)}, {v(TX1+1)}')
    mm(TM, KMF + 12, QF + 12, v(TM, 4))
    A(f's_cbranch_scc1 L_rec_fin')
    stamp(4)
    wt = {}
    def wofill(T, hf):
        wt[T] = L.issue(f'ds_read_b128 {v(MF + (T & 3)*8 + hf*4, 4)}, {v(vWkL)} offset:{16384 + T*2048 + hf*1024}')
    PM, PX = ACC, ACC + 4
    OL, O0_, O1_ = ACC + 8, V0, V1
    A(f'''
    v_max3_f32 {v(M_)}, {v(M_)}, {v(TX1+2)}, {v(TX1+3)}
    v_max_f32 {v(M_)}, {v(M_)}, {v(T_)}
    ''')
    wofill(0, 0); wofill(0, 1); wofill(1, 0); wofill(1, 1)
    A(f'''
    v_max3_f32 {v(T_)}, {v(M_)}, {v(TM)}, {v(TM+1)}
    v_max3_f32 {v(M_)}, {v(M_)}, {v(TM)}, {v(TM+1)}
    v_mov_b32 {v(PM+1)}, 0
    v_permlane32_swap_b32 {v(M_)}, {v(T_)}
    v_max_f32 {v(vT0)}, {v(M_)}, {v(T_)}
    v_max_f32 {v(vT1)}, {v(M_)}, {v(T_)}
    v_permlane16_swap_b32 {v(vT0)}, {v(vT1)}
    v_max_f32 {v(M_)}, {v(vT0)}, {v(vT1)}
    v_mul_f32 {v(M_)}, {s(sC)}, {v(M_)}
    ''')
    def pkf(x): A(f'v_pk_fma_f32 {v(x,2)}, {v(x,2)}, {s(sC,2)}, {v(M_,2)} op_sel_hi:[1,1,0] neg_lo:[0,0,1] neg_hi:[0,0,1]')
    def ex(x): A(f'v_exp_f32 {v(x)}, {v(x)}')
    pkf(TM); pkf(TX0); pkf(TX0 + 2); pkf(TX1); pkf(TX1 + 2)
    ex(TM); ex(TM + 1); ex(TX0)
    cvt(PM, TM, TM + 1)
    ex(TX0 + 1); ex(TX0 + 2)
    mm(OL, ONES, PM, '0', 16)
    ex(TX0 + 3); cvt(PX, TX0, TX0 + 1)
    mm(O0_, SP, PM, '0', 16)
    ex(TX1); cvt(PX + 1, TX0 + 2, TX0 + 3)
    mm(O1_, SP + 2, PM, '0', 16)
    ex(TX1 + 1); ex(TX1 + 2); ex(TX1 + 3)
    cvt(PX + 2, TX1, TX1 + 1); cvt(PX + 3, TX1 + 2, TX1 + 3)
    stamp(5)
    V.wait(tvx)
    mm(OL, ONES, PX, v(OL, 4))
    wofill(2, 0); wofill(2, 1)
    mm(O0_, VX, PX, v(O0_, 4))
    wofill(3, 0); wofill(3, 1)
    mm(O1_, VX + 4, PX, v(O1_, 4))
    WA = RING
    A(f'v_rcp_f32 {v(M_)}, {v(OL)}')
    zero(WA, 2)
    OX = ACC + 12
    def mul(x): A(f'v_mul_f32 {v(x)}, {v(M_)}, {v(x)}')
    for r in range(4): mul(O0_ + r)
    cvt(OX, O0_, O0_ + 1); cvt(OX + 1, O0_ + 2, O0_ + 3)
    for r in range(4): mul(O1_ + r)
    cvt(OX + 2, O1_, O1_ + 1); cvt(OX + 3, O1_ + 2, O1_ + 3)
    L.issue(f'ds_write_b128 {v(vXOw)}, {v(OX,4)}')
    zero(WA + 2, 30)
    if 'hint' in EXP:
        A(f'''
        s_add_u32 {s(sSt1)}, {s(sStep)}, 1
        v_and_b32 {v(ACC+8)}, 0x1f0, {v(vMw)}
        v_lshrrev_b32 {v(vT3)}, 2, {v(ACC+8)}
        v_lshlrev_b32 {v(ACC+8)}, 3, {v(ACC+8)}
        v_mov_b32 {v(ACC+9)}, {s(sSt1)}
        ''')
    stamp(6)
    L.wait_all()
    A('s_barrier')
    if dbg != 2: stamp(7)
    OA = V0
    ot0 = L.issue(f'ds_read_b128 {v(OA,4)}, {v(vXOr)}')
    ot1 = L.issue(f'ds_read_b128 {v(OA+4,4)}, {v(vXOr)} offset:128')
    if 'hint' in EXP: V.issue(f'buffer_store_dword {v(ACC+9)}, {v(ACC+8)}, s[4:7], {s(sHw)} offen{stf}')
    ht = {}
    def hpoll(k): ht[k] = V.issue(f'buffer_load_dword {v(vT0+k)}, {v(vT3)}, s[4:7], {s(sHr)} offen sc1')
    def hchk(k): A(f'v_cmp_gt_u32 vcc, {s(sSt1)}, {v(vT0+k)}')
    A(f'''
    s_add_u32 {s(sKXo)}, {s(sKXo)}, {32*8192}
    s_xor_b32 {s(sKXm)}, {s(sKXm)}, {LDS_KX ^ (LDS_KX + 8192)}
    s_add_u32 {s(sVXo)}, {s(sVXo)}, {32*128*64}
    s_add_u32 {s(sKMo)}, {s(sKMo)}, {32*4096}
    v_xor_b32 {v(vKXr)}, {LDS_KX ^ (LDS_KX + 8192)}, {v(vKXr)}
    ''')
    L.wait(ot0)
    PO = ACC
    PU = VX
    def hs(T, j): add(PO + 2 * T + j, WA + 4 * T + 2 * j, WA + 4 * T + 2 * j + 1)
    def tag(Qd):
        x = PO + 8 * Qd
        A(f'v_add_u32 {v(x)}, {s(sTa)}, {v(x)}')
        A(f'v_and_or_b32 {v(x)}, {v(x)}, {v(vMask)}, {s(sTb)}')
    def pk(P):
        Qd, p = P >> 1, P & 1
        for j in range(2): cvt(PU + 4 * Qd + 2 * j + p, PO + 4 * P + j, PO + 4 * P + 2 + j)
    def pstore(Qd):
        if 'pl2' in EXP: V.issue(f'buffer_store_dwordx4 {v(PU+4*Qd,4)}, {v(vPs)}, s[4:7], {(0, s(sHr))[Qd]} offen{stf}')
        else: V.issue(f'buffer_store_dwordx4 {v(PU+4*Qd,4)}, {v(vPs)}, s[4:7], 0 offen offset:{Qd*128}{stf}')
    for T in range(8):
        smf(A, WA + 4 * T, OA, v(WO0 + 8 * T, 8))
        if T == 0: L.wait(ot1)
        if T in (1, 3, 5) and 'hint' in EXP: hpoll(T >> 1)
        if T >= 2: hs(T - 2, 0)
        if T >= 4: L.wait(wt[T])
        smf(A, WA + 4 * T, OA + 4, v(MF + (T & 3) * 8, 8))
        if T < 4: wofill(T + 4, 0); wofill(T + 4, 1)
        if T >= 2: hs(T - 2, 1)
        if T in (2, 6): tag(T >> 2)
        if T >= 3 and T % 2 == 1: pk((T - 3) // 2)
        if T == 5:
            pstore(0)
            if dbg == 2: stamp(7)
    hs(6, 0); hs(6, 1); hs(7, 0); hs(7, 1); pk(3); pstore(1)
    stamp(8)
    RD, RT = vT0, MF + 28
    A(f's_mov_b32 {s(sSpin)}, 0')
    def red_issue(k=0):
        for i in range(2):
            V.issue(f'buffer_load_dwordx4 {v(RS[k] + 4*i, 4)}, {v(vPl)}, s[4:7], 0 offen offset:{i*(1024 if "pl2" in EXP else 256)} sc1')
    def chkR(k=0):
        A(f'v_bitop3_b32 {v(RT)}, {v(RS[k])}, {v(RS[k]+4)}, {s(sTg)} bitop3:0x7e')
        if k == 0: mm(RD, RS[k], SEL, '0')
        A(f'v_and_b32 {v(RT)}, 1, {v(RT)}')
        A(f'v_cmp_ne_u32 vcc, 0, {v(RT)}')
        if k == 0: mm(RD, RS[k] + 4, SEL, v(RD, 4))
    A(f's_add_u32 {s(sT1)}, {s(sStep)}, 2\ns_lshr_b32 {s(sT1)}, {s(sT1)}, 2\ns_min_u32 {s(sT1)}, {s(sT1)}, 15')
    A(f's_cmp_lt_u32 {s(sT1)}, {s(sReady)}\ns_cbranch_scc0 L_need_{sfx}')
    A.label(f'L_have_{sfx}')
    if 'hint' in EXP:
        V.wait(ht[1])
        hchk(0)
        A(f's_cbranch_vccz L_h1_{sfx}')
        hchk(1)
        A(f's_cbranch_vccz L_h2_{sfx}')
        hpoll(0)
        V.wait(ht[2])
        hchk(2)
        A(f's_cbranch_vccnz L_hf_{sfx}')
        delay(e3)
        A.label(f'L_h2_{sfx}')
        delay(e2)
    A.label(f'L_h1_{sfx}')
    wdelay('1', d1a, d1b)
    red_issue(0)
    ring_prefetch(); zero(ACC, 24)
    for k in range(1, e2 + 1):
        delay(ef - 20 if k == 1 else ef); red_issue(k)
    A(f's_waitcnt vmcnt({2*e2})')
    chkR(0)
    A(f's_cbranch_vccnz L_rf0_{sfx}')
    A.label(f'L_rok_{sfx}')
    stamp(9)
    if dbg == 1: A(f's_add_u32 s89, s89, {s(sSpin)}')
    A(f'''
    v_permlane32_swap_b32 {v(RD)}, {v(RD+2)}
    v_permlane32_swap_b32 {v(RD+1)}, {v(RD+3)}
    v_add_f32 {v(RD)}, {v(RD)}, {v(RD+2)}
    v_add_f32 {v(RD+1)}, {v(RD+1)}, {v(RD+3)}
    v_permlane16_swap_b32 {v(RD)}, {v(RD+1)}
    v_add_f32 {v(RD)}, {v(RD)}, {v(RD+1)}
    v_mov_b32_dpp {v(RD+1)}, {v(RD)} quad_perm:[1,0,3,2] row_mask:0xf bank_mask:0xf
    v_cvt_pk_bf16_f32 {v(RD)}, {v(RD)}, {v(RD+1)}
    v_min_u32 {v(RD)}, {s(sSent)}, {v(RD)}
    buffer_store_dword {v(RD)}, {v(vMs)}, s[4:7], {s(sNext)} offen{stf}
    s_xor_b32 {s(sCur0)}, {s(sCur0)}, 8192
    s_xor_b32 {s(sCur1)}, {s(sCur1)}, 8192
    s_xor_b32 {s(sNext)}, {s(sNext)}, 8192
    s_xor_b32 {s(sTg)}, {s(sTg)}, 1
    s_xor_b32 {s(sTb)}, {s(sTb)}, 0x10000
    s_xor_b32 {s(sTa)}, {s(sTa)}, 0x10000
    s_add_u32 {s(sStep)}, {s(sStep)}, 1
    s_mov_b32 {s(sSpin)}, 0
    ''')
    stamp(10)
    wdelay('2', d2a, d2b)
    for k in range(e3 + 1):
        if k: delay(ef)
        gatherA(k)
        if nd == 2 and k == e3: gatherB()
    if dbg == 2:
        A(f's_cmp_lg_u32 {s(sStep)}, 31\ns_cbranch_scc1 L_nd1_{sfx}\ns_waitcnt lgkmcnt(0)')
        for i in range(11): A(f's_mov_b32 s{76+i}, s{52+2*i}')
        A(f'L_nd1_{sfx}:\ns_cmp_lg_u32 {s(sStep)}, 32\ns_cbranch_scc1 L_nd2_{sfx}\ns_waitcnt lgkmcnt(0)')
        A(f's_mov_b32 s88, s52\ns_mov_b32 s89, s56\ns_mov_b32 s74, s58\nL_nd2_{sfx}:')
    elif dbg:
        A('s_waitcnt lgkmcnt(0)')
        for i in range(10):
            A(f's_sub_u32 {s(sT0)}, s{52+2*(i+1)}, s{52+2*i}\ns_add_u32 s{76+i}, s{76+i}, {s(sT0)}')
        A(f's_sub_u32 {s(sT0)}, s52, s87\ns_cmp_eq_u32 {s(sStep)}, 1\ns_cselect_b32 {s(sT0)}, 0, {s(sT0)}\ns_add_u32 s86, s86, {s(sT0)}\ns_mov_b32 s87, s72')
    A(f's_branch L_loop_{sfx}')
    A.label(f'L_need_{sfx}')
    ensure(A, sfx)
    A(f's_branch L_have_{sfx}')
    A.label(f'L_hf_{sfx}')
    hpoll(1)
    A.label(f'L_hl_{sfx}')
    for k in (0, 1):
        A('s_waitcnt vmcnt(1)')
        hchk(k)
        A(f's_cbranch_vccz L_hd_{sfx}')
        hpoll(k)
    A(f's_add_u32 {s(sSpin)}, {s(sSpin)}, 1\ns_cmp_lt_u32 {s(sSpin)}, {SPIN_LIMIT}\ns_cbranch_scc1 L_hl_{sfx}\ns_endpgm')
    A.label(f'L_hd_{sfx}')
    delay(ef)
    A(f's_branch L_h1_{sfx}')
    poll_tail('a', 1, GA, 4, gatherA, chkA, lambda: A(f'ds_write_b128 {v(vMw)}, {v(MF,4)}\ns_branch L_aok_{sfx}'), blind=e3)
    poll_tail('b', 1, GB, 4, gatherB, chkB, lambda: A(f'ds_write_b128 {v(vMw)}, {v(MF+16,4)} offset:4096\ns_branch L_bok_{sfx}'))
    def finR():
        mm(RD, RS[0], SEL, '0'); mm(RD, RS[0] + 4, SEL, v(RD, 4)); A(f's_branch L_rok_{sfx}')
    poll_tail('r', 2, RS, 8, red_issue, chkR, finR, blind=e2)

HDR = '; @launch grid=(256,1,1) block=(256,1,1) lds=163840\n.amdgcn_target "amdgcn-amd-amdhsa--gfx950"\n'
```

```python
from asmlib import *
from layout import *
import gemm1 as g
import struct
def f2u(x): return struct.unpack('<I', struct.pack('<f', x))[0]
def v(i, n=1): return f'v{i}' if n == 1 else f'v[{i}:{i+n-1}]'
def a_(i, n=1): return f'a{i}' if n == 1 else f'a[{i}:{i+n-1}]'
def s(i, n=1): return f's{i}' if n == 1 else f's[{i}:{i+n-1}]'
F_KVQ, F_H1, F_ATT, F_PROG = WS_FLAG, WS_FLAG + 1024, WS_FLAG + 4096, WS_FLAG + 8192
F_LN, F_Q, F_TK = WS_FLAG + 12288, WS_FLAG + 12288 + 2048, WS_FLAG + 12288 + 3072
N_G1, N_G2, N_ATT = 880, 128, 512
N_AW = 32
LB = 160000
gTk, wSp, wA, wB, wC, wD, wSeg = 74, 75, 81, 82, 83, 84, 85
vZ, vLB, vTk = 12, 13, 14
WSPIN = 1 << 18
EXP = set()

def wait_flag(A, tag, soff, cmp, val, far=None, slp=8, srd='s[4:7]'):
    A(f'''
    s_mov_b32 {s(wSp)}, 0
L_wf_{tag}:
    buffer_load_dword {v(vTk)}, {v(vZ)}, {srd}, {s(soff)} offen sc0 sc1
    s_add_u32 {s(wSp)}, {s(wSp)}, 1
    s_cmp_lt_u32 {s(wSp)}, {WSPIN}
    s_cbranch_scc0 L_rec_exit
    s_waitcnt vmcnt(0)
    v_readfirstlane_b32 {s(wD)}, {v(vTk)}
    s_cmp_{cmp}_u32 {s(wD)}, {val}
    s_cbranch_scc1 L_wfd_{tag}
    s_sleep {slp * (8 if 'slowpoll' in EXP else 1)}
    {'' if far is None else far}
    s_branch L_wf_{tag}
L_wfd_{tag}:
    ''')

def signal(A, soff, val, nxt='L_wk_next'):
    A(f'''
    s_waitcnt vmcnt(0)
    s_barrier
    s_cmp_lg_u32 {s(g.gW)}, 0
    s_cbranch_scc1 {nxt}
    v_mov_b32 {v(vTk)}, {val}
    s_mov_b64 exec, 1
    buffer_atomic_add {v(vTk)}, {v(vZ)}, s[4:7], {s(soff)} offen
    s_mov_b64 exec, -1
    s_branch {nxt}
    ''')

def gen_att_task(A):
    vL = g.gL
    vG, vN, vQ, vKM, vVX, vVM, vT0, vT1, vM, vT = 160, 161, 162, 163, 164, 165, 166, 167, 168, 169
    ONES = 172
    QF, KX, KM, VX, VM = 16, 48, 80, 96, 128
    SA, PM, PX, OL, O = 176, 188, 192, 196, 200
    OUT = 216
    A(f'''
L_att_next:
    s_add_u32 {s(gTk)}, {s(gTk)}, {N_AW}
    s_cmp_ge_u32 {s(gTk)}, {N_G1 + N_G2 + N_ATT}
    s_cbranch_scc1 L_rec_exit
L_att:
    s_sub_u32 {s(wA)}, {s(gTk)}, {N_G1 + N_G2}
    s_lshr_b32 s24, {s(wA)}, 3
    s_and_b32 s25, {s(wA)}, 7
    s_lshl_b32 s25, s25, 2
    s_add_u32 s25, s25, {s(g.gW)}
    s_lshr_b32 {s(wA)}, s25, 1
    s_lshl_b32 {s(wA)}, {s(wA)}, 4
    s_lshr_b32 {s(wB)}, s24, 2
    s_add_u32 {s(wA)}, {s(wA)}, {s(wB)}
    s_lshl_b32 {s(wA)}, {s(wA)}, 2
    s_add_u32 {s(wA)}, {s(wA)}, {F_KVQ}
    v_lshrrev_b32 {v(vG)}, 4, {v(vL)}
    v_and_b32 {v(vN)}, 15, {v(vL)}
    v_lshlrev_b32 {v(vQ)}, 4, {v(vL)}
    s_lshl_b32 s26, s24, 18
    s_lshl_b32 s27, s25, 12
    s_add_u32 s26, s26, s27
    s_add_u32 s27, s26, {WS_Q}
    s_add_u32 s28, s27, {16*8192}
    s_add_u32 s29, s26, {WS_K}
    s_add_u32 s30, s29, {16*8192}
    s_add_u32 s34, s26, {WS_O}
    s_add_u32 s35, s34, {16*8192}
    s_lshl_b32 s31, s24, 5
    s_add_u32 s31, s31, s25
    s_lshl_b32 s36, s31, 12
    s_add_u32 s36, s36, {WS_KM}
    s_lshl_b32 s32, s31, 13
    s_add_u32 s32, s32, {WS_VT}
    s_add_u32 s33, s32, 4096
    v_lshrrev_b32 {v(vT0)}, 2, {v(vN)}
    v_and_b32 {v(vT1)}, 1, {v(vN)}
    v_lshlrev_b32 {v(vKM)}, 8, {v(vT0)}
    v_lshl_add_u32 {v(vKM)}, {v(vG)}, 6, {v(vKM)}
    v_lshl_add_u32 {v(vKM)}, {v(vT1)}, 3, {v(vKM)}
    v_lshlrev_b32 {v(vVX)}, 6, {v(vN)}
    v_lshl_add_u32 {v(vVX)}, {v(vG)}, 4, {v(vVX)}
    ''')
    wait_flag(A, 'a1', wA, 'eq', '258')
    ld = lambda d, a, so, off: A(f'buffer_load_dwordx4 {v(d,4)}, {v(a)}, s[4:7], s{so} offen offset:{off} sc1')
    for ks in range(4): ld(QF + 4 * ks, vQ, 27, ks * 1024)
    for ks in range(4): ld(KX + 4 * ks, vQ, 29, ks * 1024)
    for ks in range(4): ld(QF + 16 + 4 * ks, vQ, 28, ks * 1024)
    for ks in range(4): ld(KX + 16 + 4 * ks, vQ, 30, ks * 1024)
    for ft in range(8): ld(VX + 4 * ft, vVX, 32 + (ft >> 2), (ft & 3) * 1024)
    for i in range(4): A(f'v_mov_b32 {v(ONES+i)}, 0x3f803f80')
    A(f'v_lshlrev_b32 {v(vT0)}, 2, {v(vG)}')
    for r in range(4):
        A(f'v_add_u32 {v(vT1)}, {r}, {v(vT0)}')
        A(f'v_cmp_le_u32 s[{40+2*r}:{41+2*r}], {v(vT1)}, {v(vN)}')
    A(f's_mov_b32 s48, {f2u(SM_C)}\nv_mov_b32 {v(vT0)}, 0xf149f2ca\nv_mov_b32 {v(PM+1)}, 0')
    A(f's_lshl_b32 {s(wA)}, s25, 7\ns_add_u32 {s(wA)}, {s(wA)}, {F_PROG}')
    wait_flag(A, 'a2', wA, 'gt', 's24', far=f's_cmp_ge_u32 {s(wD)}, s24\ns_cbranch_scc1 L_wf_a2\ns_sleep 48', slp=4)
    for ks in range(4):
        for i in range(4): A(f'buffer_load_dword {v(KM + 4*ks + i)}, {v(vKM)}, s[4:7], s36 offen offset:{ks*1024 + i*16 + 4} sc1')
    for w in range(4): ld(VM + 4 * w, vQ, 36, w * 1024)
    def mm(d, a, b, c, k=32):
        n = 4 if k == 32 else 2
        A(f'v_mfma_f32_16x16x{k}_bf16 {v(d,4)}, {v(a,n)}, {v(b,n)}, {c}')
    TM, TX0, TX1 = SA, SA + 4, SA + 8
    for qt in range(2):
        q = QF + 16 * qt
        for ks in range(4):
            mm(TX0, KX + 4 * ks, q + 4 * ks, '0' if ks == 0 else v(TX0, 4))
            if qt == 1: mm(TX1, KX + 16 + 4 * ks, q + 4 * ks, '0' if ks == 0 else v(TX1, 4))
        if qt == 0: A('s_waitcnt vmcnt(4)')
        for ks in range(4):
            mm(TM, KM + 4 * ks, q + 4 * ks, '0' if ks == 0 else v(TM, 4))
        D = TX0 if qt == 0 else TX1
        for r in range(4): A(f'v_cndmask_b32 {v(D+r)}, {v(vT0)}, {v(D+r)}, s[{40+2*r}:{41+2*r}]')
        A(f'v_max3_f32 {v(vM)}, {v(TX0+3)}, {v(TX0+1)}, {v(TX0+2)}')
        if qt == 1:
            A(f'v_max3_f32 {v(vM)}, {v(vM)}, {v(TX1)}, {v(TX1+1)}')
            A(f'v_max3_f32 {v(vM)}, {v(vM)}, {v(TX1+2)}, {v(TX1+3)}')
        A(f'v_max_f32 {v(vM)}, {v(vM)}, {v(TX0)}')
        A(f'v_max3_f32 {v(vM)}, {v(vM)}, {v(TM)}, {v(TM+1)}')
        for p in ('32', '16'):
            A(f'v_mov_b32 {v(vT)}, {v(vM)}\nv_permlane{p}_swap_b32 {v(vM)}, {v(vT)}\nv_max_f32 {v(vM)}, {v(vM)}, {v(vT)}')
        A(f'v_mul_f32 {v(vM)}, s48, {v(vM)}')
        regs = [TM, TM + 1] + [TX0 + r for r in range(4)] + ([TX1 + r for r in range(4)] if qt else [])
        for x in regs: A(f'v_fma_f32 {v(x)}, {v(x)}, s48, -{v(vM)}')
        for x in regs: A(f'v_exp_f32 {v(x)}, {v(x)}')
        A(f'v_cvt_pk_bf16_f32 {v(PM)}, {v(TM)}, {v(TM+1)}')
        A(f'v_cvt_pk_bf16_f32 {v(PX)}, {v(TX0)}, {v(TX0+1)}\nv_cvt_pk_bf16_f32 {v(PX+1)}, {v(TX0+2)}, {v(TX0+3)}')
        if qt: A(f'v_cvt_pk_bf16_f32 {v(PX+2)}, {v(TX1)}, {v(TX1+1)}\nv_cvt_pk_bf16_f32 {v(PX+3)}, {v(TX1+2)}, {v(TX1+3)}')
        else: A(f'v_mov_b32 {v(PX+2)}, 0\nv_mov_b32 {v(PX+3)}, 0')
        if qt == 0: A('s_waitcnt vmcnt(0)')
        mm(OL, ONES, PM, '0', 16)
        def pv(ks, first=False):
            for b in range(2):
                o = O + (ks & 1) * 8 + 4 * b; ft = 2 * ks + b
                mm(o, VM + 2 * ft, PM, '0', 16)
            if first: mm(OL, ONES, PX, v(OL, 4))
            for b in range(2):
                o = O + (ks & 1) * 8 + 4 * b; ft = 2 * ks + b
                mm(o, VX + 4 * ft, PX, v(o, 4))
        def fin(ks):
            o = O + (ks & 1) * 8; e = OUT + (ks & 1) * 4
            for i in range(8): A(f'v_mul_f32 {v(o+i)}, {v(vT1)}, {v(o+i)}')
            for r in range(4): A(f'v_cvt_pk_bf16_f32 {v(e+r)}, {v(o+r)}, {v(o+4+r)}')
            A(f'buffer_store_dwordx4 {v(e,4)}, {v(vQ)}, s[4:7], s{34+qt} offen offset:{ks*1024} sc1')
        pv(0, True)
        A(f'v_rcp_f32 {v(vT1)}, {v(OL)}')
        pv(1); fin(0); pv(2); fin(1); pv(3); fin(2); fin(3)
    A(f's_lshl_b32 {s(wA)}, s24, 6\ns_add_u32 {s(wA)}, {s(wA)}, {F_ATT}')
    signal(A, wA, 1, 'L_att_next')

def gen_g2_task(A):
    vL = g.gL
    vG, vN, vA, vW, vR, vX, vS, vT0 = 1, 2, 3, 4, 5, 6, 7, 8
    ACC, FW, XR, FA = 16, 32, 40, 44
    NR = 52
    RED = 131072
    A(f'''
L_g2:
    s_sub_u32 {s(wA)}, {s(gTk)}, {N_G1}
    s_and_b32 s24, {s(wA)}, 15
    s_lshr_b32 {s(wSeg)}, {s(wA)}, 4
    s_load_dwordx4 s[28:31], s[0:1], 72
    s_load_dwordx2 s[32:33], s[0:1], 0
    v_lshrrev_b32 {v(vG)}, 4, {v(vL)}
    v_and_b32 {v(vN)}, 15, {v(vL)}
    s_lshl_b32 s25, {s(g.gW)}, 15
    s_lshl_b32 s26, {s(g.gW)}, 10
    v_lshlrev_b32 {v(vS)}, 4, {v(vL)}
    v_add_u32 {v(vA)}, s26, {v(vS)}
    v_bfe_u32 {v(vW)}, {v(vL)}, 2, 1
    v_lshlrev_b32 {v(vW)}, 4, {v(vW)}
    v_lshrrev_b32 {v(vT0)}, 5, {v(vL)}
    v_lshl_add_u32 {v(vW)}, {v(vT0)}, 2, {v(vW)}
    v_bfe_u32 {v(vT0)}, {v(vL)}, 3, 2
    v_add_u32 {v(vW)}, {v(vW)}, {v(vT0)}
    v_lshlrev_b32 {v(vW)}, 10, {v(vW)}
    v_and_b32 {v(vT0)}, 3, {v(vL)}
    v_lshl_add_u32 {v(vW)}, {v(vT0)}, 4, {v(vW)}
    s_lshl_b32 s27, s24, 6
    s_add_u32 {s(wA)}, s27, s25
    v_add_u32 {v(vW)}, {s(wA)}, {v(vW)}
    v_bfe_u32 {v(vR)}, {v(vL)}, 2, 2
    v_lshl_add_u32 {v(vR)}, {v(vG)}, 3, {v(vR)}
    v_lshlrev_b32 {v(vR)}, 6, {v(vR)}
    v_lshl_add_u32 {v(vR)}, {v(vT0)}, 4, {v(vR)}
    v_add_u32 {v(vR)}, s25, {v(vR)}
    v_lshlrev_b32 {v(vX)}, 10, {v(vN)}
    v_lshl_add_u32 {v(vX)}, {v(vG)}, 4, {v(vX)}
    v_add_u32 {v(vX)}, s27, {v(vX)}
    s_mov_b32 s12, s22
    s_mov_b32 s13, s23
    s_mov_b32 s14, 0x400000
    s_waitcnt lgkmcnt(0)
    s_mov_b32 s40, s30
    s_mov_b32 s41, s31
    s_mov_b32 s42, 0x200000
    s_mov_b32 s43, 0x20000
    s_mov_b32 s44, s32
    s_mov_b32 s45, s33
    s_mov_b32 s46, 0x200000
    s_mov_b32 s47, 0x20000
    ''')
    def stage(lb0, n):
        for j in range(n):
            for i in range(2):
                A(f's_add_u32 m0, s25, {j*2048 + i*1024}')
                A(f's_mov_b32 s34, {(lb0 + j)*4*32*1024 + i*8*1024}')
                A(f'buffer_load_dwordx4 {v(vW)}, s[12:15], s34 offen lds')
    for half in range(2):
        stage(half * 16, 16)
        A('s_waitcnt vmcnt(0)')
        for j in range(16):
            for bt in range(2):
                for t in range(2):
                    d = ((half * 16 + j) * 2 + bt) * 4 + 2 * t
                    A(f'ds_read_b64_tr_b16 {a_(d, 2)}, {v(vR)} offset:{j*2048 + t*256 + bt*8}')
            if j % 3 == 2: A('s_waitcnt lgkmcnt(0)')
        A('s_waitcnt lgkmcnt(0)')
    A(f's_mov_b32 s12, s28\ns_mov_b32 s13, s29\ns_mov_b32 s14, {1792*1024}')
    stage(0, 14)
    A(f'''
L_g2_seg:
    s_lshr_b32 {s(wA)}, {s(wSeg)}, 3
    s_lshl_b32 {s(wA)}, {s(wA)}, 2
    s_add_u32 {s(wA)}, {s(wA)}, {F_H1}
    ''')
    wait_flag(A, 'g1', wA, 'eq', '7')
    A(f'''
    s_mul_i32 s35, {s(wSeg)}, 57344
    s_add_u32 s35, s35, {WS_H1}
    s_lshl_b32 s36, {s(wSeg)}, 14
    buffer_load_dwordx4 {v(XR,4)}, {v(vX)}, s[44:47], s36 offen
    ''')
    for lb in range(14):
        A(f's_add_u32 s34, s35, {lb*4096}')
        A(f'buffer_load_dwordx4 {v(FA + lb*4, 4)}, {v(vA)}, s[4:7], s34 offen sc1')
    for lb in range(14):
        for bt in range(2):
            for t in range(2):
                A(f'ds_read_b64_tr_b16 {v(FW + bt*4 + 2*t, 2)}, {v(vR)} offset:{lb*2048 + t*256 + bt*8}')
        A(f's_waitcnt vmcnt({13-lb}) lgkmcnt(0)')
        for bt in range(2):
            ac = v(ACC + bt*4, 4)
            A(f'v_mfma_f32_16x16x32_bf16 {ac}, {v(FW + bt*4, 4)}, {v(FA + lb*4, 4)}, {"0" if lb == 0 else ac}')
    A(f's_lshr_b32 {s(wA)}, {s(wSeg)}, 1\ns_lshl_b32 {s(wA)}, {s(wA)}, 6\ns_add_u32 {s(wA)}, {s(wA)}, {F_ATT}')
    A(f's_lshl_b32 s35, {s(wSeg)}, 17\ns_add_u32 s35, s35, {WS_O}')
    wait_flag(A, 'g2', wA, 'eq', '8', slp=4)
    for lb in range(32):
        A(f's_add_u32 s34, s35, {lb*4096}')
        A(f'buffer_load_dwordx4 {v(FA + lb*4, 4)}, {v(vA)}, s[4:7], s34 offen sc1')
    for lb in range(32):
        A(f's_waitcnt vmcnt({31 - lb})')
        for bt in range(2):
            ac = v(ACC + bt*4, 4)
            A(f'v_mfma_f32_16x16x32_bf16 {ac}, {a_((lb*2+bt)*4, 4)}, {v(FA + lb*4, 4)}, {ac}')
    A(f's_lshl_b32 {s(wA)}, {s(g.gW)}, 11\ns_add_u32 {s(wA)}, {s(wA)}, {RED}\nv_add_u32 {v(vT0)}, {s(wA)}, {v(vS)}')
    for i in range(2): A(f'ds_write_b128 {v(vT0)}, {v(ACC + 4*i, 4)} offset:{i*1024}')
    A(f'''
    s_waitcnt lgkmcnt(0)
    s_barrier
    s_cmp_ge_u32 {s(g.gW)}, 1
    s_cbranch_scc1 L_g2_skip
    ''')
    for sw in range(1, 4):
        for bt in range(2):
            A(f'ds_read_b128 {v(FA + (sw*2+bt)*4, 4)}, {v(vT0)} offset:{sw*2048 + bt*1024}')
    A('s_waitcnt lgkmcnt(0)')
    for i in range(8):
        A(f'v_add_f32 {v(FA+i)}, {v(ACC+i)}, {v(FA+8+i)}')
        A(f'v_add_f32 {v(FA+16+i)}, {v(FA+16+i)}, {v(FA+24+i)}')
    for i in range(8): A(f'v_add_f32 {v(FA+i)}, {v(FA+i)}, {v(FA+16+i)}')
    for d in range(4):
        A(f'v_lshlrev_b32 {v(FW)}, 16, {v(XR+d)}\nv_and_b32 {v(FW+1)}, 0xffff0000, {v(XR+d)}')
        A(f'v_add_f32 {v(FA+2*d)}, {v(FA+2*d)}, {v(FW)}\nv_add_f32 {v(FA+2*d+1)}, {v(FA+2*d+1)}, {v(FW+1)}')
        A(f'v_cvt_pk_bf16_f32 {v(FA+32+d)}, {v(FA+2*d)}, {v(FA+2*d+1)}')
    A(f'''
    buffer_store_dwordx4 {v(FA+32,4)}, {v(vX)}, s[40:43], s36 offen
L_g2_skip:
    s_barrier
    s_add_u32 {s(wSeg)}, {s(wSeg)}, {N_G2 // 16}
    s_cmp_lt_u32 {s(wSeg)}, 128
    s_cbranch_scc1 L_g2_seg
    s_endpgm
    ''')

def gen_worker(A, sWV, sXcc, sRank, vLrec, D_FINIT, D_CLAIM, D_SLOW):
    wQ, wTry, wC1, wOff, wLn = 86, 87, 88, 89, 59
    def ticket(tag, srd='s[4:7]'):
        A(f'''
        s_cmp_lg_u32 {s(g.gW)}, 0
        s_cbranch_scc1 L_tk_bar_{tag}
        v_mov_b32 {v(vTk)}, 1
        s_mov_b64 exec, 1
        buffer_atomic_add {v(vTk)}, {v(vZ)}, {srd}, {s(wOff)} offen sc0
        s_waitcnt vmcnt(0)
        ds_write_b32 {v(vLB)}, {v(vTk)}
        s_mov_b64 exec, -1
        s_waitcnt lgkmcnt(0)
L_tk_bar_{tag}:
        s_barrier
        ds_read_b32 {v(vTk)}, {v(vLB)}
        s_waitcnt lgkmcnt(0)
        v_readfirstlane_b32 {s(gTk)}, {v(vTk)}
        s_barrier
        ''')
    A(f'''
L_worker:
    {'s_memrealtime s[92:93]' if 'wt' in EXP else ''}
    s_mov_b32 {s(g.gW)}, {s(sWV)}
    v_and_b32 {v(g.gL)}, 63, v0
    ''')
    g.g1_setup(A)
    A(f'''
    v_mov_b32 {v(vZ)}, 0
    v_mov_b32 {v(vLB)}, {LB}
    s_add_u32 {s(wQ)}, {s(sXcc)}, 6
    s_cmp_ge_u32 {s(wQ)}, 14
    s_cselect_b32 {s(wA)}, 14, 0
    s_sub_u32 {s(wQ)}, {s(wQ)}, {s(wA)}
    s_cmp_ge_u32 {s(wQ)}, 7
    s_cselect_b32 {s(wA)}, 7, 0
    s_sub_u32 {s(wQ)}, {s(wQ)}, {s(wA)}
    s_mov_b32 {s(wTry)}, 0
    s_mov_b32 s90, 0
    s_mov_b32 {s(wLn)}, 0
    s_mov_b32 {s(wA)}, {D_FINIT}
    s_cmp_lg_u32 {s(g.gW)}, 0
    s_cbranch_scc1 L_wfd_fi
    ''')
    wait_flag(A, 'fi', wA, 'ge', '1', slp=2, srd='s[8:11]')
    A(f'''
L_wk_next:
    s_lshl_b32 {s(wOff)}, {s(wQ)}, 7
    s_add_u32 {s(wOff)}, {s(wOff)}, {F_Q}
    ''')
    ticket('q')
    A(f'''
    s_cmp_lt_u32 {s(wQ)}, 4
    s_cselect_b32 {s(wC1)}, 5, 4
    s_mov_b32 {s(wB)}, {1 << 14}
    s_cselect_b32 {s(wB)}, {(1 << 16) // 5 + 1}, {s(wB)}
    s_lshl_b32 {s(wA)}, {s(wC1)}, 4
    s_mov_b32 {s(wC)}, 16
    s_cmp_lt_u32 {s(gTk)}, {s(wA)}
    s_cbranch_scc1 L_wk_dec
    s_sub_u32 {s(gTk)}, {s(gTk)}, {s(wA)}
    s_cmp_lt_u32 {s(wQ)}, 2
    s_cselect_b32 {s(wC1)}, 4, 3
    s_mov_b32 {s(wB)}, {1 << 14}
    s_cselect_b32 {s(wB)}, {s(wB)}, {(1 << 16) // 3 + 1}
    s_lshl_b32 {s(wA)}, {s(wC1)}, 4
    s_mov_b32 {s(wC)}, 0
    s_cmp_lt_u32 {s(gTk)}, {s(wA)}
    s_cbranch_scc1 L_wk_dec
    s_add_u32 {s(wQ)}, {s(wQ)}, 1
    s_cmp_eq_u32 {s(wQ)}, 7
    s_cselect_b32 {s(wQ)}, 0, {s(wQ)}
    s_add_u32 {s(wTry)}, {s(wTry)}, 1
    s_cmp_lt_u32 {s(wTry)}, 7
    s_cbranch_scc1 L_wk_next
    s_mov_b32 {s(wOff)}, {F_TK}
    ''')
    ticket('r')
    A(f'''
    s_cmp_ge_u32 {s(gTk)}, 224
    s_cbranch_scc1 L_forced
    s_add_u32 {s(gTk)}, {s(gTk)}, {N_G1}
    s_cmp_ge_u32 {s(gTk)}, {N_G1 if 'g1only' in EXP else N_G1 + N_G2 + N_AW}
    s_cbranch_scc1 L_rec_exit
    s_cmp_ge_u32 {s(gTk)}, {N_G1 + N_G2}
    s_cbranch_scc1 L_att
    s_branch {'L_rec_exit' if 'nog2' in EXP else 'L_g2'}
L_forced:
    s_mov_b32 {s(wOff)}, {D_SLOW}
    ''')
    ticket('s', 's[8:11]')
    A(f's_mov_b32 {s(wOff)}, {D_CLAIM}')
    ticket('c', 's[8:11]')
    A(f'''
    s_mov_b32 {s(sRank)}, {s(gTk)}
    v_mov_b32 {v(vLrec)}, {v(g.gL)}
    s_mov_b32 s14, 0x400000
    s_mov_b32 s75, 0x7ffffff0
    s_cmp_lt_u32 {s(sRank)}, 32
    s_cbranch_scc1 L_rec_start
    s_endpgm
L_wk_dec:
    s_mul_i32 {s(g.gMB)}, {s(gTk)}, {s(wB)}
    s_lshr_b32 {s(g.gMB)}, {s(g.gMB)}, 16
    s_mul_i32 {s(wA)}, {s(g.gMB)}, {s(wC1)}
    s_sub_u32 {s(wA)}, {s(gTk)}, {s(wA)}
    s_mul_i32 {s(wA)}, {s(wA)}, 7
    s_add_u32 {s(wA)}, {s(wA)}, {s(wQ)}
    s_add_u32 {s(g.gNB)}, {s(wA)}, {s(wC)}
    s_add_u32 {s(wB)}, {s(wA)}, 32
    s_cmp_ge_u32 {s(wA)}, 16
    s_cselect_b32 {s(wB)}, {s(wB)}, {s(wA)}
    s_cmp_eq_u32 {s(wC)}, 0
    s_cselect_b32 {s(g.gNB)}, {s(wB)}, {s(g.gNB)}
    s_mov_b32 {s(wSp)}, 0
    v_and_b32 v15, 15, {v(g.gL)}
    v_lshlrev_b32 v15, 7, v15
    s_mov_b32 {s(wA)}, {F_LN}
L_ln_w:
    s_bitcmp1_b32 {s(wLn)}, {s(g.gMB)}
    s_cbranch_scc1 L_ln_ok
    buffer_load_dword {v(vTk)}, v15, s[4:7], {s(wA)} offen sc0 sc1
    s_add_u32 {s(wSp)}, {s(wSp)}, 1
    s_cmp_lt_u32 {s(wSp)}, {WSPIN}
    s_cbranch_scc0 L_rec_exit
    s_waitcnt vmcnt(0)
    v_cmp_eq_u32 vcc, 8, {v(vTk)}
    s_mov_b32 {s(wLn)}, vcc_lo
    s_sleep 1
    s_branch L_ln_w
L_ln_ok:
    {'s_memrealtime s[94:95]' if 'wt' in EXP else ''}
    s_add_u32 s90, s90, 1
    ''')
    g.WT = 'wt' in EXP
    g.g1_tile(A, 'wk')
    if 'wt' in EXP:
        A(f'''
        s_waitcnt vmcnt(0)
        s_memrealtime s[100:101]
        s_cmp_lg_u32 s90, 1
        s_cbranch_scc1 L_wt_skip
        s_waitcnt lgkmcnt(0)
        s_lshl_b32 {s(wA)}, s2, 5
        s_add_u32 {s(wA)}, {s(wA)}, {WS_DBG + 131072}
        v_mov_b32 v16, s92
        v_mov_b32 v17, s94
        v_mov_b32 v18, s96
        v_mov_b32 v19, s98
        v_mov_b32 v20, s100
        v_mov_b32 v21, {s(g.gMB)}
        v_mov_b32 v22, {s(g.gNB)}
        v_mov_b32 v23, s91
        buffer_store_dwordx4 v[16:19], off, s[4:7], {s(wA)}
        buffer_store_dwordx4 v[20:23], off, s[4:7], {s(wA)} offset:16
L_wt_skip:
        ''')
    A(f'''
    s_and_b32 {s(wA)}, {s(g.gNB)}, 15
    s_lshl_b32 {s(wA)}, {s(wA)}, 4
    s_cmp_eq_u32 {s(g.gType)}, 3
    s_cselect_b32 {s(wA)}, 256, {s(wA)}
    s_add_u32 {s(wA)}, {s(wA)}, {s(g.gMB)}
    s_lshl_b32 {s(wA)}, {s(wA)}, 2
    s_add_u32 {s(wA)}, {s(wA)}, {F_KVQ}
    s_cmp_eq_u32 {s(g.gType)}, 0
    s_cselect_b32 {s(wB)}, 256, 1
    ''')
    signal(A, wA, s(wB))
    gen_att_task(A)
    gen_g2_task(A)
for c in (3, 5):
    for u in range(16 * c): assert (u * ((1 << 16) // c + 1)) >> 16 == u // c
_t = set()
for q in range(7):
    for i in range(5 if q < 4 else 4): _t.add(16 + q + 7 * i)
    for i in range(4 if q < 2 else 3):
        j = q + 7 * i; _t.add(j if j < 16 else j + 32)
assert _t == set(range(55))
```

```python
import sys
import pre, rec, worker
NAME = 'parallel_sum__memory_aug_recurrent_mem_tr__dense_activation_silu__prompt'
def build(path, dbg=False, fused=True, exp=(), **kw):
    rec.EXP = set(exp) | {'pl2'}
    worker.EXP = set(exp)
    worker.N_AW = 112
    worker.N_G2 = 112
    for e in exp:
        if e.startswith('aw'): worker.N_AW = int(e[2:])
        if e.startswith('gw'): worker.N_G2 = int(e[2:])
    body, desc = rec.gen_rec(NAME + '_kernel', fused=fused, dbg=dbg, **kw)
    hdr = '; generated by my own generator scripts (gen/*.py)\n; @launch grid=(256,1,1) block=(256,1,1) lds=163840\n.amdgcn_target "amdgcn-amd-amdhsa--gfx950"\n'
    open(path, 'w').write(hdr + body + desc)
if __name__ == '__main__':
    build(f'cdna_kernels/{NAME}.s')
    for a in sys.argv[1:]:
        parts = a.split(':')
        dl = tuple(int(x) for x in parts[0].split(','))
        fl = parts[1].split(',') if len(parts) > 1 else []
        nm = ('x_' if 'n' in fl else 'x_dbg_') + a.replace(',', '_').replace(':', '_') + ('_rt' if 'rt' in fl else '')
        build('exp/%s.s' % nm, dbg=0 if 'n' in fl else 2 if 'rt' in fl else 1, dl=dl, fused='solo' not in fl, exp=fl)
        print('exp/%s.s' % nm)
```

```python
from asmlib import *
from layout import *
import worker
import struct

def f2u(x): return struct.unpack('<I', struct.pack('<f', x))[0]

LDS_M, LDS_KX, LDS_XQ, LDS_XO, LDS_MISC = 0, 8192, 24576, 29184, 31744
REG_A, REG_B = 32768, 49152
XQP, XOP = 272, 272
SPIN_LIMIT = 1 << 20
D_CLAIM, D_SLOW, D_RINIT, D_FINIT = 0, 4, 8, 128
EXP = {'pl2'}

(vIdx, vMw, vWkL, vXQw, vXQr, vXKr, vKXr, vVXg, vXOw, vXOr,
 vPs, vPl, vMs, vMask, vMr1, vMr2) = range(16)
SEL = 16
ONES = 20
vT0, vT1, vT2, vT3 = 24, 25, 26, 27
VX, MF, ACC, RING, SP = 28, 36, 68, 92, 124
Q0, K0, Q1, K1, V0, V1 = 68, 72, 76, 80, 84, 88
WK0, WO0 = 128, 192
sH, sWV, sStep, sTag, sCur0, sCur1, sNext, sKXo, sVXo, sKMo, sT0, sT1, sT2, sM0w = range(24, 38)
sC, sSpin, sXcc, sRank, sKXm = 44, 46, 47, 48, 49
sTb, sTa, sTg, sSent = 40, 41, 42, 43
sReady, sFlag, sProg = 38, 39, 27
sHw, sHr, sSt1 = 100, 101, 3
WS_HINT = WS_FLAG + 12288

def v(i, n=1): return f'v{i}' if n == 1 else f'v[{i}:{i+n-1}]'
def a_(i, n=1): return f'a{i}' if n == 1 else f'a[{i}:{i+n-1}]'
def s(i, n=1): return f's{i}' if n == 1 else f's[{i}:{i+n-1}]'

class Cnt:
    def __init__(self, A, name, mx): self.A, self.name, self.mx, self.n = A, name, mx, 0
    def issue(self, text):
        self.A(text); self.n += 1; return self.n
    def wait(self, tok):
        k = min(self.n - tok, self.mx)
        self.A(f's_waitcnt {self.name}({k})')
    def wait_all(self): self.A(f's_waitcnt {self.name}(0)')

def smf(A, d, a, b): A(f'v_smfmac_f32_16x16x64_bf16 {v(d,4)}, {v(a,4)}, {b}, {v(vIdx)}')

def ensure(A, tag, inline=False):
    A(f'''
    s_mov_b32 {s(sT2)}, 0
L_ens_{tag}:
    s_cmp_lt_u32 {s(sT1)}, {s(sReady)}
    s_cbranch_scc1 L_ensd_{tag}
    v_mbcnt_lo_u32_b32 {v(vT0)}, -1, 0
    v_mbcnt_hi_u32_b32 {v(vT0)}, -1, {v(vT0)}
    v_and_b32 {v(vT0)}, 15, {v(vT0)}
    v_lshlrev_b32 {v(vT0)}, 2, {v(vT0)}
    buffer_load_dword {v(vT1)}, {v(vT0)}, s[4:7], {s(sFlag)} offen sc0 sc1
    s_add_u32 {s(sT2)}, {s(sT2)}, 1
    s_cmp_lt_u32 {s(sT2)}, {SPIN_LIMIT}
    s_cbranch_scc0 L_rec_exit
    s_waitcnt vmcnt(0)
    v_and_b32 {v(vT1)}, 255, {v(vT1)}
    v_cmp_ne_u32 vcc, 2, {v(vT1)}
    s_or_b32 {s(sT0)}, vcc_lo, 0x10000
    s_ff1_i32_b32 {s(sReady)}, {s(sT0)}
    s_branch L_ens_{tag}
L_ensd_{tag}:
    ''')

def ln_signal(A, tag, younger):
    A(f'''
    s_waitcnt vmcnt({younger})
    s_barrier
    s_cmp_lg_u32 {s(sWV)}, 1
    s_cbranch_scc1 L_nosig_{tag}
    s_cmp_eq_u32 s75, 0x7ffffff0
    s_cbranch_scc1 L_nosig_{tag}
    s_mov_b32 {s(sSpin)}, 0
    s_branch L_sigc_{tag}
L_sigp_{tag}:
    buffer_load_dword v96, off, s[8:11], 0 offset:{D_FINIT} sc0 sc1
    s_add_u32 {s(sSpin)}, {s(sSpin)}, 1
    s_cmp_lt_u32 {s(sSpin)}, {SPIN_LIMIT}
    s_cbranch_scc0 L_rec_exit
    s_waitcnt vmcnt(0)
L_sigc_{tag}:
    v_readfirstlane_b32 {s(sT0)}, v96
    s_cmp_eq_u32 {s(sT0)}, 0
    s_cbranch_scc1 L_sigp_{tag}
    s_mov_b64 exec, 1
    buffer_atomic_add v96, v98, s[4:7], s75 offen
    s_mov_b64 exec, -1
L_nosig_{tag}:
    s_mov_b32 s75, 0x7ffffff0
    ''')

def gen_rec(name, nwg=256, dbg=False, nsteps=NSEG, dl=(30, 70, 60, 20, 20, 0, 1, 1, 30), fused=False):
    A = Asm()
    vL = 99
    import pre
    A(f'''
    s_cmp_ge_u32 s2, {nwg}
    s_cbranch_scc1 L_rec_exit
    {'s_memrealtime s[96:97]' if dbg or 'wt' in EXP else ''}
    s_load_dwordx4 s[52:55], s[0:1], 0
    s_load_dwordx8 s[16:23], s[0:1], 16
    s_load_dwordx4 s[36:39], s[0:1], 88
    s_load_dwordx2 s[50:51], s[0:1], 64
    v_lshrrev_b32 v1, 6, v0
    v_and_b32 {v(vL)}, 63, v0
    s_getreg_b32 {s(sXcc)}, hwreg(HW_REG_XCC_ID)
    v_readfirstlane_b32 {s(sWV)}, v1
    s_and_b32 {s(sXcc)}, {s(sXcc)}, 15
    {'s_add_u32 s47, s47, 1' if 'allslow' in EXP else ''}
    {'s_bfe_u32 s34, s2, 0x10003' if 'halfslow' in EXP else ''}
    {'s_add_u32 s47, s47, s34' if 'halfslow' in EXP else ''}
    ''')
    pre.ln_addr(A)
    A(f'''
    s_waitcnt lgkmcnt(0)
    {'s_mov_b32 s91, s96' if 'wt' in EXP else ''}
    s_mov_b32 s4, s38
    s_mov_b32 s5, s39
    s_mov_b32 s6, {WS_SIZE}
    s_mov_b32 s7, 0x20000
    s_mov_b32 s8, s36
    s_mov_b32 s9, s37
    s_mov_b32 s10, 256
    s_mov_b32 s11, 0x20000
    s_mov_b32 s12, s52
    s_mov_b32 s13, s53
    s_mov_b32 s14, 0x200000
    s_mov_b32 s15, 0x20000
    ''')
    pre.ln_load(A)
    A(f'''
    v_mov_b32 v98, 0
    v_mov_b32 v97, 32
    s_mov_b32 s74, 0
    s_or_b32 {s(sT0)}, {s(sWV)}, {s(sXcc)}
    s_cmp_lg_u32 {s(sT0)}, 0
    s_cbranch_scc1 L_el_skip
    s_mov_b32 s74, 1
    v_mov_b32 v97, 1
    s_mov_b64 exec, 1
    buffer_atomic_add v97, v98, s[8:11], 0 offen offset:{D_CLAIM} sc0
    s_mov_b64 exec, -1
L_el_skip:
    s_cmp_ge_u32 s2, 128
    s_cbranch_scc1 L_no_ln
    ''')
    pre.ln_compute(A)
    A(f'''
    buffer_load_dword v96, off, s[8:11], 0 offset:{D_FINIT} sc0 sc1
    s_lshr_b32 s75, s2, 3
    s_lshl_b32 s75, s75, 7
    s_add_u32 s75, s75, {worker.F_LN}
    s_branch L_sig
L_no_ln:
    s_waitcnt vmcnt(0)
    s_mov_b32 s75, 0x7ffffff0
    s_cmp_lg_u32 s2, 128
    s_cbranch_scc1 {'L_sig' if 'nopf' in EXP else 'L_pf'}
    v_lshlrev_b32 v5, 4, v0
    v_mov_b32 v8, 0
    v_mov_b32 v9, 0
    v_mov_b32 v10, 0
    v_mov_b32 v11, 0
    s_mov_b32 {s(sT0)}, {WS_FLAG}
    buffer_store_dwordx4 v[8:11], v5, s[4:7], {s(sT0)} offen sc1
    s_add_u32 {s(sT0)}, {s(sT0)}, 4096
    buffer_store_dwordx4 v[8:11], v5, s[4:7], {s(sT0)} offen sc1
    s_add_u32 {s(sT0)}, {s(sT0)}, 4096
    buffer_store_dwordx4 v[8:11], v5, s[4:7], {s(sT0)} offen sc1
    s_add_u32 {s(sT0)}, {s(sT0)}, 4096
    buffer_store_dwordx4 v[8:11], v5, s[4:7], {s(sT0)} offen sc1
    v_mov_b32 v12, 1
    s_waitcnt vmcnt(0)
    s_barrier
    buffer_store_dword v12, off, s[8:11], 0 offset:{D_FINIT} sc1
L_sig:
    s_cmp_lg_u32 {s(sXcc)}, 0
    s_cbranch_scc1 L_wk_entry
    s_waitcnt vmcnt(5)
    s_cmp_lg_u32 {s(sWV)}, 0
    s_cbranch_scc1 L_rec_elected
    v_mov_b32 v2, {LDS_MISC}
    s_mov_b64 exec, 1
    ds_write_b32 v2, v97
    s_mov_b64 exec, -1
    s_waitcnt lgkmcnt(0)
L_rec_elected:
    s_barrier
    v_mov_b32 v2, {LDS_MISC}
    ds_read_b32 v1, v2
    s_mov_b32 s14, 0x400000
    s_waitcnt lgkmcnt(0)
    v_readfirstlane_b32 {s(sRank)}, v1
    s_cmp_ge_u32 {s(sRank)}, 32
    s_cbranch_scc1 L_wk_entry
L_rec_start:
    s_and_b32 {s(sH)}, {s(sRank)}, 31
    ''')
    if dbg: A('s_memrealtime s[72:73]\ns_waitcnt lgkmcnt(0)\ns_sub_u32 s98, s72, s96')
    tG, tR, tC, tF, tRow, tD0, tD1, tO0, tO1, tTr0, tTr1, tTrO, tA, tN, t7, tX, tY = range(100, 117)
    A(f'''
    v_lshrrev_b32 {v(tG)}, 4, {v(vL)}
    v_bfe_u32 {v(tR)}, {v(vL)}, 2, 2
    v_and_b32 {v(tC)}, 3, {v(vL)}
    v_and_b32 {v(tF)}, 1, {v(tG)}
    v_lshl_or_b32 {v(tF)}, {v(tF)}, 2, {v(tR)}
    v_lshl_add_u32 {v(tRow)}, {v(tG)}, 4, {v(tR)}
    v_lshlrev_b32 {v(tRow)}, 8, {v(tRow)}
    v_lshl_add_u32 {v(tRow)}, {v(tC)}, 3, {v(tRow)}
    s_lshl_b32 {s(sT0)}, {s(sWV)}, 1
    v_xor_b32 {v(tTr0)}, {s(sT0)}, {v(tF)}
    v_lshl_add_u32 {v(tTr0)}, {v(tTr0)}, 5, {v(tRow)}
    s_or_b32 {s(sT0)}, {s(sT0)}, 1
    v_xor_b32 {v(tTr1)}, {s(sT0)}, {v(tF)}
    v_lshl_add_u32 {v(tTr1)}, {v(tTr1)}, 5, {v(tRow)}
    s_lshl_b32 {s(sM0w)}, {s(sWV)}, 15
    v_add_u32 {v(tTrO)}, {s(sM0w)}, {v(tRow)}
    v_and_b32 {v(tN)}, 15, {v(vL)}
    v_lshlrev_b32 {v(vT1)}, 1, {v(tG)}
    v_xor_b32 {v(vT0)}, {v(tN)}, {v(vT1)}
    v_lshlrev_b32 {v(vT0)}, 4, {v(vT0)}
    v_xor_b32 {v(vT1)}, 0x80, {v(vT0)}
    v_lshrrev_b32 {v(vT2)}, 1, {v(tG)}
    v_and_b32 {v(vT3)}, 1, {v(tG)}
    ; D-type: (2*j1 + 16*j0)*8192 + h*256 + 128*w*8192
    v_lshlrev_b32 {v(tX)}, 14, {v(vT2)}
    v_lshl_add_u32 {v(tX)}, {v(vT3)}, 17, {v(tX)}
    s_lshl_b32 {s(sT0)}, {s(sWV)}, 20
    s_lshl_b32 {s(sT1)}, {s(sH)}, 8
    s_add_u32 {s(sT0)}, {s(sT0)}, {s(sT1)}
    v_add_u32 {v(tX)}, {s(sT0)}, {v(tX)}
    v_add_u32 {v(tD0)}, {v(tX)}, {v(vT0)}
    v_add_u32 {v(tD1)}, {v(tX)}, {v(vT1)}
    ; O-type: (32*j1 + j0)*1024 + h*131072 + w*256
    v_lshlrev_b32 {v(tX)}, 15, {v(vT2)}
    v_lshl_add_u32 {v(tX)}, {v(vT3)}, 10, {v(tX)}
    s_lshl_b32 {s(sT0)}, {s(sH)}, 17
    s_lshl_b32 {s(sT1)}, {s(sWV)}, 8
    s_add_u32 {s(sT0)}, {s(sT0)}, {s(sT1)}
    v_add_u32 {v(tX)}, {s(sT0)}, {v(tX)}
    v_add_u32 {v(tO0)}, {v(tX)}, {v(vT0)}
    v_add_u32 {v(tO1)}, {v(tX)}, {v(vT1)}
    ''')
    units = [('q', 0), ('q', 1), ('v', 0), ('v', 1), ('k', 0), ('o', 0), ('k', 1), ('o', 1)]
    PT = {'q': 16, 'k': 18, 'v': 20, 'o': 22}
    def dma_unit(u):
        mat, hi = units[u]; reg = (REG_A, REG_B)[u & 1]
        A(f's_mov_b32 s12, s{PT[mat]}\ns_mov_b32 s13, s{PT[mat]+1}')
        for ii in range(16):
            gb, j = ii >> 2, (ii & 3) * 4
            if mat == 'o': so = e_of(hi, gb, j) * 1024; vo = (tO0, tO1)[gb & 1]
            else: so = (d_of(0, gb, j) + 64 * hi) * 8192; vo = (tD0, tD1)[gb & 1]
            A(f's_add_u32 m0, {s(sM0w)}, {reg + ii * 1024}')
            A(f's_mov_b32 {s(sT0)}, {so}')
            A(f'buffer_load_dwordx4 {v(vo)}, s[12:15], {s(sT0)} offen lds')
    TMPF = 28
    def dest(u, f):
        mat, hi = units[u]
        if u >= 6: return ('v', TMPF + f * 8)
        if mat == 'q': return ('a', (hi * 8 + f) * 8)
        if mat == 'v': return ('a', 128 + (hi * 8 + f) * 8)
        if mat == 'k': return ('v', WK0 + f * 8)
        return ('v', WO0 + f * 8)
    def read_unit(u):
        mat, hi = units[u]; reg = (REG_A, REG_B)[u & 1]
        for f in range(8):
            if mat == 'o':
                A(f'v_xor_b32 {v(tA)}, {f}, {v(tF)}')
                A(f'v_lshl_add_u32 {v(tA)}, {v(tA)}, 5, {v(tTrO)}')
                A(f'v_add_u32 {v(tA)}, {reg}, {v(tA)}')
            else:
                lam, tt = f >> 1, f & 1
                A(f's_xor_b32 {s(sT0)}, {s(sWV)}, {lam}')
                A(f's_lshl_b32 {s(sT0)}, {s(sT0)}, 15')
                A(f's_add_u32 {s(sT0)}, {s(sT0)}, {reg}')
                A(f'v_add_u32 {v(tA)}, {s(sT0)}, {v((tTr0, tTr1)[tt])}')
            fl, d = dest(u, f)
            for t in range(4):
                A(f'ds_read_b64_tr_b16 {fl}[{d+2*t}:{d+2*t+1}], {v(tA)} offset:{t*1024}')
    A('s_cmp_eq_u32 s75, 0x7ffffff0\ns_cbranch_scc1 L_skipsig')
    ln_signal(A, 'r', 0)
    A.label('L_skipsig')
    dma_unit(0); dma_unit(1)
    A(f'''
    v_lshlrev_b32 {v(vT0)}, 4, {v(vL)}
    v_and_b32 {v(vT1)}, 1, {v(vL)}
    v_mov_b32 {v(vIdx)}, 0xffff4444
    v_mov_b32 {v(vT2)}, 0xffffeeee
    v_cmp_ne_u32 vcc, 0, {v(vT1)}
    v_cndmask_b32 {v(vIdx)}, {v(vIdx)}, {v(vT2)}, vcc
    s_lshl_b32 {s(sT0)}, {s(sWV)}, 10
    v_add_u32 {v(vMw)}, {s(sT0)}, {v(vT0)}
    s_add_u32 {s(sT1)}, {s(sM0w)}, {REG_A}
    v_add_u32 {v(vWkL)}, {s(sT1)}, {v(vT0)}
    v_add_u32 {v(vKXr)}, {LDS_KX}, {v(vT0)}
    v_and_b32 {v(t7)}, 7, {v(vL)}
    s_lshl_b32 {s(sT1)}, {s(sWV)}, 6
    v_mul_u32_u24 {v(vXQw)}, {4*XQP}, {v(tG)}
    v_lshl_add_u32 {v(vXQw)}, {v(tN)}, 2, {v(vXQw)}
    s_add_u32 {s(sT2)}, {s(sT1)}, {LDS_XQ}
    v_add_u32 {v(vXQw)}, {s(sT2)}, {v(vXQw)}
    v_mul_u32_u24 {v(vXQr)}, {2*XQP}, {v(t7)}
    v_lshl_add_u32 {v(vXQr)}, {v(tG)}, 4, {v(vXQr)}
    v_add_u32 {v(vXQr)}, {LDS_XQ}, {v(vXQr)}
    v_lshrrev_b32 {v(tX)}, 2, {v(tN)}
    v_lshl_add_u32 {v(tX)}, {v(tX)}, 1, {v(vT1)}
    v_mul_u32_u24 {v(vXKr)}, {2*XQP}, {v(tX)}
    v_lshl_add_u32 {v(vXKr)}, {v(tG)}, 4, {v(vXKr)}
    v_add_u32 {v(vXKr)}, {LDS_XQ + XQP}, {v(vXKr)}
    v_mul_u32_u24 {v(vXOw)}, {XOP}, {v(t7)}
    v_lshl_add_u32 {v(vXOw)}, {v(tG)}, 4, {v(vXOw)}
    s_add_u32 {s(sT2)}, {s(sT1)}, {LDS_XO}
    v_add_u32 {v(vXOw)}, {s(sT2)}, {v(vXOw)}
    v_lshrrev_b32 {v(tX)}, 1, {v(tN)}
    v_mul_u32_u24 {v(vXOr)}, {XOP}, {v(tX)}
    v_lshl_add_u32 {v(vXOr)}, {v(tG)}, 4, {v(vXOr)}
    v_lshl_add_u32 {v(vXOr)}, {v(vT1)}, 6, {v(vXOr)}
    v_add_u32 {v(vXOr)}, {LDS_XO}, {v(vXOr)}
    v_xor_b32 {v(vMr1)}, 1024, {v(vMw)}
    v_xor_b32 {v(vMr2)}, 2048, {v(vMw)}
    v_mov_b32 {v(vMask)}, 0xfffe0000
    v_lshlrev_b32 {v(vVXg)}, 6, {v(tN)}
    v_lshl_add_u32 {v(vVXg)}, {v(tG)}, 4, {v(vVXg)}
    s_lshl_b32 {s(sT2)}, {s(sH)}, 13
    s_lshl_b32 {s(sT0)}, {s(sWV)}, 11
    s_add_u32 {s(sT2)}, {s(sT2)}, {s(sT0)}
    s_add_u32 {s(sT2)}, {s(sT2)}, {WS_VT}
    v_add_u32 {v(vVXg)}, {s(sT2)}, {v(vVXg)}
    v_lshrrev_b32 {v(vPs)}, 2, {v(tN)}
    v_lshlrev_b32 {v(vPs)}, 14, {v(vPs)}
    v_lshrrev_b32 {v(tX)}, 5, {v(vL)}
    v_lshl_add_u32 {v(vPs)}, {v(tX)}, 13, {v(vPs)}
    v_and_b32 {v(tX)}, 1, {v(tG)}
    v_lshl_add_u32 {v(vPs)}, {v(tX)}, {6 if 'pl3' in EXP else 11}, {v(vPs)}
    v_lshl_add_u32 {v(vPs)}, {v(tC)}, 4, {v(vPs)}
    s_lshl_b32 {s(sT2)}, {s(sWV)}, 16
    s_lshl_b32 {s(sT0)}, {s(sH)}, {7 if 'pl3' in EXP else 6}
    s_add_u32 {s(sT2)}, {s(sT2)}, {s(sT0)}
    s_add_u32 {s(sT2)}, {s(sT2)}, {WS_PART}
    v_add_u32 {v(vPs)}, {s(sT2)}, {v(vPs)}
    v_lshlrev_b32 {v(vPl)}, {7 if 'pl3' in EXP else 6}, {v(tR)}
    v_lshl_add_u32 {v(vPl)}, {v(tG)}, {9 if 'pl3' in EXP else 8}, {v(vPl)}
    v_lshl_add_u32 {v(vPl)}, {v(tC)}, 4, {v(vPl)}
    s_lshl_b32 {s(sT2)}, {s(sH)}, 13
    s_lshl_b32 {s(sT0)}, {s(sWV)}, 11
    {'s_and_b32 s34, s34, 4096' if 'pl3' in EXP else ''}
    {'s_add_u32 s36, s36, s34' if 'pl3' in EXP else ''}
    {'s_and_b32 s34, s25, 1' if 'pl3' in EXP else ''}
    {'s_lshl_b32 s34, s34, 6' if 'pl3' in EXP else ''}
    s_add_u32 {s(sT2)}, {s(sT2)}, {s(sT0)}
    s_add_u32 {s(sT2)}, {s(sT2)}, {WS_PART}
    v_add_u32 {v(vPl)}, {s(sT2)}, {v(vPl)}
    v_bfe_u32 {v(vMs)}, {v(vL)}, 2, 1
    v_lshlrev_b32 {v(vMs)}, 5, {v(vMs)}
    v_lshl_add_u32 {v(vMs)}, {v(tG)}, 3, {v(vMs)}
    v_bfe_u32 {v(tX)}, {v(vL)}, 1, 1
    v_lshl_add_u32 {v(vMs)}, {v(tX)}, 2, {v(vMs)}
    s_lshl_b32 {s(sT2)}, {s(sH)}, 7
    s_lshr_b32 {s(sT0)}, {s(sWV)}, 1
    s_lshl_b32 {s(sT0)}, {s(sT0)}, 12
    s_add_u32 {s(sT2)}, {s(sT2)}, {s(sT0)}
    s_and_b32 {s(sT0)}, {s(sWV)}, 1
    s_lshl_b32 {s(sT0)}, {s(sT0)}, 6
    s_add_u32 {s(sT2)}, {s(sT2)}, {s(sT0)}
    v_add_u32 {v(vMs)}, {s(sT2)}, {v(vMs)}
    v_and_b32 {v(tX)}, 9, {v(vL)}
    v_cmp_ne_u32 vcc, 0, {v(tX)}
    v_mov_b32 {v(tX)}, 0x7ffffff0
    v_cndmask_b32 {v(vMs)}, {v(vMs)}, {v(tX)}, vcc
    ; SEL[d] = ((l&7)>>1 == d) ? ((l&1) ? 0x3f800000 : 0x00003f80) : 0
    v_lshlrev_b32 {v(tX)}, 4, {v(vT1)}
    v_mov_b32 {v(tY)}, 0x3f80
    v_lshlrev_b32 {v(tY)}, {v(tX)}, {v(tY)}
    v_lshrrev_b32 {v(tX)}, 1, {v(t7)}
    v_cmp_eq_u32 vcc, 0, {v(tX)}
    v_cndmask_b32 {v(SEL)}, 0, {v(tY)}, vcc
    v_cmp_eq_u32 vcc, 1, {v(tX)}
    v_cndmask_b32 {v(SEL+1)}, 0, {v(tY)}, vcc
    v_cmp_eq_u32 vcc, 2, {v(tX)}
    v_cndmask_b32 {v(SEL+2)}, 0, {v(tY)}, vcc
    v_cmp_eq_u32 vcc, 3, {v(tX)}
    v_cndmask_b32 {v(SEL+3)}, 0, {v(tY)}, vcc
    s_mov_b32 {s(sC)}, {f2u(SM_C)}
    s_mov_b32 {s(sSent)}, 0xfffeffff
    s_mov_b32 {s(sC+1)}, {f2u(SM_C)}
    v_mov_b32 {v(ONES)}, 0x3f803f80
    v_mov_b32 {v(ONES+1)}, 0x3f803f80
    v_mov_b32 {v(ONES+2)}, 0x3f803f80
    v_mov_b32 {v(ONES+3)}, 0x3f803f80
    ''')
    A(f'''
    s_mov_b32 s56, s54
    s_mov_b32 s57, s55
    s_mov_b32 s58, 8192
    s_mov_b32 s59, 0x20000
    v_bfe_u32 {v(tX)}, {v(vL)}, 1, 1
    v_lshl_add_u32 {v(tX)}, {v(tX)}, 5, {v(tG)}
    v_bfe_u32 {v(tY)}, {v(vL)}, 2, 1
    v_lshl_add_u32 {v(tX)}, {v(tY)}, 9, {v(tX)}
    v_lshlrev_b32 {v(tX)}, 1, {v(tX)}
    s_lshr_b32 {s(sT0)}, {s(sH)}, 3
    s_lshl_b32 {s(sT0)}, {s(sT0)}, 8
    s_lshr_b32 {s(sT1)}, {s(sWV)}, 1
    s_lshl_b32 {s(sT1)}, {s(sT1)}, 7
    s_add_u32 {s(sT0)}, {s(sT0)}, {s(sT1)}
    s_bfe_u32 {s(sT1)}, {s(sH)}, 0x20001
    s_lshl_b32 {s(sT1)}, {s(sT1)}, 3
    s_add_u32 {s(sT0)}, {s(sT0)}, {s(sT1)}
    s_and_b32 {s(sT1)}, {s(sH)}, 1
    s_lshl_b32 {s(sT1)}, {s(sT1)}, 12
    s_add_u32 {s(sT0)}, {s(sT0)}, {s(sT1)}
    s_and_b32 {s(sT1)}, {s(sWV)}, 1
    s_lshl_b32 {s(sT1)}, {s(sT1)}, 11
    s_add_u32 {s(sT0)}, {s(sT0)}, {s(sT1)}
    buffer_load_ushort v92, {v(tX)}, s[56:59], {s(sT0)} offen
    buffer_load_ushort v93, {v(tX)}, s[56:59], {s(sT0)} offen offset:32
    v_mov_b32 v120, -1
    v_mov_b32 v121, -1
    v_mov_b32 v122, -1
    v_mov_b32 v123, -1
    s_mov_b32 {s(sT1)}, {WS_MF + 8192}
    buffer_store_dwordx4 v[120:123], {v(vPl)}, s[4:7], 0 offen sc1
    buffer_store_dwordx4 v[120:123], {v(vPl)}, s[4:7], 0 offen offset:{2048 if 'pl3' in EXP else 1024} sc1
    buffer_store_dword v120, {v(vMs)}, s[4:7], {s(sT1)} offen sc1
    ''')
    for u in range(8):
        if u == 2:
            A(f'''
            v_lshl_or_b32 v92, v93, 16, v92
            v_min_u32 v92, {s(sSent)}, v92
            s_mov_b32 {s(sT1)}, {WS_MF}
            buffer_store_dword v92, {v(vMs)}, s[4:7], {s(sT1)} offen sc1
            ''')
        if u == 4:
            A(f'''
            s_cmp_lg_u32 {s(sWV)}, 0
            s_cbranch_scc1 L_nori
            v_mov_b32 v92, 1
            v_mov_b32 v93, 0
            s_mov_b64 exec, 1
            buffer_atomic_add v92, v93, s[8:11], 0 offen offset:{D_RINIT}
            s_mov_b64 exec, -1
L_nori:
            ''')
        A(f's_waitcnt vmcnt({21 if u == 0 else 0 if u == 7 else 16})')
        A('s_barrier')
        read_unit(u)
        A('s_waitcnt lgkmcnt(0)')
        A('s_barrier')
        if u + 2 < 8: dma_unit(u + 2)
        if u >= 6:
            for f in range(8):
                for hf in range(2):
                    A(f'ds_write_b128 {v(vWkL)}, {v(TMPF + f*8 + hf*4, 4)} offset:{(u-6)*16384 + f*2048 + hf*1024}')
            A('s_waitcnt lgkmcnt(0)')
    if dbg: A('s_memrealtime s[72:73]\ns_waitcnt lgkmcnt(0)\ns_sub_u32 s99, s72, s96')
    A(f'''
    s_mov_b32 {s(sStep)}, 0
    s_mov_b32 {s(sTg)}, 0
    s_mov_b32 {s(sTb)}, 0
    s_mov_b32 {s(sTa)}, 0x10000
    s_mov_b32 {s(sCur0)}, {WS_MF}
    s_mov_b32 {s(sCur1)}, {WS_MF + 4096}
    s_mov_b32 {s(sNext)}, {WS_MF + 8192}
    s_lshl_b32 {s(sKXo)}, {s(sH)}, 12
    s_add_u32 {s(sKMo)}, {s(sKXo)}, {WS_KM}
    s_add_u32 {s(sKXo)}, {s(sKXo)}, {WS_K}
    s_mov_b32 {s(sVXo)}, 0
    s_lshl_b32 {s(sKXm)}, {s(sWV)}, 10
    s_add_u32 {s(sKXm)}, {s(sKXm)}, {LDS_KX}
    s_mov_b32 {s(sReady)}, {0 if fused else 16}
    s_lshr_b32 {s(sFlag)}, {s(sH)}, 1
    s_lshl_b32 {s(sFlag)}, {s(sFlag)}, 6
    s_add_u32 {s(sFlag)}, {s(sFlag)}, {WS_FLAG}
    s_lshl_b32 {s(sProg)}, {s(sH)}, 7
    s_add_u32 {s(sProg)}, {s(sProg)}, {worker.F_PROG}
    s_cmp_eq_u32 {s(sWV)}, 0
    s_cselect_b32 {s(sProg)}, {s(sProg)}, 0x7ffffff0
    s_lshl_b32 {s(sHw)}, {s(sH)}, 2
    s_add_u32 {s(sHw)}, {s(sHw)}, {WS_HINT}
    s_cmp_eq_u32 {s(sWV)}, 0
    s_cselect_b32 {s(sHw)}, {s(sHw)}, 0x7ffffff0
    s_lshl_b32 {s(sHr)}, {s(sH)}, 7
    s_add_u32 {s(sHr)}, {s(sHr)}, {WS_HINT}
    {'s_mov_b32 s101, 4096' if 'pl2' in EXP else ''}
    ''')
    A(f'''
    v_mov_b32 {v(vT0)}, 0
    s_mov_b32 {s(sSpin)}, 0
L_ri_poll:
    buffer_load_dwordx3 {v(MF,3)}, {v(vT0)}, s[8:11], 0 offen offset:{D_CLAIM} sc0 sc1
    buffer_load_dword {v(MF+3)}, {v(vT0)}, s[8:11], 0 offen offset:{D_FINIT} sc0 sc1
    s_add_u32 {s(sSpin)}, {s(sSpin)}, 1
    s_cmp_lt_u32 {s(sSpin)}, {SPIN_LIMIT}
    s_cbranch_scc0 L_rec_exit
    s_waitcnt vmcnt(0)
    v_readfirstlane_b32 {s(sT0)}, {v(MF+2)}
    v_readfirstlane_b32 {s(sT1)}, {v(MF+3)}
    v_readfirstlane_b32 {s(sRank)}, {v(MF+1)}
    s_cmp_lt_u32 {s(sT0)}, 32
    s_cbranch_scc1 L_ri_poll
    s_cmp_lt_u32 {s(sT1)}, 1
    s_cbranch_scc1 L_ri_poll
    s_mov_b32 {s(sT1)}, 0
    ''')
    ensure(A, 'p', inline=True)
    A(f'''
    s_mov_b32 m0, {s(sKXm)}
    s_add_u32 {s(sT0)}, {s(sKXo)}, {16*8192}
    buffer_load_dwordx4 {v(vMw)}, s[4:7], {s(sKXo)} offen sc1 lds
    s_add_u32 m0, {s(sKXm)}, 4096
    s_nop 0
    buffer_load_dwordx4 {v(vMw)}, s[4:7], {s(sT0)} offen sc1 lds
    s_add_u32 {s(sKXo)}, {s(sKXo)}, {32*8192}
    s_xor_b32 {s(sKXm)}, {s(sKXm)}, {LDS_KX ^ (LDS_KX + 8192)}
    ''')
    if dbg:
        for i in range(76, 90): A(f's_mov_b32 s{i}, 0')
        A('s_memrealtime s[92:93]\ns_memtime s[94:95]\ns_waitcnt lgkmcnt(0)\ns_mov_b32 s90, s92\ns_mov_b32 s91, s94\ns_sub_u32 s97, s92, s96')
    A(f'''
    s_cmp_lg_u32 {s(sRank)}, 0
    s_cbranch_scc1 L_rec_slow_entry
    ''')
    gen_loop(A, 'f', '', dbg, nsteps, dl)
    A.label('L_rec_slow_entry')
    gen_loop(A, 's', ' sc1', dbg, nsteps, dl)
    A.label('L_rec_fin')
    worker.tstamp(A, 6)
    if 'st' in EXP: A(f'buffer_store_dwordx4 {v(SP,4)}, {v(vMw)}, s[4:7], {s(sKMo)} offen sc1')
    A(f'v_mov_b32 {v(vT0)}, {nsteps}\ns_waitcnt vmcnt(0)\ns_barrier\nbuffer_store_dword {v(vT0)}, off, s[4:7], {s(sProg)} sc1')
    worker.tstamp(A, 7)
    if dbg:
        A(f'''
        s_memrealtime s[92:93]
        s_memtime s[94:95]
        s_waitcnt lgkmcnt(0)
        s_sub_u32 s90, s92, s90
        s_sub_u32 s91, s94, s91
        s_lshl_b32 {s(sT0)}, {s(sH)}, 2
        s_add_u32 {s(sT0)}, {s(sT0)}, {s(sWV)}
        s_lshl_b32 {s(sT0)}, {s(sT0)}, 6
        s_add_u32 {s(sT0)}, {s(sT0)}, {WS_DBG}
        v_mov_b32 v30, 0
        ''')
        A('s_lshr_b32 s98, s98, 2\ns_lshr_b32 s99, s99, 2\ns_lshl_b32 s98, s98, 20\ns_lshl_b32 s99, s99, 10\ns_or_b32 s87, s98, s99\ns_lshr_b32 s97, s97, 2\ns_or_b32 s87, s87, s97')
        if dbg == 2: A('s_mov_b32 s87, s74')
        for i in range(16):
            A(f'v_mov_b32 v31, s{76+i}\nbuffer_store_dword v31, v30, s[4:7], {s(sT0)} offen offset:{4*i}')
    A.label('L_rec_exit')
    A('s_endpgm')
    A(f'''
L_pf:
    s_cmp_eq_u32 {s(sXcc)}, 0
    s_cbranch_scc1 L_sig
    s_bfe_u32 {s(sT0)}, s2, 0x20005
    s_mov_b32 s12, s16
    s_mov_b32 s13, s17
    s_cmp_eq_u32 {s(sT0)}, 1
    s_cselect_b32 s12, s18, s12
    s_cselect_b32 s13, s19, s13
    s_cmp_eq_u32 {s(sT0)}, 2
    s_cselect_b32 s12, s20, s12
    s_cselect_b32 s13, s21, s13
    s_cmp_eq_u32 {s(sT0)}, 3
    s_cselect_b32 s12, s22, s12
    s_cselect_b32 s13, s23, s13
    s_mov_b32 s14, 0x400000
    s_and_b32 {s(sT0)}, s2, 31
    s_lshl_b32 {s(sT0)}, {s(sT0)}, 17
    v_lshlrev_b32 v5, 4, v0
    ''')
    for i in range(32):
        A(f'buffer_load_dwordx4 v[{8 + 4*(i%8)}:{11 + 4*(i%8)}], v5, s[12:15], {s(sT0)} offen\ns_add_u32 {s(sT0)}, {s(sT0)}, 4096')
    A.label('L_wk_entry')
    ln_signal(A, 'w', 0)
    if not fused: A('s_endpgm')
    if fused: worker.gen_worker(A, sWV, sXcc, sRank, vL, D_FINIT, D_CLAIM, D_SLOW)
    return kernel_head(name) + A.finalize(), kernel_desc(name, 512, 102, 256)

def gen_loop(A, sfx, stf, dbg, nsteps, dl):
    d1a, d1b, d2a, d2b, ps, nd, e2, e3, ef = dl
    L = Cnt(A, 'lgkmcnt', 15); V = Cnt(A, 'vmcnt', 63)
    def stamp(i):
        if dbg: A(f's_mem{"real" if dbg == 2 else ""}time s[{52+2*i}:{53+2*i}]')
    def delay(n):
        if n > 0: A.comment('poll back-off: give the hand-off time to land (an early poll costs a full extra round trip)')
        while n > 0:
            k = min(n, 16); A(f's_nop {k-1}'); n -= k
    def wdelay(tag, na, nb):
        delay(min(na, nb))
        if na != nb:
            A(f's_cmp_lt_u32 {s(sWV)}, 2\ns_cbranch_scc{1 if na < nb else 0} L_wd{tag}_{sfx}')
            delay(abs(na - nb))
            A.label(f'L_wd{tag}_{sfx}')
    def zero(base, n):
        for i in range(0, n, 2): A(f'v_mov_b64 {v(base+i,2)}, 0')
    def ring_prefetch():
        for f in range(4):
            for hf in range(2):
                L.issue(f'ds_read_b128 {v(RING + f*8 + hf*4, 4)}, {v(vWkL)} offset:{f*2048 + hf*1024}')
    GA = (MF, VX, VX + 4)
    GB = (MF + 16, VX, VX + 4)
    RS = (MF + 20, MF + 4, MF + 12)
    sF = 50
    def gatherA(k=0): return V.issue(f'buffer_load_dwordx4 {v(GA[k],4)}, {v(vMw)}, s[4:7], {s(sCur0)} offen sc1')
    def gatherB(k=0): return V.issue(f'buffer_load_dwordx4 {v(GB[k],4)}, {v(vMw)}, s[4:7], {s(sCur1)} offen sc1')
    def poll_tail(tag, per, sets, nreg, issue, check, finish, blind=0):
        A.label(f'L_{tag}f0_{sfx}')
        A(f's_mov_b64 exec, vcc\ns_mov_b64 {s(sF,2)}, vcc')
        if blind == 0: issue(1); delay(ps)
        if blind <= 1: issue(2)
        A.label(f'L_{tag}l_{sfx}')
        for k in (1, 2):
            A(f's_add_u32 {s(sSpin)}, {s(sSpin)}, 1')
            A(f's_waitcnt vmcnt({per})')
            check(k)
            A(f's_andn2_b64 exec, {s(sF,2)}, vcc')
            for i in range(0, nreg, 2): A(f'v_mov_b64 {v(sets[0]+i,2)}, {v(sets[k]+i,2)}')
            A(f's_and_b64 {s(sF,2)}, {s(sF,2)}, vcc')
            A(f's_cbranch_scc0 L_{tag}d_{sfx}')
            A(f's_mov_b64 exec, {s(sF,2)}')
            issue(k)
        A(f's_cmp_lt_u32 {s(sSpin)}, {SPIN_LIMIT}\ns_cbranch_scc1 L_{tag}l_{sfx}\ns_endpgm')
        A.label(f'L_{tag}d_{sfx}')
        A('s_mov_b64 exec, -1')
        finish()
    def add(d, x, y): A(f'v_add_f32 {v(d)}, {v(x)}, {v(y)}')
    def cvt(d, x, y): A(f'v_cvt_pk_bf16_f32 {v(d)}, {v(x)}, {v(y)}')
    def wq(o, tt): return a_((o * 2 + tt) * 8, 8)
    def wv(o, tt): return a_(128 + (o * 2 + tt) * 8, 8)
    def wk(o, tt):
        lam, hi = o & 3, o >> 2
        return v(WK0 + (lam * 2 + tt) * 8, 8) if hi == 0 else v(RING + ((lam * 2 + tt) & 3) * 8, 8)
    QA, KA, VA = (Q0, Q1), (K0, K1), (V0, V1)
    def mq(o, tt): smf(A, QA[tt], MF + 4 * o, wq(o, tt))
    def mk(o, tt): smf(A, KA[tt], MF + 4 * o, wk(o, tt))
    def mv(o, tt): smf(A, VA[tt], MF + 4 * o, wv(o, tt))
    def chkA(k=0): A(f'v_cmp_lt_u32 vcc, {s(sSent)}, {v(GA[k])}')
    def chkB(k=0): A(f'v_cmp_lt_u32 vcc, {s(sSent)}, {v(GB[k])}')
    ring_prefetch(); zero(ACC, 24)
    A(f's_mov_b32 {s(sSpin)}, 0')
    LIN = 'lin' in EXP
    ordA = ([1, 2][:e3] + [0]) if LIN else list(range(e3 + 1))
    ordR = ([1, 2][:e2] + [0]) if LIN else list(range(e2 + 1))
    for k in ordA: gatherA(k)
    if nd == 2: gatherB()
    A.label(f'L_loop_{sfx}')
    if LIN:
        for n, k in enumerate(ordA[:-1]):
            A(f's_waitcnt vmcnt({e3 - n})')
            chkA(k)
            A(f'ds_write_b128 {v(vMw)}, {v(GA[k],4)}')
            A(f'v_mov_b64 {v(MF+2,2)}, {v(GA[k]+2,2)}\nv_mov_b64 {v(MF,2)}, {v(GA[k],2)}')
            A(f's_cbranch_vccz L_aok_{sfx}')
    A(f's_waitcnt vmcnt({0 if LIN else e3 + (nd == 2)})')
    chkA()
    L.issue(f'ds_write_b128 {v(vMw)}, {v(MF,4)}')
    A(f's_cbranch_vccnz L_af0_{sfx}')
    A.label(f'L_aok_{sfx}')
    if nd == 0: gatherB()
    stamp(0)
    mq(0, 0)
    A(f'v_xor_b32 {v(vT3)}, 3072, {v(vMw)}')
    mk(0, 0); mq(0, 1)
    if 'a3' not in EXP: mk(0, 1)
    if 'a5' in EXP: mv(0, 0)
    L.wait_all()
    A('s_barrier')
    stamp(1)
    MR = {1: vMr1, 2: vMr2, 3: vT3}
    mft = {}
    def mfread(o):
        lam, hi = o & 3, o >> 2
        mft[o] = L.issue(f'ds_read_b128 {v(MF + 4*o, 4)}, {v(MR[lam])} offset:{hi*4096}')
    mfread(1); mfread(2); mfread(3)
    if 'a3' in EXP: mk(0, 1)
    if 'a5' not in EXP: mv(0, 0)
    if nd == 1: gatherB()
    mv(0, 1)
    L.wait(mft[1])
    mq(1, 0); mk(1, 0); mq(1, 1); mk(1, 1)
    L.wait(mft[2])
    mq(2, 0); mk(2, 0); mq(2, 1); mk(2, 1)
    L.wait_all()
    mq(3, 0)
    if nd == 1: mk(3, 0); mq(3, 1); mk(3, 1)
    A('s_waitcnt vmcnt(0)')
    chkB()
    L.issue(f'ds_write_b128 {v(vMw)}, {v(MF+16,4)} offset:4096')
    A(f's_cbranch_vccnz L_bf0_{sfx}')
    A.label(f'L_bok_{sfx}')
    if dbg == 1: A(f's_add_u32 s88, s88, {s(sSpin)}')
    if dbg == 2: stamp(2)
    if nd != 1: mk(3, 0); mq(3, 1); mk(3, 1)
    else: mv(1, 0); mv(1, 1); mv(2, 0)
    mq(4, 0)
    L.wait_all()
    A('s_barrier')
    rt = {}
    def refill(lam, tt, hf):
        f = lam * 2 + tt
        rt[(lam, tt)] = L.issue(f'ds_read_b128 {v(RING + (f & 3)*8 + hf*4, 4)}, {v(vWkL)} offset:{f*2048 + hf*1024}')
    kxt = {}
    def kxload(i):
        kxt[i] = L.issue(f'ds_read_b128 {v(RING + 4*i, 4)}, {v(vKXr)} offset:{i*1024}')
    mfread(5); mfread(6); mfread(7)
    mk(4, 0); refill(2, 0, 0)
    mq(4, 1); refill(2, 0, 1)
    mk(4, 1); refill(2, 1, 0)
    (mv(1, 0) if nd != 1 else mv(2, 1)); refill(2, 1, 1)
    V.issue(f'buffer_store_dword {v(vIdx)}, {v(vMs)}, s[4:7], {s(sNext)} offen{stf}')
    if 'nog1' not in EXP:
        L.wait(mft[5])
        mk(5, 0); refill(3, 0, 0)
        mk(5, 1); refill(3, 0, 1)
        mq(5, 0); refill(3, 1, 0)
        mq(5, 1); refill(3, 1, 1)
        V.issue(f'buffer_load_dwordx4 {v(VX,4)}, {v(vVXg)}, s[4:7], {s(sVXo)} offen sc1')
        L.wait(rt[(2, 1)])
        mk(6, 0); kxload(0)
        mk(6, 1); kxload(1)
        mq(6, 0); kxload(2)
        L.wait(rt[(3, 1)])
        mk(7, 0); kxload(3)
        mk(7, 1); kxload(4)
        mq(7, 0); kxload(5)
        tvx = V.issue(f'buffer_load_dwordx4 {v(VX+4,4)}, {v(vVXg)}, s[4:7], {s(sVXo)} offen offset:1024 sc1')
        mq(6, 1); kxload(6); add(K0, K0, K0 + 1)
        mq(7, 1); kxload(7)
        if dbg != 2: stamp(2)
        add(K0 + 1, K0 + 2, K0 + 3)
        add(K1, K1, K1 + 1); add(K1 + 1, K1 + 2, K1 + 3)
        add(Q0, Q0, Q0 + 1); add(Q0 + 1, Q0 + 2, Q0 + 3)
        cvt(SP + 1, K0, K1); cvt(SP + 3, K0 + 1, K1 + 1)
        add(Q1, Q1, Q1 + 1); add(Q1 + 1, Q1 + 2, Q1 + 3)
        cvt(vT0, Q0, Q1); cvt(vT1, Q0 + 1, Q1 + 1)
        L.issue(f'ds_write2_b32 {v(vXQw)}, {v(vT0)}, {v(vT1)} offset0:0 offset1:{2*XQP//4}')
        L.issue(f'ds_write2_b32 {v(vXQw)}, {v(SP+1)}, {v(SP+3)} offset0:{XQP//4} offset1:{3*XQP//4}')
    else:
        L.wait(mft[5])
        mq(5, 0)
        V.issue(f'buffer_load_dwordx4 {v(VX,4)}, {v(vVXg)}, s[4:7], {s(sVXo)} offen sc1')
        mk(5, 0); refill(3, 0, 0)
        mq(5, 1); refill(3, 0, 1)
        mk(5, 1); refill(3, 1, 0)
        L.wait(rt[(2, 0)])
        mq(6, 0); refill(3, 1, 1)
        mk(6, 0); kxload(0)
        tvx = V.issue(f'buffer_load_dwordx4 {v(VX+4,4)}, {v(vVXg)}, s[4:7], {s(sVXo)} offen offset:1024 sc1')
        mq(7, 0); kxload(1)
        L.wait(rt[(3, 0)])
        mk(7, 0); kxload(4)
        mq(6, 1); kxload(5)
        mk(6, 1); add(Q0, Q0, Q0 + 1)
        L.wait(rt[(3, 1)])
        mq(7, 1); add(Q0 + 1, Q0 + 2, Q0 + 3)
        mk(7, 1)
        if dbg != 2: stamp(2)
        add(K0, K0, K0 + 1); add(K0 + 1, K0 + 2, K0 + 3)
        add(Q1, Q1, Q1 + 1); add(Q1 + 1, Q1 + 2, Q1 + 3)
        cvt(vT0, Q0, Q1); cvt(vT1, Q0 + 1, Q1 + 1)
        L.issue(f'ds_write2_b32 {v(vXQw)}, {v(vT0)}, {v(vT1)} offset0:0 offset1:{2*XQP//4}')
        add(K1, K1, K1 + 1); add(K1 + 1, K1 + 2, K1 + 3)
        cvt(SP + 1, K0, K1); cvt(SP + 3, K0 + 1, K1 + 1)
        L.issue(f'ds_write2_b32 {v(vXQw)}, {v(SP+1)}, {v(SP+3)} offset0:{XQP//4} offset1:{3*XQP//4}')
    VL = [(o, t) for o in range(8) for t in range(2)][(3 if nd != 1 else 6):]
    def nv():
        if VL: mv(*VL.pop(0))
    if 'nog1' not in EXP:
        for _ in range(4): nv()
    else:
        nv(); kxload(2)
        nv(); kxload(3)
        nv(); kxload(6)
        nv(); kxload(7)
        nv()
    L.wait_all()
    A('s_barrier')
    stamp(3)
    if 'trace' in EXP: A('s_memrealtime s[52:53]')
    QF, KMF, SA = ACC, MF, MF + 16
    qt, kt = {}, {}
    def qread(ks): qt[ks] = L.issue(f'ds_read_b128 {v(QF + 4*ks, 4)}, {v(vXQr)} offset:{ks*64}')
    def kread(ks): kt[ks] = L.issue(f'ds_read_b128 {v(KMF + 4*ks, 4)}, {v(vXKr)} offset:{ks*64}')
    qread(0); qread(1)
    nv(); qread(2)
    nv(); qread(3)
    nv(); kread(0)
    nv(); kread(1)
    nv(); kread(2)
    nv(); kread(3)
    nv()
    A(f's_mov_b32 m0, {s(sKXm)}')
    while VL: nv()
    TX0, TX1, TM = SA, SA + 4, SA + 8
    def mm(d, a, b, c, k=32):
        n = 4 if k == 32 else 2
        A(f'v_mfma_f32_16x16x{k}_bf16 {v(d,4)}, {v(a,n)}, {v(b,n)}, {c}')
    L.wait(qt[3])
    for ks in range(4):
        mm(TX0, RING + 4 * ks, QF + 4 * ks, '0' if ks == 0 else v(TX0, 4))
        if ks == 0 and 'nodma' not in EXP: V.issue(f'buffer_load_dwordx4 {v(vMw)}, s[4:7], {s(sKXo)} offen sc1 lds')
        if ks == 1 and 'nodma' not in EXP: V.issue(f'buffer_load_dwordx4 {v(vMw)}, s[4:7], {s(sT0)} offen sc1 lds')
        if ks == 2: add(V0, V0, V0 + 1); add(V0 + 1, V0 + 2, V0 + 3)
        if ks == 3: cvt(SP, V0, V0 + 1); cvt(SP + 2, V1, V1 + 1)
        mm(TX1, RING + 16 + 4 * ks, QF + 4 * ks, '0' if ks == 0 else v(TX1, 4))
        if ks == 0: A(f's_add_u32 m0, {s(sKXm)}, 4096\ns_add_u32 {s(sT0)}, {s(sKXo)}, {16*8192}')
        if ks == 1: A(f'v_mov_b32 {v(vT0)}, {s(sStep)}')
        if ks == 2: add(V1, V1, V1 + 1); add(V1 + 1, V1 + 2, V1 + 3)
    L.wait(kt[3])
    M_, T_ = vT2, vT3
    mm(TM, KMF, QF, '0')
    def kvst(): V.issue(f'buffer_store_dwordx4 {v(SP,4)}, {v(vMw)}, s[4:7], {s(sKMo)} offen sc1')
    if 'st' not in EXP: kvst()
    mm(TM, KMF + 4, QF + 4, v(TM, 4))
    if 'nokv' not in EXP: V.issue(f'buffer_store_dword {v(vT0)}, off, s[4:7], {s(sProg)} sc1')
    if 'trace' in EXP:
        A(f's_lshl_b32 s54, {s(sH)}, 8\ns_lshl_b32 s55, {s(sStep)}, 2\ns_add_u32 s54, s54, s55\ns_add_u32 s54, s54, {WS_DBG + 65536}\ns_cmp_eq_u32 {s(sWV)}, 0\ns_cselect_b32 s54, s54, 0x7ffffff0\nv_mov_b32 {v(vT1)}, s52')
        V.issue(f'buffer_store_dword {v(vT1)}, off, s[4:7], s54')
    A(f's_cmp_eq_u32 {s(sStep)}, {nsteps-1}')
    mm(TM, KMF + 8, QF + 8, v(TM, 4))
    A(f'v_max3_f32 {v(M_)}, {v(TX0)}, {v(TX0+1)}, {v(TX0+2)}')
    A(f'v_max3_f32 {v(T_)}, {v(TX0+3)}, {v(TX1)}, {v(TX1+1)}')
    mm(TM, KMF + 12, QF + 12, v(TM, 4))
    A(f's_cbranch_scc1 L_rec_fin')
    if 'st' in EXP: kvst()
    stamp(4)
    wt = {}
    def wofill(T, hf):
        wt[T] = L.issue(f'ds_read_b128 {v(MF + (T & 3)*8 + hf*4, 4)}, {v(vWkL)} offset:{16384 + T*2048 + hf*1024}')
    PM, PX = ACC, ACC + 4
    OL, O0_, O1_ = ACC + 8, V0, V1
    A(f'''
    v_max3_f32 {v(M_)}, {v(M_)}, {v(TX1+2)}, {v(TX1+3)}
    v_max_f32 {v(M_)}, {v(M_)}, {v(T_)}
    ''')
    wofill(0, 0); wofill(0, 1); wofill(1, 0); wofill(1, 1)
    A(f'''
    v_max3_f32 {v(T_)}, {v(M_)}, {v(TM)}, {v(TM+1)}
    v_max3_f32 {v(M_)}, {v(M_)}, {v(TM)}, {v(TM+1)}
    v_mov_b32 {v(PM+1)}, 0
    v_permlane32_swap_b32 {v(M_)}, {v(T_)}
    v_max_f32 {v(vT0)}, {v(M_)}, {v(T_)}
    v_max_f32 {v(vT1)}, {v(M_)}, {v(T_)}
    v_permlane16_swap_b32 {v(vT0)}, {v(vT1)}
    v_max_f32 {v(M_)}, {v(vT0)}, {v(vT1)}
    v_mul_f32 {v(M_)}, {s(sC)}, {v(M_)}
    ''')
    def pkf(x): A(f'v_pk_fma_f32 {v(x,2)}, {v(x,2)}, {s(sC,2)}, {v(M_,2)} op_sel_hi:[1,1,0] neg_lo:[0,0,1] neg_hi:[0,0,1]')
    def ex(x): A(f'v_exp_f32 {v(x)}, {v(x)}')
    pkf(TM); pkf(TX0); pkf(TX0 + 2); pkf(TX1); pkf(TX1 + 2)
    ex(TM); ex(TM + 1); ex(TX0)
    cvt(PM, TM, TM + 1)
    ex(TX0 + 1); ex(TX0 + 2)
    mm(OL, ONES, PM, '0', 16)
    ex(TX0 + 3); cvt(PX, TX0, TX0 + 1)
    mm(O0_, SP, PM, '0', 16)
    ex(TX1); cvt(PX + 1, TX0 + 2, TX0 + 3)
    mm(O1_, SP + 2, PM, '0', 16)
    ex(TX1 + 1); ex(TX1 + 2); ex(TX1 + 3)
    cvt(PX + 2, TX1, TX1 + 1); cvt(PX + 3, TX1 + 2, TX1 + 3)
    stamp(5)
    V.wait(tvx)
    mm(OL, ONES, PX, v(OL, 4))
    wofill(2, 0); wofill(2, 1)
    mm(O0_, VX, PX, v(O0_, 4))
    wofill(3, 0); wofill(3, 1)
    mm(O1_, VX + 4, PX, v(O1_, 4))
    WA = RING
    A(f'v_rcp_f32 {v(M_)}, {v(OL)}')
    zero(WA, 2)
    OX = ACC + 12
    def mul(x): A(f'v_mul_f32 {v(x)}, {v(M_)}, {v(x)}')
    for r in range(4): mul(O0_ + r)
    cvt(OX, O0_, O0_ + 1); cvt(OX + 1, O0_ + 2, O0_ + 3)
    for r in range(4): mul(O1_ + r)
    cvt(OX + 2, O1_, O1_ + 1); cvt(OX + 3, O1_ + 2, O1_ + 3)
    L.issue(f'ds_write_b128 {v(vXOw)}, {v(OX,4)}')
    zero(WA + 2, 30)
    if 'hint' in EXP:
        A(f'''
        s_add_u32 {s(sSt1)}, {s(sStep)}, 1
        v_and_b32 {v(ACC+8)}, 0x1f0, {v(vMw)}
        v_lshrrev_b32 {v(vT3)}, 2, {v(ACC+8)}
        v_lshlrev_b32 {v(ACC+8)}, 3, {v(ACC+8)}
        v_mov_b32 {v(ACC+9)}, {s(sSt1)}
        ''')
    stamp(6)
    L.wait_all()
    A('s_barrier')
    if dbg != 2: stamp(7)
    OA = V0
    ot0 = L.issue(f'ds_read_b128 {v(OA,4)}, {v(vXOr)}')
    ot1 = L.issue(f'ds_read_b128 {v(OA+4,4)}, {v(vXOr)} offset:128')
    if 'hint' in EXP: V.issue(f'buffer_store_dword {v(ACC+9)}, {v(ACC+8)}, s[4:7], {s(sHw)} offen{stf}')
    ht = {}
    def hpoll(k): ht[k] = V.issue(f'buffer_load_dword {v(vT0+k)}, {v(vT3)}, s[4:7], {s(sHr)} offen sc1')
    def hchk(k): A(f'v_cmp_gt_u32 vcc, {s(sSt1)}, {v(vT0+k)}')
    A(f'''
    s_add_u32 {s(sKXo)}, {s(sKXo)}, {32*8192}
    s_xor_b32 {s(sKXm)}, {s(sKXm)}, {LDS_KX ^ (LDS_KX + 8192)}
    s_add_u32 {s(sVXo)}, {s(sVXo)}, {32*128*64}
    s_add_u32 {s(sKMo)}, {s(sKMo)}, {32*4096}
    v_xor_b32 {v(vKXr)}, {LDS_KX ^ (LDS_KX + 8192)}, {v(vKXr)}
    ''')
    L.wait(ot0)
    PO = ACC
    PU = VX
    def hs(T, j): add(PO + 2 * T + j, WA + 4 * T + 2 * j, WA + 4 * T + 2 * j + 1)
    def tag(Qd):
        x = PO + 8 * Qd
        A(f'v_add_u32 {v(x)}, {s(sTa)}, {v(x)}')
        A(f'v_and_or_b32 {v(x)}, {v(x)}, {v(vMask)}, {s(sTb)}')
    def pk(P):
        Qd, p = P >> 1, P & 1
        for j in range(2): cvt(PU + 4 * Qd + 2 * j + p, PO + 4 * P + j, PO + 4 * P + 2 + j)
    def pstore(Qd):
        if 'pl2' in EXP: V.issue(f'buffer_store_dwordx4 {v(PU+4*Qd,4)}, {v(vPs)}, s[4:7], {(0, s(sHr))[Qd]} offen{stf}')
        else: V.issue(f'buffer_store_dwordx4 {v(PU+4*Qd,4)}, {v(vPs)}, s[4:7], 0 offen offset:{Qd*128}{stf}')
    for T in range(8):
        smf(A, WA + 4 * T, OA, v(WO0 + 8 * T, 8))
        if T == 0: L.wait(ot1)
        if T in (1, 3, 5) and 'hint' in EXP: hpoll(T >> 1)
        if T >= 2: hs(T - 2, 0)
        if T >= 4 and ('w2' not in EXP): L.wait(wt[T])
        if T in (4, 6) and 'w2' in EXP: L.wait(wt[T + 1])
        smf(A, WA + 4 * T, OA + 4, v(MF + (T & 3) * 8, 8))
        if T < 4: wofill(T + 4, 0); wofill(T + 4, 1)
        if T >= 2: hs(T - 2, 1)
        if T in (2, 6): tag(T >> 2)
        if T >= 3 and T % 2 == 1: pk((T - 3) // 2)
        if T == 5:
            pstore(0)
            if dbg == 2: stamp(7)
    hs(6, 0); hs(6, 1); hs(7, 0); hs(7, 1); pk(3); pstore(1)
    stamp(8)
    RD, RT = vT0, MF + 28
    A(f's_mov_b32 {s(sSpin)}, 0')
    def red_issue(k=0):
        for i in range(2):
            V.issue(f'buffer_load_dwordx4 {v(RS[k] + 4*i, 4)}, {v(vPl)}, s[4:7], 0 offen offset:{i*(2048 if "pl3" in EXP else 1024)} sc1')
    def chkR(k=0, spec=False):
        A(f'v_bitop3_b32 {v(RT)}, {v(RS[k])}, {v(RS[k]+4)}, {s(sTg)} bitop3:0x7e')
        if k == 0 or spec: mm(RD, RS[k], SEL, '0')
        A(f'v_and_b32 {v(RT)}, 1, {v(RT)}')
        A(f'v_cmp_ne_u32 vcc, 0, {v(RT)}')
        if k == 0 or spec: mm(RD, RS[k] + 4, SEL, v(RD, 4))
    A(f's_add_u32 {s(sT1)}, {s(sStep)}, 2\ns_lshr_b32 {s(sT1)}, {s(sT1)}, 2')
    if 'noref' not in EXP: A(f's_cmp_eq_u32 {s(sStep)}, 16\ns_cselect_b32 {s(sT1)}, 15, {s(sT1)}')
    A(f's_min_u32 {s(sT1)}, {s(sT1)}, 15')
    A(f's_cmp_lt_u32 {s(sT1)}, {s(sReady)}\ns_cbranch_scc0 L_need_{sfx}')
    A.label(f'L_have_{sfx}')
    if 'hint' in EXP:
        V.wait(ht[1])
        hchk(0)
        A(f's_cbranch_vccz L_h1_{sfx}')
        hchk(1)
        A(f's_cbranch_vccz L_h2_{sfx}')
        hpoll(0)
        V.wait(ht[2])
        hchk(2)
        A(f's_cbranch_vccnz L_hf_{sfx}')
        delay(e3)
        A.label(f'L_h2_{sfx}')
        delay(e2)
    A.label(f'L_h1_{sfx}')
    wdelay('1', d1a, d1b)
    red_issue(ordR[0])
    ring_prefetch(); zero(ACC, 24)
    for n in range(1, e2 + 1):
        delay(ef - 20 if n == 1 else ef); red_issue(ordR[n])
    if LIN:
        for n, k in enumerate(ordR[:-1]):
            A(f's_waitcnt vmcnt({2*(e2 - n)})')
            chkR(k, True)
            A(f's_cbranch_vccz L_rok_{sfx}')
    A(f's_waitcnt vmcnt({0 if LIN else 2*e2})')
    chkR(0)
    A(f's_cbranch_vccnz L_rf0_{sfx}')
    A.label(f'L_rok_{sfx}')
    stamp(9)
    if dbg == 1: A(f's_add_u32 s89, s89, {s(sSpin)}')
    A(f'''
    v_permlane32_swap_b32 {v(RD)}, {v(RD+2)}
    v_permlane32_swap_b32 {v(RD+1)}, {v(RD+3)}
    v_add_f32 {v(RD)}, {v(RD)}, {v(RD+2)}
    v_add_f32 {v(RD+1)}, {v(RD+1)}, {v(RD+3)}
    v_permlane16_swap_b32 {v(RD)}, {v(RD+1)}
    v_add_f32 {v(RD)}, {v(RD)}, {v(RD+1)}
    v_mov_b32_dpp {v(RD+1)}, {v(RD)} quad_perm:[1,0,3,2] row_mask:0xf bank_mask:0xf
    v_cvt_pk_bf16_f32 {v(RD)}, {v(RD)}, {v(RD+1)}
    v_min_u32 {v(RD)}, {s(sSent)}, {v(RD)}
    buffer_store_dword {v(RD)}, {v(vMs)}, s[4:7], {s(sNext)} offen{stf}
    s_xor_b32 {s(sCur0)}, {s(sCur0)}, 8192
    s_xor_b32 {s(sCur1)}, {s(sCur1)}, 8192
    s_xor_b32 {s(sNext)}, {s(sNext)}, 8192
    s_xor_b32 {s(sTg)}, {s(sTg)}, 1
    s_xor_b32 {s(sTb)}, {s(sTb)}, 0x10000
    s_xor_b32 {s(sTa)}, {s(sTa)}, 0x10000
    s_add_u32 {s(sStep)}, {s(sStep)}, 1
    s_mov_b32 {s(sSpin)}, 0
    ''')
    stamp(10)
    wdelay('2', d2a, d2b)
    for k in range(e3 + 1):
        if k: delay(ef)
        gatherA(ordA[k])
        if nd == 2 and k == e3: gatherB()
    if dbg == 2:
        A(f's_cmp_lg_u32 {s(sStep)}, 31\ns_cbranch_scc1 L_nd1_{sfx}\ns_waitcnt lgkmcnt(0)')
        for i in range(11): A(f's_mov_b32 s{76+i}, s{52+2*i}')
        A(f'L_nd1_{sfx}:\ns_cmp_lg_u32 {s(sStep)}, 32\ns_cbranch_scc1 L_nd2_{sfx}\ns_waitcnt lgkmcnt(0)')
        A(f's_mov_b32 s88, s52\ns_mov_b32 s89, s56\ns_mov_b32 s74, s58\nL_nd2_{sfx}:')
    elif dbg:
        A('s_waitcnt lgkmcnt(0)')
        for i in range(10):
            A(f's_sub_u32 {s(sT0)}, s{52+2*(i+1)}, s{52+2*i}\ns_add_u32 s{76+i}, s{76+i}, {s(sT0)}')
        A(f's_sub_u32 {s(sT0)}, s52, s87\ns_cmp_eq_u32 {s(sStep)}, 1\ns_cselect_b32 {s(sT0)}, 0, {s(sT0)}\ns_add_u32 s86, s86, {s(sT0)}\ns_mov_b32 s87, s72')
    A(f's_branch L_loop_{sfx}')
    A.label(f'L_need_{sfx}')
    ensure(A, sfx)
    A(f's_branch L_have_{sfx}')
    A.label(f'L_hf_{sfx}')
    hpoll(1)
    A.label(f'L_hl_{sfx}')
    for k in (0, 1):
        A('s_waitcnt vmcnt(1)')
        hchk(k)
        A(f's_cbranch_vccz L_hd_{sfx}')
        hpoll(k)
    A(f's_add_u32 {s(sSpin)}, {s(sSpin)}, 1\ns_cmp_lt_u32 {s(sSpin)}, {SPIN_LIMIT}\ns_cbranch_scc1 L_hl_{sfx}\ns_endpgm')
    A.label(f'L_hd_{sfx}')
    delay(ef)
    A(f's_branch L_h1_{sfx}')
    poll_tail('a', 1, GA, 4, gatherA, chkA, lambda: A(f'ds_write_b128 {v(vMw)}, {v(MF,4)}\ns_branch L_aok_{sfx}'), blind=0 if LIN else e3)
    poll_tail('b', 1, GB, 4, gatherB, chkB, lambda: A(f'ds_write_b128 {v(vMw)}, {v(MF+16,4)} offset:4096\ns_branch L_bok_{sfx}'))
    def finR():
        mm(RD, RS[0], SEL, '0'); mm(RD, RS[0] + 4, SEL, v(RD, 4)); A(f's_branch L_rok_{sfx}')
    poll_tail('r', 2, RS, 8, red_issue, chkR, finR, blind=0 if LIN else e2)

HDR = '; @launch grid=(256,1,1) block=(256,1,1) lds=163840\n.amdgcn_target "amdgcn-amd-amdhsa--gfx950"\n'
```

```python
from asmlib import *
from layout import *
import gemm1 as g
import struct
def f2u(x): return struct.unpack('<I', struct.pack('<f', x))[0]
def v(i, n=1): return f'v{i}' if n == 1 else f'v[{i}:{i+n-1}]'
def a_(i, n=1): return f'a{i}' if n == 1 else f'a[{i}:{i+n-1}]'
def s(i, n=1): return f's{i}' if n == 1 else f's[{i}:{i+n-1}]'
F_KVQ, F_H1, F_ATT, F_PROG = WS_FLAG, WS_FLAG + 1024, WS_FLAG + 4096, WS_FLAG + 8192
F_LN, F_Q, F_TK = WS_FLAG + 12288, WS_FLAG + 12288 + 2048, WS_FLAG + 12288 + 3072
F_R, F_AT = WS_FLAG + 2048, WS_FLAG + 3072
N_G1, N_G2, N_ATT = 880, 128, 512
N_AW = 32
LB = 160000
gTk, wSp, wA, wB, wC, wD, wSeg = 74, 75, 81, 82, 83, 84, 85
vZ, vLB, vTk = 12, 13, 14
WSPIN = 1 << 16
G2SLP = 2
EXP = set()

def tstamp(A, slot):
    if 'tt' not in EXP: return
    A(f'''
    s_memrealtime s[92:93]
    s_lshl_b32 s94, s2, 5
    s_add_u32 s94, s94, {WS_DBG + 196608 + 4*slot}
    s_waitcnt lgkmcnt(0)
    v_mov_b32 v15, s92
    buffer_store_dword v15, off, s[4:7], s94
    ''')

def wait_flag(A, tag, soff, cmp, val, far=None, slp=8, srd='s[4:7]'):
    A(f'''
    s_mov_b32 {s(wSp)}, 0
L_wf_{tag}:
    buffer_load_dword {v(vTk)}, {v(vZ)}, {srd}, {s(soff)} offen sc0 sc1
    s_add_u32 {s(wSp)}, {s(wSp)}, 1
    s_cmp_lt_u32 {s(wSp)}, {WSPIN}
    s_cbranch_scc0 L_rec_exit
    s_waitcnt vmcnt(0)
    v_readfirstlane_b32 {s(wD)}, {v(vTk)}
    s_cmp_{cmp}_u32 {s(wD)}, {val}
    s_cbranch_scc1 L_wfd_{tag}
    s_sleep {slp * (8 if 'slowpoll' in EXP else 1)}
    {'' if far is None else far}
    s_branch L_wf_{tag}
L_wfd_{tag}:
    ''')

def signal(A, soff, val, nxt='L_wk_next'):
    A(f'''
    s_waitcnt vmcnt(0)
    s_barrier
    s_cmp_lg_u32 {s(g.gW)}, 0
    s_cbranch_scc1 {nxt}
    v_mov_b32 {v(vTk)}, {val}
    s_mov_b64 exec, 1
    buffer_atomic_add {v(vTk)}, {v(vZ)}, s[4:7], {s(soff)} offen
    s_mov_b64 exec, -1
    s_branch {nxt}
    ''')

def gen_att_task(A):
    vL = g.gL
    vG, vN, vQ, vKM, vVX, vVM, vT0, vT1, vM, vT = 160, 161, 162, 163, 164, 165, 166, 167, 168, 169
    ONES = 172
    QF, KX, KM, VX, VM = 16, 48, 80, 96, 128
    SA, PM, PX, OL, O = 176, 188, 192, 196, 200
    OUT = 216
    A(f'''
L_att_next:
    ''')
    tstamp(A, 2)
    A(f'''
    s_add_u32 {s(gTk)}, {s(gTk)}, {N_AW}
    s_cmp_ge_u32 {s(gTk)}, {N_ATT}
    s_cbranch_scc1 L_rec_exit
L_att:
    s_mov_b32 {s(wA)}, {s(gTk)}
    s_lshr_b32 s24, {s(wA)}, 3
    s_and_b32 s25, {s(wA)}, 7
    s_lshl_b32 s25, s25, 2
    s_add_u32 s25, s25, {s(g.gW)}
    s_lshr_b32 {s(wA)}, s25, 1
    s_lshl_b32 {s(wA)}, {s(wA)}, 4
    s_lshr_b32 {s(wB)}, s24, 2
    s_add_u32 {s(wA)}, {s(wA)}, {s(wB)}
    s_lshl_b32 {s(wA)}, {s(wA)}, 2
    s_add_u32 {s(wA)}, {s(wA)}, {F_KVQ}
    v_lshrrev_b32 {v(vG)}, 4, {v(vL)}
    v_and_b32 {v(vN)}, 15, {v(vL)}
    v_lshlrev_b32 {v(vQ)}, 4, {v(vL)}
    s_lshl_b32 s26, s24, 18
    s_lshl_b32 s27, s25, 12
    s_add_u32 s26, s26, s27
    s_add_u32 s27, s26, {WS_Q}
    s_add_u32 s28, s27, {16*8192}
    s_add_u32 s29, s26, {WS_K}
    s_add_u32 s30, s29, {16*8192}
    s_add_u32 s34, s26, {WS_O}
    s_add_u32 s35, s34, {16*8192}
    s_lshl_b32 s31, s24, 5
    s_add_u32 s31, s31, s25
    s_lshl_b32 s36, s31, 12
    s_add_u32 s36, s36, {WS_KM}
    s_lshl_b32 s32, s31, 13
    s_add_u32 s32, s32, {WS_VT}
    s_add_u32 s33, s32, 4096
    v_lshrrev_b32 {v(vT0)}, 2, {v(vN)}
    v_and_b32 {v(vT1)}, 1, {v(vN)}
    v_lshlrev_b32 {v(vKM)}, 8, {v(vT0)}
    v_lshl_add_u32 {v(vKM)}, {v(vG)}, 6, {v(vKM)}
    v_lshl_add_u32 {v(vKM)}, {v(vT1)}, 3, {v(vKM)}
    v_lshlrev_b32 {v(vVX)}, 6, {v(vN)}
    v_lshl_add_u32 {v(vVX)}, {v(vG)}, 4, {v(vVX)}
    ''')
    wait_flag(A, 'a1', wA, 'eq', '258')
    ld = lambda d, a, so, off: A(f'buffer_load_dwordx4 {v(d,4)}, {v(a)}, s[4:7], s{so} offen offset:{off} sc1')
    for ks in range(4): ld(QF + 4 * ks, vQ, 27, ks * 1024)
    for ks in range(4): ld(KX + 4 * ks, vQ, 29, ks * 1024)
    for ks in range(4): ld(QF + 16 + 4 * ks, vQ, 28, ks * 1024)
    for ks in range(4): ld(KX + 16 + 4 * ks, vQ, 30, ks * 1024)
    for ft in range(8): ld(VX + 4 * ft, vVX, 32 + (ft >> 2), (ft & 3) * 1024)
    for i in range(4): A(f'v_mov_b32 {v(ONES+i)}, 0x3f803f80')
    A(f'v_lshlrev_b32 {v(vT0)}, 2, {v(vG)}')
    for r in range(4):
        A(f'v_add_u32 {v(vT1)}, {r}, {v(vT0)}')
        A(f'v_cmp_le_u32 s[{40+2*r}:{41+2*r}], {v(vT1)}, {v(vN)}')
    A(f's_mov_b32 s48, {f2u(SM_C)}\nv_mov_b32 {v(vT0)}, 0xf149f2ca\nv_mov_b32 {v(PM+1)}, 0')
    def mm(d, a, b, c, k=32):
        n = 4 if k == 32 else 2
        A(f'v_mfma_f32_16x16x{k}_bf16 {v(d,4)}, {v(a,n)}, {v(b,n)}, {c}')
    XS = (224, 228, 232)
    A('s_waitcnt vmcnt(8)')
    for ks in range(4):
        mm(XS[0], KX + 4 * ks, QF + 4 * ks, '0' if ks == 0 else v(XS[0], 4))
        mm(XS[1], KX + 4 * ks, QF + 16 + 4 * ks, '0' if ks == 0 else v(XS[1], 4))
        mm(XS[2], KX + 16 + 4 * ks, QF + 16 + 4 * ks, '0' if ks == 0 else v(XS[2], 4))
    for D in (XS[0], XS[2]):
        for r in range(4): A(f'v_cndmask_b32 {v(D+r)}, {v(vT0)}, {v(D+r)}, s[{40+2*r}:{41+2*r}]')
    A(f's_lshl_b32 {s(wA)}, s25, 7\ns_add_u32 {s(wA)}, {s(wA)}, {F_PROG}')
    wait_flag(A, 'a2', wA, 'gt', 's24', far=f's_add_u32 {s(wD)}, {s(wD)}, 1\ns_cmp_ge_u32 {s(wD)}, s24\ns_cbranch_scc1 L_wf_a2\ns_sleep 40', slp=2)
    tstamp(A, 0)
    if 'tt' in EXP: A('s_waitcnt vmcnt(0)')
    for ks in range(4):
        for i in range(4): A(f'buffer_load_dword {v(KM + 4*ks + i)}, {v(vKM)}, s[4:7], s36 offen offset:{ks*1024 + i*16 + 4} sc1')
    for w in range(4): ld(VM + 4 * w, vQ, 36, w * 1024)
    A('s_waitcnt vmcnt(4)')
    for ks in range(4):
        for qt in range(2):
            mm(SA + 4 * qt, KM + 4 * ks, QF + 16 * qt + 4 * ks, '0' if ks == 0 else v(SA + 4 * qt, 4))
    for qt in range(2):
        TM, TX0, TX1 = SA + 4 * qt, XS[qt], XS[2]
        A(f'v_max3_f32 {v(vM)}, {v(TX0+3)}, {v(TX0+1)}, {v(TX0+2)}')
        if qt == 1:
            A(f'v_max3_f32 {v(vM)}, {v(vM)}, {v(TX1)}, {v(TX1+1)}')
            A(f'v_max3_f32 {v(vM)}, {v(vM)}, {v(TX1+2)}, {v(TX1+3)}')
        A(f'v_max_f32 {v(vM)}, {v(vM)}, {v(TX0)}')
        A(f'v_max3_f32 {v(vM)}, {v(vM)}, {v(TM)}, {v(TM+1)}')
        for p in ('32', '16'):
            A(f'v_mov_b32 {v(vT)}, {v(vM)}\nv_permlane{p}_swap_b32 {v(vM)}, {v(vT)}\nv_max_f32 {v(vM)}, {v(vM)}, {v(vT)}')
        A(f'v_mul_f32 {v(vM)}, s48, {v(vM)}')
        regs = [TM, TM + 1] + [TX0 + r for r in range(4)] + ([TX1 + r for r in range(4)] if qt else [])
        for x in regs: A(f'v_fma_f32 {v(x)}, {v(x)}, s48, -{v(vM)}')
        for x in regs: A(f'v_exp_f32 {v(x)}, {v(x)}')
        A(f'v_cvt_pk_bf16_f32 {v(PM)}, {v(TM)}, {v(TM+1)}')
        A(f'v_cvt_pk_bf16_f32 {v(PX)}, {v(TX0)}, {v(TX0+1)}\nv_cvt_pk_bf16_f32 {v(PX+1)}, {v(TX0+2)}, {v(TX0+3)}')
        if qt: A(f'v_cvt_pk_bf16_f32 {v(PX+2)}, {v(TX1)}, {v(TX1+1)}\nv_cvt_pk_bf16_f32 {v(PX+3)}, {v(TX1+2)}, {v(TX1+3)}')
        else: A(f'v_mov_b32 {v(PX+2)}, 0\nv_mov_b32 {v(PX+3)}, 0')
        if qt == 0: A('s_waitcnt vmcnt(0)')
        mm(OL, ONES, PM, '0', 16)
        def pv(ks, first=False):
            for b in range(2):
                o = O + (ks & 1) * 8 + 4 * b; ft = 2 * ks + b
                mm(o, VM + 2 * ft, PM, '0', 16)
            if first: mm(OL, ONES, PX, v(OL, 4))
            for b in range(2):
                o = O + (ks & 1) * 8 + 4 * b; ft = 2 * ks + b
                mm(o, VX + 4 * ft, PX, v(o, 4))
        def fin(ks):
            o = O + (ks & 1) * 8; e = OUT + (ks & 1) * 4
            for i in range(8): A(f'v_mul_f32 {v(o+i)}, {v(vT1)}, {v(o+i)}')
            for r in range(4): A(f'v_cvt_pk_bf16_f32 {v(e+r)}, {v(o+r)}, {v(o+4+r)}')
            A(f'buffer_store_dwordx4 {v(e,4)}, {v(vQ)}, s[4:7], s{34+qt} offen offset:{ks*1024} sc1')
        pv(0, True)
        A(f'v_rcp_f32 {v(vT1)}, {v(OL)}')
        pv(1); fin(0); pv(2); fin(1); pv(3); fin(2); fin(3)
    A(f's_lshl_b32 {s(wA)}, s24, 6\ns_add_u32 {s(wA)}, {s(wA)}, {F_ATT}')
    tstamp(A, 1)
    signal(A, wA, 1, 'L_att_next')

def gen_g2_task(A):
    vL = g.gL
    vG, vN, vA, vW, vR, vX, vS, vT0 = 1, 2, 3, 4, 5, 6, 7, 8
    ACC, FW, XR, FA = 16, 32, 40, 44
    NR = 52
    RED = 131072
    A(f'''
L_g2:
    s_mov_b32 {s(wA)}, {s(gTk)}
    s_and_b32 s24, {s(wA)}, 15
    s_lshr_b32 {s(wSeg)}, {s(wA)}, 4
    s_load_dwordx4 s[28:31], s[0:1], 72
    s_load_dwordx2 s[32:33], s[0:1], 0
    v_lshrrev_b32 {v(vG)}, 4, {v(vL)}
    v_and_b32 {v(vN)}, 15, {v(vL)}
    s_lshl_b32 s25, {s(g.gW)}, 15
    s_lshl_b32 s26, {s(g.gW)}, 10
    v_lshlrev_b32 {v(vS)}, 4, {v(vL)}
    v_add_u32 {v(vA)}, s26, {v(vS)}
    v_bfe_u32 {v(vW)}, {v(vL)}, 2, 1
    v_lshlrev_b32 {v(vW)}, 4, {v(vW)}
    v_lshrrev_b32 {v(vT0)}, 5, {v(vL)}
    v_lshl_add_u32 {v(vW)}, {v(vT0)}, 2, {v(vW)}
    v_bfe_u32 {v(vT0)}, {v(vL)}, 3, 2
    v_add_u32 {v(vW)}, {v(vW)}, {v(vT0)}
    v_lshlrev_b32 {v(vW)}, 10, {v(vW)}
    v_and_b32 {v(vT0)}, 3, {v(vL)}
    v_lshl_add_u32 {v(vW)}, {v(vT0)}, 4, {v(vW)}
    s_lshl_b32 s27, s24, 6
    s_add_u32 {s(wA)}, s27, s25
    v_add_u32 {v(vW)}, {s(wA)}, {v(vW)}
    v_bfe_u32 {v(vR)}, {v(vL)}, 2, 2
    v_lshl_add_u32 {v(vR)}, {v(vG)}, 3, {v(vR)}
    v_lshlrev_b32 {v(vR)}, 6, {v(vR)}
    v_lshl_add_u32 {v(vR)}, {v(vT0)}, 4, {v(vR)}
    v_add_u32 {v(vR)}, s25, {v(vR)}
    v_lshlrev_b32 {v(vX)}, 10, {v(vN)}
    v_lshl_add_u32 {v(vX)}, {v(vG)}, 4, {v(vX)}
    v_add_u32 {v(vX)}, s27, {v(vX)}
    s_mov_b32 s12, s22
    s_mov_b32 s13, s23
    s_mov_b32 s14, 0x400000
    s_waitcnt lgkmcnt(0)
    s_mov_b32 s40, s30
    s_mov_b32 s41, s31
    s_mov_b32 s42, 0x200000
    s_mov_b32 s43, 0x20000
    s_mov_b32 s44, s32
    s_mov_b32 s45, s33
    s_mov_b32 s46, 0x200000
    s_mov_b32 s47, 0x20000
    ''')
    def stage(lb0, n):
        for j in range(n):
            for i in range(2):
                A(f's_add_u32 m0, s25, {j*2048 + i*1024}')
                A(f's_mov_b32 s34, {(lb0 + j)*4*32*1024 + i*8*1024}')
                A(f'buffer_load_dwordx4 {v(vW)}, s[12:15], s34 offen lds')
    for half in range(2):
        stage(half * 16, 16)
        A('s_waitcnt vmcnt(0)')
        for j in range(16):
            for bt in range(2):
                for t in range(2):
                    d = ((half * 16 + j) * 2 + bt) * 4 + 2 * t
                    A(f'ds_read_b64_tr_b16 {a_(d, 2)}, {v(vR)} offset:{j*2048 + t*256 + bt*8}')
            if j % 3 == 2: A('s_waitcnt lgkmcnt(0)')
        A('s_waitcnt lgkmcnt(0)')
    A(f's_mov_b32 s12, s28\ns_mov_b32 s13, s29\ns_mov_b32 s14, {1792*1024}')
    stage(0, 14)
    A(f'''
L_g2_seg:
    s_lshr_b32 {s(wA)}, {s(wSeg)}, 3
    s_lshl_b32 {s(wA)}, {s(wA)}, 2
    s_add_u32 {s(wA)}, {s(wA)}, {F_H1}
    ''')
    wait_flag(A, 'g1', wA, 'eq', '7')
    A(f'''
    s_mul_i32 s35, {s(wSeg)}, 57344
    s_add_u32 s35, s35, {WS_H1}
    s_lshl_b32 s36, {s(wSeg)}, 14
    buffer_load_dwordx4 {v(XR,4)}, {v(vX)}, s[44:47], s36 offen
    ''')
    for lb in range(14):
        A(f's_add_u32 s34, s35, {lb*4096}')
        A(f'buffer_load_dwordx4 {v(FA + lb*4, 4)}, {v(vA)}, s[4:7], s34 offen sc1')
    for lb in range(14):
        for bt in range(2):
            for t in range(2):
                A(f'ds_read_b64_tr_b16 {v(FW + bt*4 + 2*t, 2)}, {v(vR)} offset:{lb*2048 + t*256 + bt*8}')
        A(f's_waitcnt vmcnt({13-lb}) lgkmcnt(0)')
        for bt in range(2):
            ac = v(ACC + bt*4, 4)
            A(f'v_mfma_f32_16x16x32_bf16 {ac}, {v(FW + bt*4, 4)}, {v(FA + lb*4, 4)}, {"0" if lb == 0 else ac}')
    A(f's_lshr_b32 {s(wA)}, {s(wSeg)}, 1\ns_lshl_b32 {s(wA)}, {s(wA)}, 6\ns_add_u32 {s(wA)}, {s(wA)}, {F_ATT}')
    A(f's_lshl_b32 s35, {s(wSeg)}, 17\ns_add_u32 s35, s35, {WS_O}')
    A(f's_cmp_lg_u32 {s(g.gW)}, 0\ns_cbranch_scc1 L_wfd_g2')
    wait_flag(A, 'g2', wA, 'eq', '8', slp=G2SLP, far=f's_cmp_lg_u32 {s(wD)}, 0\ns_cbranch_scc1 L_wf_g2\ns_sleep 6')
    A('s_barrier')
    tstamp(A, 3)
    if 'tt' in EXP: A('s_waitcnt vmcnt(0)')
    for lb in range(32):
        A(f's_add_u32 s34, s35, {lb*4096}')
        A(f'buffer_load_dwordx4 {v(FA + lb*4, 4)}, {v(vA)}, s[4:7], s34 offen sc1')
    for lb in range(32):
        A(f's_waitcnt vmcnt({31 - lb})')
        for bt in range(2):
            ac = v(ACC + bt*4, 4)
            A(f'v_mfma_f32_16x16x32_bf16 {ac}, {a_((lb*2+bt)*4, 4)}, {v(FA + lb*4, 4)}, {ac}')
    tstamp(A, 4)
    A(f's_lshl_b32 {s(wA)}, {s(g.gW)}, 11\ns_add_u32 {s(wA)}, {s(wA)}, {RED}\nv_add_u32 {v(vT0)}, {s(wA)}, {v(vS)}')
    for i in range(2): A(f'ds_write_b128 {v(vT0)}, {v(ACC + 4*i, 4)} offset:{i*1024}')
    A(f'''
    s_waitcnt lgkmcnt(0)
    s_barrier
    s_cmp_ge_u32 {s(g.gW)}, 1
    s_cbranch_scc1 L_g2_skip
    ''')
    for sw in range(1, 4):
        for bt in range(2):
            A(f'ds_read_b128 {v(FA + (sw*2+bt)*4, 4)}, {v(vT0)} offset:{sw*2048 + bt*1024}')
    A('s_waitcnt lgkmcnt(0)')
    for i in range(8):
        A(f'v_add_f32 {v(FA+i)}, {v(ACC+i)}, {v(FA+8+i)}')
        A(f'v_add_f32 {v(FA+16+i)}, {v(FA+16+i)}, {v(FA+24+i)}')
    for i in range(8): A(f'v_add_f32 {v(FA+i)}, {v(FA+i)}, {v(FA+16+i)}')
    for d in range(4):
        A(f'v_lshlrev_b32 {v(FW)}, 16, {v(XR+d)}\nv_and_b32 {v(FW+1)}, 0xffff0000, {v(XR+d)}')
        A(f'v_add_f32 {v(FA+2*d)}, {v(FA+2*d)}, {v(FW)}\nv_add_f32 {v(FA+2*d+1)}, {v(FA+2*d+1)}, {v(FW+1)}')
        A(f'v_cvt_pk_bf16_f32 {v(FA+32+d)}, {v(FA+2*d)}, {v(FA+2*d+1)}')
    A(f'''
    buffer_store_dwordx4 {v(FA+32,4)}, {v(vX)}, s[40:43], s36 offen
L_g2_skip:
    s_barrier
    ''')
    tstamp(A, 5)
    A(f'''
    s_add_u32 {s(wSeg)}, {s(wSeg)}, {N_G2 // 16}
    s_cmp_lt_u32 {s(wSeg)}, 128
    s_cbranch_scc1 L_g2_seg
    s_endpgm
    ''')

def gen_worker(A, sWV, sXcc, sRank, vLrec, D_FINIT, D_CLAIM, D_SLOW):
    wQ, wTry, wC1, wOff, wLn = 86, 87, 88, 89, 59
    def ticket(tag, srd='s[4:7]'):
        A(f'''
        s_cmp_lg_u32 {s(g.gW)}, 0
        s_cbranch_scc1 L_tk_bar_{tag}
        v_mov_b32 {v(vTk)}, 1
        s_mov_b64 exec, 1
        buffer_atomic_add {v(vTk)}, {v(vZ)}, {srd}, {s(wOff)} offen sc0
        s_waitcnt vmcnt(0)
        ds_write_b32 {v(vLB)}, {v(vTk)}
        s_mov_b64 exec, -1
        s_waitcnt lgkmcnt(0)
L_tk_bar_{tag}:
        s_barrier
        ds_read_b32 {v(vTk)}, {v(vLB)}
        s_waitcnt lgkmcnt(0)
        v_readfirstlane_b32 {s(gTk)}, {v(vTk)}
        s_barrier
        ''')
    A(f'''
L_worker:
    {'s_memrealtime s[92:93]' if 'wt' in EXP else ''}
    s_mov_b32 {s(g.gW)}, {s(sWV)}
    v_and_b32 {v(g.gL)}, 63, v0
    ''')
    g.g1_setup(A)
    A(f'''
    v_mov_b32 {v(vZ)}, 0
    v_mov_b32 {v(vLB)}, {LB}
    s_add_u32 {s(wQ)}, {s(sXcc)}, 6
    s_cmp_ge_u32 {s(wQ)}, 14
    s_cselect_b32 {s(wA)}, 14, 0
    s_sub_u32 {s(wQ)}, {s(wQ)}, {s(wA)}
    s_cmp_ge_u32 {s(wQ)}, 7
    s_cselect_b32 {s(wA)}, 7, 0
    s_sub_u32 {s(wQ)}, {s(wQ)}, {s(wA)}
    s_mov_b32 {s(wTry)}, 0
    s_mov_b32 s90, 0
    s_mov_b32 {s(wLn)}, 0
    s_mov_b32 {s(wA)}, {D_FINIT}
    s_cmp_lg_u32 {s(g.gW)}, 0
    s_cbranch_scc1 L_wfd_fi
    ''')
    wait_flag(A, 'fi', wA, 'ge', '1', slp=2, srd='s[8:11]')
    A(f'''
L_wk_next:
    s_lshl_b32 {s(wOff)}, {s(wQ)}, 7
    s_add_u32 {s(wOff)}, {s(wOff)}, {F_Q}
    ''')
    ticket('q')
    A(f'''
    s_cmp_lt_u32 {s(wQ)}, 4
    s_cselect_b32 {s(wC1)}, 5, 4
    s_mov_b32 {s(wB)}, {1 << 14}
    s_cselect_b32 {s(wB)}, {(1 << 16) // 5 + 1}, {s(wB)}
    s_lshl_b32 {s(wA)}, {s(wC1)}, 4
    s_mov_b32 {s(wC)}, 16
    s_cmp_lt_u32 {s(gTk)}, {s(wA)}
    s_cbranch_scc1 L_wk_dec
    s_sub_u32 {s(gTk)}, {s(gTk)}, {s(wA)}
    s_cmp_lt_u32 {s(wQ)}, 2
    s_cselect_b32 {s(wC1)}, 4, 3
    s_mov_b32 {s(wB)}, {1 << 14}
    s_cselect_b32 {s(wB)}, {s(wB)}, {(1 << 16) // 3 + 1}
    s_lshl_b32 {s(wA)}, {s(wC1)}, 4
    s_mov_b32 {s(wC)}, 0
    s_cmp_lt_u32 {s(gTk)}, {s(wA)}
    s_cbranch_scc1 L_wk_dec
    s_add_u32 {s(wQ)}, {s(wQ)}, 1
    s_cmp_eq_u32 {s(wQ)}, 7
    s_cselect_b32 {s(wQ)}, 0, {s(wQ)}
    s_add_u32 {s(wTry)}, {s(wTry)}, 1
    s_cmp_lt_u32 {s(wTry)}, 7
    s_cbranch_scc1 L_wk_next
    s_mov_b32 {s(wOff)}, {F_TK}
    ''')
    ticket('r')
    A(f'''
    s_cmp_ge_u32 {s(gTk)}, 224
    s_cbranch_scc1 L_forced
    {'s_branch L_rec_exit' if 'g1only' in EXP else ''}
    s_mov_b32 {s(wTry)}, 0
L_role_g2:
    s_lshl_b32 {s(wOff)}, {s(wQ)}, 7
    s_add_u32 {s(wOff)}, {s(wOff)}, {F_R}
    ''')
    ticket('g')
    A(f'''
    s_lshl_b32 {s(wA)}, {s(wQ)}, 4
    s_add_u32 {s(wA)}, {s(wA)}, {s(gTk)}
    s_cmp_lt_u32 {s(gTk)}, 16
    s_cselect_b32 {s(gTk)}, {s(wA)}, {s(gTk)}
    s_cbranch_scc1 L_g2
    s_cmp_lg_u32 {s(wTry)}, 0
    s_cbranch_scc1 L_role_nx
    s_mov_b32 {s(wOff)}, {F_AT}
    ''')
    ticket('a')
    A(f'''
    s_cmp_lt_u32 {s(gTk)}, {N_AW}
    s_cbranch_scc1 L_att
L_role_nx:
    s_add_u32 {s(wQ)}, {s(wQ)}, 1
    s_cmp_eq_u32 {s(wQ)}, 7
    s_cselect_b32 {s(wQ)}, 0, {s(wQ)}
    s_add_u32 {s(wTry)}, {s(wTry)}, 1
    s_cmp_lt_u32 {s(wTry)}, 7
    s_cbranch_scc1 L_role_g2
    s_endpgm
L_forced:
    s_mov_b32 {s(wOff)}, {D_SLOW}
    ''')
    ticket('s', 's[8:11]')
    A(f's_mov_b32 {s(wOff)}, {D_CLAIM}')
    ticket('c', 's[8:11]')
    A(f'''
    s_mov_b32 {s(sRank)}, {s(gTk)}
    v_mov_b32 {v(vLrec)}, {v(g.gL)}
    s_mov_b32 s14, 0x400000
    s_mov_b32 s75, 0x7ffffff0
    s_cmp_lt_u32 {s(sRank)}, 32
    s_cbranch_scc1 L_rec_start
    s_endpgm
L_wk_dec:
    s_mul_i32 {s(g.gMB)}, {s(gTk)}, {s(wB)}
    s_lshr_b32 {s(g.gMB)}, {s(g.gMB)}, 16
    s_mul_i32 {s(wA)}, {s(g.gMB)}, {s(wC1)}
    s_sub_u32 {s(wA)}, {s(gTk)}, {s(wA)}
    s_mul_i32 {s(wA)}, {s(wA)}, 7
    s_add_u32 {s(wA)}, {s(wA)}, {s(wQ)}
    s_add_u32 {s(g.gNB)}, {s(wA)}, {s(wC)}
    s_add_u32 {s(wB)}, {s(wA)}, 32
    s_cmp_ge_u32 {s(wA)}, 16
    s_cselect_b32 {s(wB)}, {s(wB)}, {s(wA)}
    s_cmp_eq_u32 {s(wC)}, 0
    s_cselect_b32 {s(g.gNB)}, {s(wB)}, {s(g.gNB)}
    s_mov_b32 {s(wSp)}, 0
    v_and_b32 v15, 15, {v(g.gL)}
    v_lshlrev_b32 v15, 7, v15
    s_mov_b32 {s(wA)}, {F_LN}
L_ln_w:
    s_bitcmp1_b32 {s(wLn)}, {s(g.gMB)}
    s_cbranch_scc1 L_ln_ok
    buffer_load_dword {v(vTk)}, v15, s[4:7], {s(wA)} offen sc0 sc1
    s_add_u32 {s(wSp)}, {s(wSp)}, 1
    s_cmp_lt_u32 {s(wSp)}, {WSPIN}
    s_cbranch_scc0 L_rec_exit
    s_waitcnt vmcnt(0)
    v_cmp_le_u32 vcc, {7 if 'skipln' in EXP else 8}, {v(vTk)}
    s_mov_b32 {s(wLn)}, vcc_lo
    s_sleep 1
    s_branch L_ln_w
L_ln_ok:
    {'s_memrealtime s[94:95]' if 'wt' in EXP else ''}
    s_add_u32 s90, s90, 1
    ''')
    g.WT = 'wt' in EXP
    g.g1_tile(A, 'wk')
    if 'wt' in EXP:
        A(f'''
        s_waitcnt vmcnt(0)
        s_memrealtime s[100:101]
        s_cmp_lg_u32 s90, 1
        s_cbranch_scc1 L_wt_skip
        s_waitcnt lgkmcnt(0)
        s_lshl_b32 {s(wA)}, s2, 5
        s_add_u32 {s(wA)}, {s(wA)}, {WS_DBG + 131072}
        v_mov_b32 v16, s92
        v_mov_b32 v17, s94
        v_mov_b32 v18, s96
        v_mov_b32 v19, s98
        v_mov_b32 v20, s100
        v_mov_b32 v21, {s(g.gMB)}
        v_mov_b32 v22, {s(g.gNB)}
        v_mov_b32 v23, s91
        buffer_store_dwordx4 v[16:19], off, s[4:7], {s(wA)}
        buffer_store_dwordx4 v[20:23], off, s[4:7], {s(wA)} offset:16
L_wt_skip:
        ''')
    A(f'''
    s_and_b32 {s(wA)}, {s(g.gNB)}, 15
    s_lshl_b32 {s(wA)}, {s(wA)}, 4
    s_cmp_eq_u32 {s(g.gType)}, 3
    s_cselect_b32 {s(wA)}, 256, {s(wA)}
    s_add_u32 {s(wA)}, {s(wA)}, {s(g.gMB)}
    s_lshl_b32 {s(wA)}, {s(wA)}, 2
    s_add_u32 {s(wA)}, {s(wA)}, {F_KVQ}
    s_cmp_eq_u32 {s(g.gType)}, 0
    s_cselect_b32 {s(wB)}, 256, 1
    ''')
    signal(A, wA, s(wB))
    gen_att_task(A)
    gen_g2_task(A)
for c in (3, 5):
    for u in range(16 * c): assert (u * ((1 << 16) // c + 1)) >> 16 == u // c
_t = set()
for q in range(7):
    for i in range(5 if q < 4 else 4): _t.add(16 + q + 7 * i)
    for i in range(4 if q < 2 else 3):
        j = q + 7 * i; _t.add(j if j < 16 else j + 32)
assert _t == set(range(55))
```

```python
from asmlib import *
from layout import *
import worker
import struct

def f2u(x): return struct.unpack('<I', struct.pack('<f', x))[0]

LDS_M, LDS_KX, LDS_XQ, LDS_XO, LDS_MISC = 0, 8192, 24576, 29184, 31744
REG_A, REG_B = 32768, 49152
XQP, XOP = 272, 272
SPIN_LIMIT = 1 << 18
D_CLAIM, D_SLOW, D_RINIT, D_FINIT = 0, 4, 8, 128
EXP = {'pl2'}

(vIdx, vMw, vWkL, vXQw, vXQr, vXKr, vKXr, vVXg, vXOw, vXOr,
 vPs, vPl, vMs, vMask, vMr1, vMr2) = range(16)
SEL = 16
ONES = 20
vT0, vT1, vT2, vT3 = 24, 25, 26, 27
VX, MF, ACC, RING, SP = 28, 36, 68, 92, 124
Q0, K0, Q1, K1, V0, V1 = 68, 72, 76, 80, 84, 88
WK0, WO0 = 128, 192
sH, sWV, sStep, sTag, sCur0, sCur1, sNext, sKXo, sVXo, sKMo, sT0, sT1, sT2, sM0w = range(24, 38)
sC, sSpin, sXcc, sRank, sKXm = 44, 46, 47, 48, 49
sTb, sTa, sTg, sSent = 40, 41, 42, 43
sReady, sFlag, sProg = 38, 39, 27
sHw, sHr, sSt1 = 100, 101, 3
WS_HINT = WS_FLAG + 12288

def v(i, n=1): return f'v{i}' if n == 1 else f'v[{i}:{i+n-1}]'
def a_(i, n=1): return f'a{i}' if n == 1 else f'a[{i}:{i+n-1}]'
def s(i, n=1): return f's{i}' if n == 1 else f's[{i}:{i+n-1}]'

class Cnt:
    def __init__(self, A, name, mx): self.A, self.name, self.mx, self.n = A, name, mx, 0
    def issue(self, text):
        self.A(text); self.n += 1; return self.n
    def wait(self, tok):
        k = min(self.n - tok, self.mx)
        self.A(f's_waitcnt {self.name}({k})')
    def wait_all(self): self.A(f's_waitcnt {self.name}(0)')

def smf(A, d, a, b): A(f'v_smfmac_f32_16x16x64_bf16 {v(d,4)}, {v(a,4)}, {b}, {v(vIdx)}')

def ensure(A, tag, inline=False):
    A(f'''
    s_mov_b32 {s(sT2)}, 0
L_ens_{tag}:
    s_cmp_lt_u32 {s(sT1)}, {s(sReady)}
    s_cbranch_scc1 L_ensd_{tag}
    v_mbcnt_lo_u32_b32 {v(vT0)}, -1, 0
    v_mbcnt_hi_u32_b32 {v(vT0)}, -1, {v(vT0)}
    v_and_b32 {v(vT0)}, 15, {v(vT0)}
    v_lshlrev_b32 {v(vT0)}, 2, {v(vT0)}
    buffer_load_dword {v(vT1)}, {v(vT0)}, s[4:7], {s(sFlag)} offen sc0 sc1
    s_add_u32 {s(sT2)}, {s(sT2)}, 1
    s_cmp_lt_u32 {s(sT2)}, {SPIN_LIMIT}
    s_cbranch_scc0 L_rec_exit
    s_waitcnt vmcnt(0)
    v_and_b32 {v(vT1)}, 255, {v(vT1)}
    v_cmp_ne_u32 vcc, 2, {v(vT1)}
    s_or_b32 {s(sT0)}, vcc_lo, 0x10000
    s_ff1_i32_b32 {s(sReady)}, {s(sT0)}
    s_branch L_ens_{tag}
L_ensd_{tag}:
    ''')

def ln_signal(A, tag, younger):
    A(f'''
    s_waitcnt vmcnt({younger})
    s_barrier
    s_cmp_lg_u32 {s(sWV)}, 1
    s_cbranch_scc1 L_nosig_{tag}
    s_cmp_eq_u32 s75, 0x7ffffff0
    s_cbranch_scc1 L_nosig_{tag}
    s_mov_b32 {s(sSpin)}, 0
    s_branch L_sigc_{tag}
L_sigp_{tag}:
    buffer_load_dword v96, off, s[8:11], 0 offset:{D_FINIT} sc0 sc1
    s_add_u32 {s(sSpin)}, {s(sSpin)}, 1
    s_cmp_lt_u32 {s(sSpin)}, {SPIN_LIMIT}
    s_cbranch_scc0 L_rec_exit
    s_waitcnt vmcnt(0)
L_sigc_{tag}:
    v_readfirstlane_b32 {s(sT0)}, v96
    s_cmp_eq_u32 {s(sT0)}, 0
    s_cbranch_scc1 L_sigp_{tag}
    s_mov_b64 exec, 1
    buffer_atomic_add v96, v98, s[4:7], s75 offen
    s_mov_b64 exec, -1
L_nosig_{tag}:
    s_mov_b32 s75, 0x7ffffff0
    ''')

def gen_rec(name, nwg=256, dbg=False, nsteps=NSEG, dl=(30, 70, 60, 20, 20, 0, 1, 1, 30), fused=False):
    A = Asm()
    vL = 99
    import pre
    A(f'''
    s_cmp_ge_u32 s2, {nwg}
    s_cbranch_scc1 L_rec_exit
    {'s_memrealtime s[96:97]' if dbg or 'wt' in EXP else ''}
    s_load_dwordx4 s[52:55], s[0:1], 0
    s_load_dwordx8 s[16:23], s[0:1], 16
    s_load_dwordx4 s[36:39], s[0:1], 88
    s_load_dwordx2 s[50:51], s[0:1], 64
    v_lshrrev_b32 v1, 6, v0
    v_and_b32 {v(vL)}, 63, v0
    s_getreg_b32 {s(sXcc)}, hwreg(HW_REG_XCC_ID)
    v_readfirstlane_b32 {s(sWV)}, v1
    s_and_b32 {s(sXcc)}, {s(sXcc)}, 15
    {'s_add_u32 s47, s47, 1' if 'allslow' in EXP else ''}
    {'s_bfe_u32 s34, s2, 0x10003' if 'halfslow' in EXP else ''}
    {'s_add_u32 s47, s47, s34' if 'halfslow' in EXP else ''}
    ''')
    pre.ln_addr(A)
    A(f'''
    s_waitcnt lgkmcnt(0)
    {'s_mov_b32 s91, s96' if 'wt' in EXP else ''}
    s_mov_b32 s4, s38
    s_mov_b32 s5, s39
    s_mov_b32 s6, {WS_SIZE}
    s_mov_b32 s7, 0x20000
    s_mov_b32 s8, s36
    s_mov_b32 s9, s37
    s_mov_b32 s10, 256
    s_mov_b32 s11, 0x20000
    s_mov_b32 s12, s52
    s_mov_b32 s13, s53
    s_mov_b32 s14, 0x200000
    s_mov_b32 s15, 0x20000
    ''')
    pre.ln_load(A)
    A(f'''
    v_mov_b32 v98, 0
    v_mov_b32 v97, 32
    s_mov_b32 s74, 0
    s_or_b32 {s(sT0)}, {s(sWV)}, {s(sXcc)}
    s_cmp_lg_u32 {s(sT0)}, 0
    s_cbranch_scc1 L_el_skip
    s_mov_b32 s74, 1
    v_mov_b32 v97, 1
    s_mov_b64 exec, 1
    buffer_atomic_add v97, v98, s[8:11], 0 offen offset:{D_CLAIM} sc0
    s_mov_b64 exec, -1
L_el_skip:
    s_cmp_ge_u32 s2, 128
    s_cbranch_scc1 L_no_ln
    ''')
    pre.ln_compute(A)
    A(f'''
    buffer_load_dword v96, off, s[8:11], 0 offset:{D_FINIT} sc0 sc1
    s_lshr_b32 s75, s2, 3
    s_lshl_b32 s75, s75, 7
    s_add_u32 s75, s75, {worker.F_LN}
    s_branch L_sig
L_no_ln:
    s_waitcnt vmcnt(0)
    s_mov_b32 s75, 0x7ffffff0
    s_cmp_lg_u32 s2, 128
    s_cbranch_scc1 {'L_sig' if 'nopf' in EXP else 'L_pf'}
    v_lshlrev_b32 v5, 4, v0
    v_mov_b32 v8, 0
    v_mov_b32 v9, 0
    v_mov_b32 v10, 0
    v_mov_b32 v11, 0
    s_mov_b32 {s(sT0)}, {WS_FLAG}
    buffer_store_dwordx4 v[8:11], v5, s[4:7], {s(sT0)} offen sc1
    s_add_u32 {s(sT0)}, {s(sT0)}, 4096
    buffer_store_dwordx4 v[8:11], v5, s[4:7], {s(sT0)} offen sc1
    s_add_u32 {s(sT0)}, {s(sT0)}, 4096
    buffer_store_dwordx4 v[8:11], v5, s[4:7], {s(sT0)} offen sc1
    s_add_u32 {s(sT0)}, {s(sT0)}, 4096
    buffer_store_dwordx4 v[8:11], v5, s[4:7], {s(sT0)} offen sc1
    v_mov_b32 v12, 1
    s_waitcnt vmcnt(0)
    s_barrier
    buffer_store_dword v12, off, s[8:11], 0 offset:{D_FINIT} sc1
L_sig:
    s_cmp_lg_u32 {s(sXcc)}, 0
    s_cbranch_scc1 L_wk_entry
    s_waitcnt vmcnt(5)
    s_cmp_lg_u32 {s(sWV)}, 0
    s_cbranch_scc1 L_rec_elected
    v_mov_b32 v2, {LDS_MISC}
    s_mov_b64 exec, 1
    ds_write_b32 v2, v97
    s_mov_b64 exec, -1
    s_waitcnt lgkmcnt(0)
L_rec_elected:
    s_barrier
    v_mov_b32 v2, {LDS_MISC}
    ds_read_b32 v1, v2
    s_mov_b32 s14, 0x400000
    s_waitcnt lgkmcnt(0)
    v_readfirstlane_b32 {s(sRank)}, v1
    s_cmp_ge_u32 {s(sRank)}, 32
    s_cbranch_scc1 L_wk_entry
L_rec_start:
    s_and_b32 {s(sH)}, {s(sRank)}, 31
    ''')
    if dbg: A('s_memrealtime s[72:73]\ns_waitcnt lgkmcnt(0)\ns_sub_u32 s98, s72, s96')
    tG, tR, tC, tF, tRow, tD0, tD1, tO0, tO1, tTr0, tTr1, tTrO, tA, tN, t7, tX, tY = range(100, 117)
    A(f'''
    v_lshrrev_b32 {v(tG)}, 4, {v(vL)}
    v_bfe_u32 {v(tR)}, {v(vL)}, 2, 2
    v_and_b32 {v(tC)}, 3, {v(vL)}
    v_and_b32 {v(tF)}, 1, {v(tG)}
    v_lshl_or_b32 {v(tF)}, {v(tF)}, 2, {v(tR)}
    v_lshl_add_u32 {v(tRow)}, {v(tG)}, 4, {v(tR)}
    v_lshlrev_b32 {v(tRow)}, 8, {v(tRow)}
    v_lshl_add_u32 {v(tRow)}, {v(tC)}, 3, {v(tRow)}
    s_lshl_b32 {s(sT0)}, {s(sWV)}, 1
    v_xor_b32 {v(tTr0)}, {s(sT0)}, {v(tF)}
    v_lshl_add_u32 {v(tTr0)}, {v(tTr0)}, 5, {v(tRow)}
    s_or_b32 {s(sT0)}, {s(sT0)}, 1
    v_xor_b32 {v(tTr1)}, {s(sT0)}, {v(tF)}
    v_lshl_add_u32 {v(tTr1)}, {v(tTr1)}, 5, {v(tRow)}
    s_lshl_b32 {s(sM0w)}, {s(sWV)}, 15
    v_add_u32 {v(tTrO)}, {s(sM0w)}, {v(tRow)}
    v_and_b32 {v(tN)}, 15, {v(vL)}
    v_lshlrev_b32 {v(vT1)}, 1, {v(tG)}
    v_xor_b32 {v(vT0)}, {v(tN)}, {v(vT1)}
    v_lshlrev_b32 {v(vT0)}, 4, {v(vT0)}
    v_xor_b32 {v(vT1)}, 0x80, {v(vT0)}
    v_lshrrev_b32 {v(vT2)}, 1, {v(tG)}
    v_and_b32 {v(vT3)}, 1, {v(tG)}
    ; D-type: (2*j1 + 16*j0)*8192 + h*256 + 128*w*8192
    v_lshlrev_b32 {v(tX)}, 14, {v(vT2)}
    v_lshl_add_u32 {v(tX)}, {v(vT3)}, 17, {v(tX)}
    s_lshl_b32 {s(sT0)}, {s(sWV)}, 20
    s_lshl_b32 {s(sT1)}, {s(sH)}, 8
    s_add_u32 {s(sT0)}, {s(sT0)}, {s(sT1)}
    v_add_u32 {v(tX)}, {s(sT0)}, {v(tX)}
    v_add_u32 {v(tD0)}, {v(tX)}, {v(vT0)}
    v_add_u32 {v(tD1)}, {v(tX)}, {v(vT1)}
    ; O-type: (32*j1 + j0)*1024 + h*131072 + w*256
    v_lshlrev_b32 {v(tX)}, 15, {v(vT2)}
    v_lshl_add_u32 {v(tX)}, {v(vT3)}, 10, {v(tX)}
    s_lshl_b32 {s(sT0)}, {s(sH)}, 17
    s_lshl_b32 {s(sT1)}, {s(sWV)}, 8
    s_add_u32 {s(sT0)}, {s(sT0)}, {s(sT1)}
    v_add_u32 {v(tX)}, {s(sT0)}, {v(tX)}
    v_add_u32 {v(tO0)}, {v(tX)}, {v(vT0)}
    v_add_u32 {v(tO1)}, {v(tX)}, {v(vT1)}
    ''')
    units = [('q', 0), ('q', 1), ('v', 0), ('v', 1), ('k', 0), ('o', 0), ('k', 1), ('o', 1)]
    PT = {'q': 16, 'k': 18, 'v': 20, 'o': 22}
    def dma_unit(u):
        mat, hi = units[u]; reg = (REG_A, REG_B)[u & 1]
        A(f's_mov_b32 s12, s{PT[mat]}\ns_mov_b32 s13, s{PT[mat]+1}')
        for ii in range(16):
            gb, j = ii >> 2, (ii & 3) * 4
            if mat == 'o': so = e_of(hi, gb, j) * 1024; vo = (tO0, tO1)[gb & 1]
            else: so = (d_of(0, gb, j) + 64 * hi) * 8192; vo = (tD0, tD1)[gb & 1]
            A(f's_add_u32 m0, {s(sM0w)}, {reg + ii * 1024}')
            A(f's_mov_b32 {s(sT0)}, {so}')
            A(f'buffer_load_dwordx4 {v(vo)}, s[12:15], {s(sT0)} offen lds')
    TMPF = 28
    def dest(u, f):
        mat, hi = units[u]
        if u >= 6: return ('v', TMPF + f * 8)
        if mat == 'q': return ('a', (hi * 8 + f) * 8)
        if mat == 'v': return ('a', 128 + (hi * 8 + f) * 8)
        if mat == 'k': return ('v', WK0 + f * 8)
        return ('v', WO0 + f * 8)
    def read_unit(u):
        mat, hi = units[u]; reg = (REG_A, REG_B)[u & 1]
        for f in range(8):
            if mat == 'o':
                A(f'v_xor_b32 {v(tA)}, {f}, {v(tF)}')
                A(f'v_lshl_add_u32 {v(tA)}, {v(tA)}, 5, {v(tTrO)}')
                A(f'v_add_u32 {v(tA)}, {reg}, {v(tA)}')
            else:
                lam, tt = f >> 1, f & 1
                A(f's_xor_b32 {s(sT0)}, {s(sWV)}, {lam}')
                A(f's_lshl_b32 {s(sT0)}, {s(sT0)}, 15')
                A(f's_add_u32 {s(sT0)}, {s(sT0)}, {reg}')
                A(f'v_add_u32 {v(tA)}, {s(sT0)}, {v((tTr0, tTr1)[tt])}')
            fl, d = dest(u, f)
            for t in range(4):
                A(f'ds_read_b64_tr_b16 {fl}[{d+2*t}:{d+2*t+1}], {v(tA)} offset:{t*1024}')
    A('s_cmp_eq_u32 s75, 0x7ffffff0\ns_cbranch_scc1 L_skipsig')
    ln_signal(A, 'r', 0)
    A.label('L_skipsig')
    dma_unit(0); dma_unit(1)
    A(f'''
    v_lshlrev_b32 {v(vT0)}, 4, {v(vL)}
    v_and_b32 {v(vT1)}, 1, {v(vL)}
    v_mov_b32 {v(vIdx)}, 0xffff4444
    v_mov_b32 {v(vT2)}, 0xffffeeee
    v_cmp_ne_u32 vcc, 0, {v(vT1)}
    v_cndmask_b32 {v(vIdx)}, {v(vIdx)}, {v(vT2)}, vcc
    s_lshl_b32 {s(sT0)}, {s(sWV)}, 10
    v_add_u32 {v(vMw)}, {s(sT0)}, {v(vT0)}
    s_add_u32 {s(sT1)}, {s(sM0w)}, {REG_A}
    v_add_u32 {v(vWkL)}, {s(sT1)}, {v(vT0)}
    v_add_u32 {v(vKXr)}, {LDS_KX}, {v(vT0)}
    v_and_b32 {v(t7)}, 7, {v(vL)}
    s_lshl_b32 {s(sT1)}, {s(sWV)}, 6
    v_mul_u32_u24 {v(vXQw)}, {4*XQP}, {v(tG)}
    v_lshl_add_u32 {v(vXQw)}, {v(tN)}, 2, {v(vXQw)}
    s_add_u32 {s(sT2)}, {s(sT1)}, {LDS_XQ}
    v_add_u32 {v(vXQw)}, {s(sT2)}, {v(vXQw)}
    v_mul_u32_u24 {v(vXQr)}, {2*XQP}, {v(t7)}
    v_lshl_add_u32 {v(vXQr)}, {v(tG)}, 4, {v(vXQr)}
    v_add_u32 {v(vXQr)}, {LDS_XQ}, {v(vXQr)}
    v_lshrrev_b32 {v(tX)}, 2, {v(tN)}
    v_lshl_add_u32 {v(tX)}, {v(tX)}, 1, {v(vT1)}
    v_mul_u32_u24 {v(vXKr)}, {2*XQP}, {v(tX)}
    v_lshl_add_u32 {v(vXKr)}, {v(tG)}, 4, {v(vXKr)}
    v_add_u32 {v(vXKr)}, {LDS_XQ + XQP}, {v(vXKr)}
    v_mul_u32_u24 {v(vXOw)}, {XOP}, {v(t7)}
    v_lshl_add_u32 {v(vXOw)}, {v(tG)}, 4, {v(vXOw)}
    s_add_u32 {s(sT2)}, {s(sT1)}, {LDS_XO}
    v_add_u32 {v(vXOw)}, {s(sT2)}, {v(vXOw)}
    v_lshrrev_b32 {v(tX)}, 1, {v(tN)}
    v_mul_u32_u24 {v(vXOr)}, {XOP}, {v(tX)}
    v_lshl_add_u32 {v(vXOr)}, {v(tG)}, 4, {v(vXOr)}
    v_lshl_add_u32 {v(vXOr)}, {v(vT1)}, 6, {v(vXOr)}
    v_add_u32 {v(vXOr)}, {LDS_XO}, {v(vXOr)}
    v_xor_b32 {v(vMr1)}, 1024, {v(vMw)}
    v_xor_b32 {v(vMr2)}, 2048, {v(vMw)}
    v_mov_b32 {v(vMask)}, 0xfffe0000
    v_lshlrev_b32 {v(vVXg)}, 6, {v(tN)}
    v_lshl_add_u32 {v(vVXg)}, {v(tG)}, 4, {v(vVXg)}
    s_lshl_b32 {s(sT2)}, {s(sH)}, 13
    s_lshl_b32 {s(sT0)}, {s(sWV)}, 11
    s_add_u32 {s(sT2)}, {s(sT2)}, {s(sT0)}
    s_add_u32 {s(sT2)}, {s(sT2)}, {WS_VT}
    v_add_u32 {v(vVXg)}, {s(sT2)}, {v(vVXg)}
    v_lshrrev_b32 {v(vPs)}, 2, {v(tN)}
    v_lshlrev_b32 {v(vPs)}, 14, {v(vPs)}
    v_lshrrev_b32 {v(tX)}, 5, {v(vL)}
    v_lshl_add_u32 {v(vPs)}, {v(tX)}, 13, {v(vPs)}
    v_and_b32 {v(tX)}, 1, {v(tG)}
    v_lshl_add_u32 {v(vPs)}, {v(tX)}, {6 if 'pl3' in EXP else 11}, {v(vPs)}
    v_lshl_add_u32 {v(vPs)}, {v(tC)}, 4, {v(vPs)}
    s_lshl_b32 {s(sT2)}, {s(sWV)}, 16
    s_lshl_b32 {s(sT0)}, {s(sH)}, {7 if 'pl3' in EXP else 6}
    s_add_u32 {s(sT2)}, {s(sT2)}, {s(sT0)}
    s_add_u32 {s(sT2)}, {s(sT2)}, {WS_PART}
    v_add_u32 {v(vPs)}, {s(sT2)}, {v(vPs)}
    v_lshlrev_b32 {v(vPl)}, {7 if 'pl3' in EXP else 6}, {v(tR)}
    v_lshl_add_u32 {v(vPl)}, {v(tG)}, {9 if 'pl3' in EXP else 8}, {v(vPl)}
    v_lshl_add_u32 {v(vPl)}, {v(tC)}, 4, {v(vPl)}
    s_lshl_b32 {s(sT2)}, {s(sH)}, 13
    s_lshl_b32 {s(sT0)}, {s(sWV)}, 11
    {'s_and_b32 s34, s34, 4096' if 'pl3' in EXP else ''}
    {'s_add_u32 s36, s36, s34' if 'pl3' in EXP else ''}
    {'s_and_b32 s34, s25, 1' if 'pl3' in EXP else ''}
    {'s_lshl_b32 s34, s34, 6' if 'pl3' in EXP else ''}
    s_add_u32 {s(sT2)}, {s(sT2)}, {s(sT0)}
    s_add_u32 {s(sT2)}, {s(sT2)}, {WS_PART}
    v_add_u32 {v(vPl)}, {s(sT2)}, {v(vPl)}
    v_bfe_u32 {v(vMs)}, {v(vL)}, 2, 1
    v_lshlrev_b32 {v(vMs)}, 5, {v(vMs)}
    v_lshl_add_u32 {v(vMs)}, {v(tG)}, 3, {v(vMs)}
    v_bfe_u32 {v(tX)}, {v(vL)}, 1, 1
    v_lshl_add_u32 {v(vMs)}, {v(tX)}, 2, {v(vMs)}
    s_lshl_b32 {s(sT2)}, {s(sH)}, 7
    s_lshr_b32 {s(sT0)}, {s(sWV)}, 1
    s_lshl_b32 {s(sT0)}, {s(sT0)}, 12
    s_add_u32 {s(sT2)}, {s(sT2)}, {s(sT0)}
    s_and_b32 {s(sT0)}, {s(sWV)}, 1
    s_lshl_b32 {s(sT0)}, {s(sT0)}, 6
    s_add_u32 {s(sT2)}, {s(sT2)}, {s(sT0)}
    v_add_u32 {v(vMs)}, {s(sT2)}, {v(vMs)}
    v_and_b32 {v(tX)}, 9, {v(vL)}
    v_cmp_ne_u32 vcc, 0, {v(tX)}
    v_mov_b32 {v(tX)}, 0x7ffffff0
    v_cndmask_b32 {v(vMs)}, {v(vMs)}, {v(tX)}, vcc
    ; SEL[d] = ((l&7)>>1 == d) ? ((l&1) ? 0x3f800000 : 0x00003f80) : 0
    v_lshlrev_b32 {v(tX)}, 4, {v(vT1)}
    v_mov_b32 {v(tY)}, 0x3f80
    v_lshlrev_b32 {v(tY)}, {v(tX)}, {v(tY)}
    v_lshrrev_b32 {v(tX)}, 1, {v(t7)}
    v_cmp_eq_u32 vcc, 0, {v(tX)}
    v_cndmask_b32 {v(SEL)}, 0, {v(tY)}, vcc
    v_cmp_eq_u32 vcc, 1, {v(tX)}
    v_cndmask_b32 {v(SEL+1)}, 0, {v(tY)}, vcc
    v_cmp_eq_u32 vcc, 2, {v(tX)}
    v_cndmask_b32 {v(SEL+2)}, 0, {v(tY)}, vcc
    v_cmp_eq_u32 vcc, 3, {v(tX)}
    v_cndmask_b32 {v(SEL+3)}, 0, {v(tY)}, vcc
    s_mov_b32 {s(sC)}, {f2u(SM_C)}
    s_mov_b32 {s(sSent)}, 0xfffeffff
    s_mov_b32 {s(sC+1)}, {f2u(SM_C)}
    v_mov_b32 {v(ONES)}, 0x3f803f80
    v_mov_b32 {v(ONES+1)}, 0x3f803f80
    v_mov_b32 {v(ONES+2)}, 0x3f803f80
    v_mov_b32 {v(ONES+3)}, 0x3f803f80
    ''')
    A(f'''
    s_mov_b32 s56, s54
    s_mov_b32 s57, s55
    s_mov_b32 s58, 8192
    s_mov_b32 s59, 0x20000
    v_bfe_u32 {v(tX)}, {v(vL)}, 1, 1
    v_lshl_add_u32 {v(tX)}, {v(tX)}, 5, {v(tG)}
    v_bfe_u32 {v(tY)}, {v(vL)}, 2, 1
    v_lshl_add_u32 {v(tX)}, {v(tY)}, 9, {v(tX)}
    v_lshlrev_b32 {v(tX)}, 1, {v(tX)}
    s_lshr_b32 {s(sT0)}, {s(sH)}, 3
    s_lshl_b32 {s(sT0)}, {s(sT0)}, 8
    s_lshr_b32 {s(sT1)}, {s(sWV)}, 1
    s_lshl_b32 {s(sT1)}, {s(sT1)}, 7
    s_add_u32 {s(sT0)}, {s(sT0)}, {s(sT1)}
    s_bfe_u32 {s(sT1)}, {s(sH)}, 0x20001
    s_lshl_b32 {s(sT1)}, {s(sT1)}, 3
    s_add_u32 {s(sT0)}, {s(sT0)}, {s(sT1)}
    s_and_b32 {s(sT1)}, {s(sH)}, 1
    s_lshl_b32 {s(sT1)}, {s(sT1)}, 12
    s_add_u32 {s(sT0)}, {s(sT0)}, {s(sT1)}
    s_and_b32 {s(sT1)}, {s(sWV)}, 1
    s_lshl_b32 {s(sT1)}, {s(sT1)}, 11
    s_add_u32 {s(sT0)}, {s(sT0)}, {s(sT1)}
    buffer_load_ushort v92, {v(tX)}, s[56:59], {s(sT0)} offen
    buffer_load_ushort v93, {v(tX)}, s[56:59], {s(sT0)} offen offset:32
    v_mov_b32 v120, -1
    v_mov_b32 v121, -1
    v_mov_b32 v122, -1
    v_mov_b32 v123, -1
    s_mov_b32 {s(sT1)}, {WS_MF + 8192}
    buffer_store_dwordx4 v[120:123], {v(vPl)}, s[4:7], 0 offen sc1
    buffer_store_dwordx4 v[120:123], {v(vPl)}, s[4:7], 0 offen offset:{2048 if 'pl3' in EXP else 1024} sc1
    buffer_store_dword v120, {v(vMs)}, s[4:7], {s(sT1)} offen sc1
    ''')
    for u in range(8):
        if u == 2:
            A(f'''
            v_lshl_or_b32 v92, v93, 16, v92
            v_min_u32 v92, {s(sSent)}, v92
            s_mov_b32 {s(sT1)}, {WS_MF}
            buffer_store_dword v92, {v(vMs)}, s[4:7], {s(sT1)} offen sc1
            ''')
        if u == 4:
            A(f'''
            s_cmp_lg_u32 {s(sWV)}, 0
            s_cbranch_scc1 L_nori
            v_mov_b32 v92, 1
            v_mov_b32 v93, 0
            s_mov_b64 exec, 1
            buffer_atomic_add v92, v93, s[8:11], 0 offen offset:{D_RINIT}
            s_mov_b64 exec, -1
L_nori:
            ''')
        A(f's_waitcnt vmcnt({21 if u == 0 else 0 if u == 7 else 16})')
        A('s_barrier')
        read_unit(u)
        A('s_waitcnt lgkmcnt(0)')
        A('s_barrier')
        if u + 2 < 8: dma_unit(u + 2)
        if u >= 6:
            for f in range(8):
                for hf in range(2):
                    A(f'ds_write_b128 {v(vWkL)}, {v(TMPF + f*8 + hf*4, 4)} offset:{(u-6)*16384 + f*2048 + hf*1024}')
            A('s_waitcnt lgkmcnt(0)')
    if dbg: A('s_memrealtime s[72:73]\ns_waitcnt lgkmcnt(0)\ns_sub_u32 s99, s72, s96')
    A(f'''
    s_mov_b32 {s(sStep)}, 0
    s_mov_b32 {s(sTg)}, 0
    s_mov_b32 {s(sTb)}, 0
    s_mov_b32 {s(sTa)}, 0x10000
    s_mov_b32 {s(sCur0)}, {WS_MF}
    s_mov_b32 {s(sCur1)}, {WS_MF + 4096}
    s_mov_b32 {s(sNext)}, {WS_MF + 8192}
    s_lshl_b32 {s(sKXo)}, {s(sH)}, 12
    s_add_u32 {s(sKMo)}, {s(sKXo)}, {WS_KM}
    s_add_u32 {s(sKXo)}, {s(sKXo)}, {WS_K}
    s_mov_b32 {s(sVXo)}, 0
    s_lshl_b32 {s(sKXm)}, {s(sWV)}, 10
    s_add_u32 {s(sKXm)}, {s(sKXm)}, {LDS_KX}
    s_mov_b32 {s(sReady)}, {0 if fused else 16}
    s_lshr_b32 {s(sFlag)}, {s(sH)}, 1
    s_lshl_b32 {s(sFlag)}, {s(sFlag)}, 6
    s_add_u32 {s(sFlag)}, {s(sFlag)}, {WS_FLAG}
    s_lshl_b32 {s(sProg)}, {s(sH)}, 7
    s_add_u32 {s(sProg)}, {s(sProg)}, {worker.F_PROG}
    s_cmp_eq_u32 {s(sWV)}, 0
    s_cselect_b32 {s(sProg)}, {s(sProg)}, 0x7ffffff0
    s_lshl_b32 {s(sHw)}, {s(sH)}, 2
    s_add_u32 {s(sHw)}, {s(sHw)}, {WS_HINT}
    s_cmp_eq_u32 {s(sWV)}, 0
    s_cselect_b32 {s(sHw)}, {s(sHw)}, 0x7ffffff0
    s_lshl_b32 {s(sHr)}, {s(sH)}, 7
    s_add_u32 {s(sHr)}, {s(sHr)}, {WS_HINT}
    {'s_mov_b32 s101, 4096' if 'pl2' in EXP else ''}
    ''')
    A(f'''
    v_mov_b32 {v(vT0)}, 0
    s_mov_b32 {s(sSpin)}, 0
L_ri_poll:
    buffer_load_dwordx3 {v(MF,3)}, {v(vT0)}, s[8:11], 0 offen offset:{D_CLAIM} sc0 sc1
    buffer_load_dword {v(MF+3)}, {v(vT0)}, s[8:11], 0 offen offset:{D_FINIT} sc0 sc1
    s_add_u32 {s(sSpin)}, {s(sSpin)}, 1
    s_cmp_lt_u32 {s(sSpin)}, {SPIN_LIMIT}
    s_cbranch_scc0 L_rec_exit
    s_waitcnt vmcnt(0)
    v_readfirstlane_b32 {s(sT0)}, {v(MF+2)}
    v_readfirstlane_b32 {s(sT1)}, {v(MF+3)}
    v_readfirstlane_b32 {s(sRank)}, {v(MF+1)}
    s_cmp_lt_u32 {s(sT0)}, 32
    s_cbranch_scc1 L_ri_poll
    s_cmp_lt_u32 {s(sT1)}, 1
    s_cbranch_scc1 L_ri_poll
    s_mov_b32 {s(sT1)}, 0
    ''')
    ensure(A, 'p', inline=True)
    A(f'''
    s_mov_b32 m0, {s(sKXm)}
    s_add_u32 {s(sT0)}, {s(sKXo)}, {16*8192}
    buffer_load_dwordx4 {v(vMw)}, s[4:7], {s(sKXo)} offen sc1 lds
    s_add_u32 m0, {s(sKXm)}, 4096
    s_nop 0
    buffer_load_dwordx4 {v(vMw)}, s[4:7], {s(sT0)} offen sc1 lds
    s_add_u32 {s(sKXo)}, {s(sKXo)}, {32*8192}
    s_xor_b32 {s(sKXm)}, {s(sKXm)}, {LDS_KX ^ (LDS_KX + 8192)}
    ''')
    if dbg:
        for i in range(76, 90): A(f's_mov_b32 s{i}, 0')
        A('s_memrealtime s[92:93]\ns_memtime s[94:95]\ns_waitcnt lgkmcnt(0)\ns_mov_b32 s90, s92\ns_mov_b32 s91, s94\ns_sub_u32 s97, s92, s96')
    A(f'''
    s_cmp_lg_u32 {s(sRank)}, 0
    s_cbranch_scc1 L_rec_slow_entry
    ''')
    gen_loop(A, 'f', '', dbg, nsteps, dl)
    A.label('L_rec_slow_entry')
    gen_loop(A, 's', ' sc1', dbg, nsteps, dl)
    A.label('L_rec_fin')
    worker.tstamp(A, 6)
    if 'st' in EXP: A(f'buffer_store_dwordx4 {v(SP,4)}, {v(vMw)}, s[4:7], {s(sKMo)} offen sc1')
    A(f'v_mov_b32 {v(vT0)}, {nsteps}\ns_waitcnt vmcnt(0)\ns_barrier\nbuffer_store_dword {v(vT0)}, off, s[4:7], {s(sProg)} sc1')
    worker.tstamp(A, 7)
    if dbg:
        A(f'''
        s_memrealtime s[92:93]
        s_memtime s[94:95]
        s_waitcnt lgkmcnt(0)
        s_sub_u32 s90, s92, s90
        s_sub_u32 s91, s94, s91
        s_lshl_b32 {s(sT0)}, {s(sH)}, 2
        s_add_u32 {s(sT0)}, {s(sT0)}, {s(sWV)}
        s_lshl_b32 {s(sT0)}, {s(sT0)}, 6
        s_add_u32 {s(sT0)}, {s(sT0)}, {WS_DBG}
        v_mov_b32 v30, 0
        ''')
        A('s_lshr_b32 s98, s98, 2\ns_lshr_b32 s99, s99, 2\ns_lshl_b32 s98, s98, 20\ns_lshl_b32 s99, s99, 10\ns_or_b32 s87, s98, s99\ns_lshr_b32 s97, s97, 2\ns_or_b32 s87, s87, s97')
        if dbg == 2: A('s_mov_b32 s87, s74')
        for i in range(16):
            A(f'v_mov_b32 v31, s{76+i}\nbuffer_store_dword v31, v30, s[4:7], {s(sT0)} offen offset:{4*i}')
    A.label('L_rec_exit')
    A('s_endpgm')
    A(f'''
L_pf:
    s_cmp_eq_u32 {s(sXcc)}, 0
    s_cbranch_scc1 L_sig
    s_bfe_u32 {s(sT0)}, s2, 0x20005
    s_mov_b32 s12, s16
    s_mov_b32 s13, s17
    s_cmp_eq_u32 {s(sT0)}, 1
    s_cselect_b32 s12, s18, s12
    s_cselect_b32 s13, s19, s13
    s_cmp_eq_u32 {s(sT0)}, 2
    s_cselect_b32 s12, s20, s12
    s_cselect_b32 s13, s21, s13
    s_cmp_eq_u32 {s(sT0)}, 3
    s_cselect_b32 s12, s22, s12
    s_cselect_b32 s13, s23, s13
    s_mov_b32 s14, 0x400000
    s_and_b32 {s(sT0)}, s2, 31
    s_lshl_b32 {s(sT0)}, {s(sT0)}, 17
    v_lshlrev_b32 v5, 4, v0
    ''')
    for i in range(32):
        A(f'buffer_load_dwordx4 v[{8 + 4*(i%8)}:{11 + 4*(i%8)}], v5, s[12:15], {s(sT0)} offen\ns_add_u32 {s(sT0)}, {s(sT0)}, 4096')
    A.label('L_wk_entry')
    ln_signal(A, 'w', 0)
    if not fused: A('s_endpgm')
    if fused: worker.gen_worker(A, sWV, sXcc, sRank, vL, D_FINIT, D_CLAIM, D_SLOW)
    return kernel_head(name) + A.finalize(), kernel_desc(name, 512, 102, 256)

def gen_loop(A, sfx, stf, dbg, nsteps, dl):
    d1a, d1b, d2a, d2b, ps, nd, e2, e3, ef = dl
    L = Cnt(A, 'lgkmcnt', 15); V = Cnt(A, 'vmcnt', 63)
    def stamp(i):
        if dbg: A(f's_mem{"real" if dbg == 2 else ""}time s[{52+2*i}:{53+2*i}]')
    def delay(n):
        if n > 0: A.comment('poll back-off: give the hand-off time to land (an early poll costs a full extra round trip)')
        while n > 0:
            k = min(n, 16); A(f's_nop {k-1}'); n -= k
    def wdelay(tag, na, nb):
        delay(min(na, nb))
        if na != nb:
            A(f's_cmp_lt_u32 {s(sWV)}, 2\ns_cbranch_scc{1 if na < nb else 0} L_wd{tag}_{sfx}')
            delay(abs(na - nb))
            A.label(f'L_wd{tag}_{sfx}')
    def zero(base, n):
        for i in range(0, n, 2): A(f'v_mov_b64 {v(base+i,2)}, 0')
    def ring_prefetch():
        for f in range(4):
            for hf in range(2):
                L.issue(f'ds_read_b128 {v(RING + f*8 + hf*4, 4)}, {v(vWkL)} offset:{f*2048 + hf*1024}')
    GA = (MF, VX, VX + 4)
    GB = (MF + 16, VX, VX + 4)
    RS = (MF + 20, MF + 4, MF + 12)
    sF = 50
    def gatherA(k=0): return V.issue(f'buffer_load_dwordx4 {v(GA[k],4)}, {v(vMw)}, s[4:7], {s(sCur0)} offen sc1')
    def gatherB(k=0): return V.issue(f'buffer_load_dwordx4 {v(GB[k],4)}, {v(vMw)}, s[4:7], {s(sCur1)} offen sc1')
    def poll_tail(tag, per, sets, nreg, issue, check, finish, blind=0):
        A.label(f'L_{tag}f0_{sfx}')
        A(f's_mov_b64 exec, vcc\ns_mov_b64 {s(sF,2)}, vcc')
        if blind == 0: issue(1); delay(ps)
        if blind <= 1: issue(2)
        A.label(f'L_{tag}l_{sfx}')
        for k in (1, 2):
            A(f's_add_u32 {s(sSpin)}, {s(sSpin)}, 1')
            A(f's_waitcnt vmcnt({per})')
            check(k)
            A(f's_andn2_b64 exec, {s(sF,2)}, vcc')
            for i in range(0, nreg, 2): A(f'v_mov_b64 {v(sets[0]+i,2)}, {v(sets[k]+i,2)}')
            A(f's_and_b64 {s(sF,2)}, {s(sF,2)}, vcc')
            A(f's_cbranch_scc0 L_{tag}d_{sfx}')
            A(f's_mov_b64 exec, {s(sF,2)}')
            issue(k)
        A(f's_cmp_lt_u32 {s(sSpin)}, {SPIN_LIMIT}\ns_cbranch_scc1 L_{tag}l_{sfx}\ns_endpgm')
        A.label(f'L_{tag}d_{sfx}')
        A('s_mov_b64 exec, -1')
        finish()
    def add(d, x, y): A(f'v_add_f32 {v(d)}, {v(x)}, {v(y)}')
    def cvt(d, x, y): A(f'v_cvt_pk_bf16_f32 {v(d)}, {v(x)}, {v(y)}')
    def wq(o, tt): return a_((o * 2 + tt) * 8, 8)
    def wv(o, tt): return a_(128 + (o * 2 + tt) * 8, 8)
    def wk(o, tt):
        lam, hi = o & 3, o >> 2
        return v(WK0 + (lam * 2 + tt) * 8, 8) if hi == 0 else v(RING + ((lam * 2 + tt) & 3) * 8, 8)
    QA, KA, VA = (Q0, Q1), (K0, K1), (V0, V1)
    def mq(o, tt): smf(A, QA[tt], MF + 4 * o, wq(o, tt))
    def mk(o, tt): smf(A, KA[tt], MF + 4 * o, wk(o, tt))
    def mv(o, tt): smf(A, VA[tt], MF + 4 * o, wv(o, tt))
    def chkA(k=0): A(f'v_cmp_lt_u32 vcc, {s(sSent)}, {v(GA[k])}')
    def chkB(k=0): A(f'v_cmp_lt_u32 vcc, {s(sSent)}, {v(GB[k])}')
    ring_prefetch(); zero(ACC, 24)
    A(f's_mov_b32 {s(sSpin)}, 0')
    LIN = 'lin' in EXP
    ordA = ([1, 2][:e3] + [0]) if LIN else list(range(e3 + 1))
    ordR = ([1, 2][:e2] + [0]) if LIN else list(range(e2 + 1))
    for k in ordA: gatherA(k)
    if nd == 2: gatherB()
    A.label(f'L_loop_{sfx}')
    if LIN:
        for n, k in enumerate(ordA[:-1]):
            A(f's_waitcnt vmcnt({e3 - n})')
            chkA(k)
            A(f'ds_write_b128 {v(vMw)}, {v(GA[k],4)}')
            A(f'v_mov_b64 {v(MF+2,2)}, {v(GA[k]+2,2)}\nv_mov_b64 {v(MF,2)}, {v(GA[k],2)}')
            A(f's_cbranch_vccz L_aok_{sfx}')
    A(f's_waitcnt vmcnt({0 if LIN else e3 + (nd == 2)})')
    chkA()
    L.issue(f'ds_write_b128 {v(vMw)}, {v(MF,4)}')
    A(f's_cbranch_vccnz L_af0_{sfx}')
    A.label(f'L_aok_{sfx}')
    if nd == 0: gatherB()
    stamp(0)
    mq(0, 0)
    A(f'v_xor_b32 {v(vT3)}, 3072, {v(vMw)}')
    mk(0, 0); mq(0, 1)
    if 'a3' not in EXP: mk(0, 1)
    if 'a5' in EXP: mv(0, 0)
    L.wait_all()
    A('s_barrier')
    stamp(1)
    MR = {1: vMr1, 2: vMr2, 3: vT3}
    mft = {}
    def mfread(o):
        lam, hi = o & 3, o >> 2
        mft[o] = L.issue(f'ds_read_b128 {v(MF + 4*o, 4)}, {v(MR[lam])} offset:{hi*4096}')
    mfread(1); mfread(2); mfread(3)
    if 'a3' in EXP: mk(0, 1)
    if 'a5' not in EXP: mv(0, 0)
    if nd == 1: gatherB()
    mv(0, 1)
    L.wait(mft[1])
    mq(1, 0); mk(1, 0); mq(1, 1); mk(1, 1)
    VL = [(o, t) for o in range(8) for t in range(2)][2:]
    def nv():
        if VL: mv(*VL.pop(0))
    nvb = next((int(e[2:]) for e in EXP if e.startswith('vb')), 0)
    nvc = next((int(e[2:]) for e in EXP if e.startswith('vc')), 0)
    early = 'be' in EXP
    L.wait(mft[2])
    mq(2, 0); mk(2, 0)
    if not early: mq(2, 1); mk(2, 1)
    L.wait_all()
    for _ in range(nvb): nv()
    if not early: mq(3, 0)
    if nd == 1: mk(3, 0); mq(3, 1); mk(3, 1)
    A('s_waitcnt vmcnt(0)')
    chkB()
    L.issue(f'ds_write_b128 {v(vMw)}, {v(MF+16,4)} offset:4096')
    A(f's_cbranch_vccnz L_bf0_{sfx}')
    A.label(f'L_bok_{sfx}')
    if dbg == 1: A(f's_add_u32 s88, s88, {s(sSpin)}')
    if dbg == 2: stamp(2)
    if early: mq(2, 1); mk(2, 1); mq(3, 0); mk(3, 0)
    else: mk(3, 0); mq(3, 1); mk(3, 1); mq(4, 0)
    L.wait_all()
    A('s_barrier')
    rt = {}
    def refill(lam, tt, hf):
        f = lam * 2 + tt
        rt[(lam, tt)] = L.issue(f'ds_read_b128 {v(RING + (f & 3)*8 + hf*4, 4)}, {v(vWkL)} offset:{f*2048 + hf*1024}')
    kxt = {}
    def kxload(i):
        kxt[i] = L.issue(f'ds_read_b128 {v(RING + 4*i, 4)}, {v(vKXr)} offset:{i*1024}')
    mfread(5); mfread(6); mfread(7)
    if early: mq(3, 1); mk(3, 1); mq(4, 0)
    mk(4, 0); refill(2, 0, 0)
    mq(4, 1); refill(2, 0, 1)
    mk(4, 1); refill(2, 1, 0)
    for _ in range(nvc): nv()
    refill(2, 1, 1)
    V.issue(f'buffer_store_dword {v(vIdx)}, {v(vMs)}, s[4:7], {s(sNext)} offen{stf}')
    if 'nog1' not in EXP:
        L.wait(mft[5])
        mk(5, 0); refill(3, 0, 0)
        mk(5, 1); refill(3, 0, 1)
        mq(5, 0); refill(3, 1, 0)
        mq(5, 1); refill(3, 1, 1)
        V.issue(f'buffer_load_dwordx4 {v(VX,4)}, {v(vVXg)}, s[4:7], {s(sVXo)} offen sc1')
        L.wait(rt[(2, 1)])
        mk(6, 0); kxload(0)
        mk(6, 1); kxload(1)
        mq(6, 0); kxload(2)
        L.wait(rt[(3, 1)])
        mk(7, 0); kxload(3)
        mk(7, 1); kxload(4)
        mq(7, 0); kxload(5)
        tvx = V.issue(f'buffer_load_dwordx4 {v(VX+4,4)}, {v(vVXg)}, s[4:7], {s(sVXo)} offen offset:1024 sc1')
        mq(6, 1); kxload(6); add(K0, K0, K0 + 1)
        mq(7, 1); kxload(7)
        if dbg != 2: stamp(2)
        add(K0 + 1, K0 + 2, K0 + 3)
        add(K1, K1, K1 + 1); add(K1 + 1, K1 + 2, K1 + 3)
        add(Q0, Q0, Q0 + 1); add(Q0 + 1, Q0 + 2, Q0 + 3)
        cvt(SP + 1, K0, K1); cvt(SP + 3, K0 + 1, K1 + 1)
        add(Q1, Q1, Q1 + 1); add(Q1 + 1, Q1 + 2, Q1 + 3)
        cvt(vT0, Q0, Q1); cvt(vT1, Q0 + 1, Q1 + 1)
        L.issue(f'ds_write2_b32 {v(vXQw)}, {v(vT0)}, {v(vT1)} offset0:0 offset1:{2*XQP//4}')
        L.issue(f'ds_write2_b32 {v(vXQw)}, {v(SP+1)}, {v(SP+3)} offset0:{XQP//4} offset1:{3*XQP//4}')
    else:
        L.wait(mft[5])
        mq(5, 0)
        V.issue(f'buffer_load_dwordx4 {v(VX,4)}, {v(vVXg)}, s[4:7], {s(sVXo)} offen sc1')
        mk(5, 0); refill(3, 0, 0)
        mq(5, 1); refill(3, 0, 1)
        mk(5, 1); refill(3, 1, 0)
        L.wait(rt[(2, 0)])
        mq(6, 0); refill(3, 1, 1)
        mk(6, 0); kxload(0)
        tvx = V.issue(f'buffer_load_dwordx4 {v(VX+4,4)}, {v(vVXg)}, s[4:7], {s(sVXo)} offen offset:1024 sc1')
        mq(7, 0); kxload(1)
        L.wait(rt[(3, 0)])
        mk(7, 0); kxload(4)
        mq(6, 1); kxload(5)
        mk(6, 1); add(Q0, Q0, Q0 + 1)
        L.wait(rt[(3, 1)])
        mq(7, 1); add(Q0 + 1, Q0 + 2, Q0 + 3)
        mk(7, 1)
        if dbg != 2: stamp(2)
        add(K0, K0, K0 + 1); add(K0 + 1, K0 + 2, K0 + 3)
        add(Q1, Q1, Q1 + 1); add(Q1 + 1, Q1 + 2, Q1 + 3)
        cvt(vT0, Q0, Q1); cvt(vT1, Q0 + 1, Q1 + 1)
        L.issue(f'ds_write2_b32 {v(vXQw)}, {v(vT0)}, {v(vT1)} offset0:0 offset1:{2*XQP//4}')
        add(K1, K1, K1 + 1); add(K1 + 1, K1 + 2, K1 + 3)
        cvt(SP + 1, K0, K1); cvt(SP + 3, K0 + 1, K1 + 1)
        L.issue(f'ds_write2_b32 {v(vXQw)}, {v(SP+1)}, {v(SP+3)} offset0:{XQP//4} offset1:{3*XQP//4}')
    if 'nog1' not in EXP:
        for _ in range(4): nv()
    else:
        nv(); kxload(2)
        nv(); kxload(3)
        nv(); kxload(6)
        nv(); kxload(7)
        nv()
    L.wait_all()
    A('s_barrier')
    stamp(3)
    if 'trace' in EXP: A('s_memrealtime s[52:53]')
    QF, KMF, SA = ACC, MF, MF + 16
    qt, kt = {}, {}
    def qread(ks): qt[ks] = L.issue(f'ds_read_b128 {v(QF + 4*ks, 4)}, {v(vXQr)} offset:{ks*64}')
    def kread(ks): kt[ks] = L.issue(f'ds_read_b128 {v(KMF + 4*ks, 4)}, {v(vXKr)} offset:{ks*64}')
    qread(0); qread(1)
    nv(); qread(2)
    nv(); qread(3)
    nv(); kread(0)
    nv(); kread(1)
    nv(); kread(2)
    nv(); kread(3)
    nv()
    A(f's_mov_b32 m0, {s(sKXm)}')
    while VL: nv()
    TX0, TX1, TM = SA, SA + 4, SA + 8
    def mm(d, a, b, c, k=32):
        n = 4 if k == 32 else 2
        A(f'v_mfma_f32_16x16x{k}_bf16 {v(d,4)}, {v(a,n)}, {v(b,n)}, {c}')
    L.wait(qt[3])
    for ks in range(4):
        mm(TX0, RING + 4 * ks, QF + 4 * ks, '0' if ks == 0 else v(TX0, 4))
        if ks == 0 and 'nodma' not in EXP: V.issue(f'buffer_load_dwordx4 {v(vMw)}, s[4:7], {s(sKXo)} offen sc1 lds')
        if ks == 1 and 'nodma' not in EXP: V.issue(f'buffer_load_dwordx4 {v(vMw)}, s[4:7], {s(sT0)} offen sc1 lds')
        if ks == 2: add(V0, V0, V0 + 1); add(V0 + 1, V0 + 2, V0 + 3)
        if ks == 3: cvt(SP, V0, V0 + 1); cvt(SP + 2, V1, V1 + 1)
        mm(TX1, RING + 16 + 4 * ks, QF + 4 * ks, '0' if ks == 0 else v(TX1, 4))
        if ks == 0: A(f's_add_u32 m0, {s(sKXm)}, 4096\ns_add_u32 {s(sT0)}, {s(sKXo)}, {16*8192}')
        if ks == 1: A(f'v_mov_b32 {v(vT0)}, {s(sStep)}')
        if ks == 2: add(V1, V1, V1 + 1); add(V1 + 1, V1 + 2, V1 + 3)
    L.wait(kt[3])
    M_, T_ = vT2, vT3
    mm(TM, KMF, QF, '0')
    def kvst(): V.issue(f'buffer_store_dwordx4 {v(SP,4)}, {v(vMw)}, s[4:7], {s(sKMo)} offen sc1')
    if 'st' not in EXP: kvst()
    mm(TM, KMF + 4, QF + 4, v(TM, 4))
    if 'nokv' not in EXP: V.issue(f'buffer_store_dword {v(vT0)}, off, s[4:7], {s(sProg)} sc1')
    if 'trace' in EXP:
        A(f's_lshl_b32 s54, {s(sH)}, 8\ns_lshl_b32 s55, {s(sStep)}, 2\ns_add_u32 s54, s54, s55\ns_add_u32 s54, s54, {WS_DBG + 65536}\ns_cmp_eq_u32 {s(sWV)}, 0\ns_cselect_b32 s54, s54, 0x7ffffff0\nv_mov_b32 {v(vT1)}, s52')
        V.issue(f'buffer_store_dword {v(vT1)}, off, s[4:7], s54')
    A(f's_cmp_eq_u32 {s(sStep)}, {nsteps-1}')
    mm(TM, KMF + 8, QF + 8, v(TM, 4))
    A(f'v_max3_f32 {v(M_)}, {v(TX0)}, {v(TX0+1)}, {v(TX0+2)}')
    A(f'v_max3_f32 {v(T_)}, {v(TX0+3)}, {v(TX1)}, {v(TX1+1)}')
    mm(TM, KMF + 12, QF + 12, v(TM, 4))
    A(f's_cbranch_scc1 L_rec_fin')
    if 'st' in EXP: kvst()
    stamp(4)
    wt = {}
    def wofill(T, hf):
        wt[T] = L.issue(f'ds_read_b128 {v(MF + (T & 3)*8 + hf*4, 4)}, {v(vWkL)} offset:{16384 + T*2048 + hf*1024}')
    PM, PX = ACC, ACC + 4
    OL, O0_, O1_ = ACC + 8, V0, V1
    A(f'''
    v_max3_f32 {v(M_)}, {v(M_)}, {v(TX1+2)}, {v(TX1+3)}
    v_max_f32 {v(M_)}, {v(M_)}, {v(T_)}
    ''')
    wofill(0, 0); wofill(0, 1); wofill(1, 0); wofill(1, 1)
    A(f'''
    v_max3_f32 {v(T_)}, {v(M_)}, {v(TM)}, {v(TM+1)}
    v_max3_f32 {v(M_)}, {v(M_)}, {v(TM)}, {v(TM+1)}
    v_mov_b32 {v(PM+1)}, 0
    v_permlane32_swap_b32 {v(M_)}, {v(T_)}
    v_max_f32 {v(vT0)}, {v(M_)}, {v(T_)}
    v_max_f32 {v(vT1)}, {v(M_)}, {v(T_)}
    v_permlane16_swap_b32 {v(vT0)}, {v(vT1)}
    v_max_f32 {v(M_)}, {v(vT0)}, {v(vT1)}
    v_mul_f32 {v(M_)}, {s(sC)}, {v(M_)}
    ''')
    def pkf(x): A(f'v_pk_fma_f32 {v(x,2)}, {v(x,2)}, {s(sC,2)}, {v(M_,2)} op_sel_hi:[1,1,0] neg_lo:[0,0,1] neg_hi:[0,0,1]')
    def ex(x): A(f'v_exp_f32 {v(x)}, {v(x)}')
    pkf(TM); pkf(TX0); pkf(TX0 + 2); pkf(TX1); pkf(TX1 + 2)
    ex(TM); ex(TM + 1); ex(TX0)
    cvt(PM, TM, TM + 1)
    ex(TX0 + 1); ex(TX0 + 2)
    mm(OL, ONES, PM, '0', 16)
    ex(TX0 + 3); cvt(PX, TX0, TX0 + 1)
    mm(O0_, SP, PM, '0', 16)
    ex(TX1); cvt(PX + 1, TX0 + 2, TX0 + 3)
    mm(O1_, SP + 2, PM, '0', 16)
    ex(TX1 + 1); ex(TX1 + 2); ex(TX1 + 3)
    cvt(PX + 2, TX1, TX1 + 1); cvt(PX + 3, TX1 + 2, TX1 + 3)
    stamp(5)
    V.wait(tvx)
    mm(OL, ONES, PX, v(OL, 4))
    wofill(2, 0); wofill(2, 1)
    mm(O0_, VX, PX, v(O0_, 4))
    wofill(3, 0); wofill(3, 1)
    mm(O1_, VX + 4, PX, v(O1_, 4))
    WA = RING
    A(f'v_rcp_f32 {v(M_)}, {v(OL)}')
    zero(WA, 2)
    OX = ACC + 12
    def mul(x): A(f'v_mul_f32 {v(x)}, {v(M_)}, {v(x)}')
    for r in range(4): mul(O0_ + r)
    cvt(OX, O0_, O0_ + 1); cvt(OX + 1, O0_ + 2, O0_ + 3)
    for r in range(4): mul(O1_ + r)
    cvt(OX + 2, O1_, O1_ + 1); cvt(OX + 3, O1_ + 2, O1_ + 3)
    L.issue(f'ds_write_b128 {v(vXOw)}, {v(OX,4)}')
    zero(WA + 2, 30)
    if 'hint' in EXP:
        A(f'''
        s_add_u32 {s(sSt1)}, {s(sStep)}, 1
        v_and_b32 {v(ACC+8)}, 0x1f0, {v(vMw)}
        v_lshrrev_b32 {v(vT3)}, 2, {v(ACC+8)}
        v_lshlrev_b32 {v(ACC+8)}, 3, {v(ACC+8)}
        v_mov_b32 {v(ACC+9)}, {s(sSt1)}
        ''')
    stamp(6)
    L.wait_all()
    A('s_barrier')
    if dbg != 2: stamp(7)
    OA = V0
    ot0 = L.issue(f'ds_read_b128 {v(OA,4)}, {v(vXOr)}')
    ot1 = L.issue(f'ds_read_b128 {v(OA+4,4)}, {v(vXOr)} offset:128')
    if 'hint' in EXP: V.issue(f'buffer_store_dword {v(ACC+9)}, {v(ACC+8)}, s[4:7], {s(sHw)} offen{stf}')
    ht = {}
    def hpoll(k): ht[k] = V.issue(f'buffer_load_dword {v(vT0+k)}, {v(vT3)}, s[4:7], {s(sHr)} offen sc1')
    def hchk(k): A(f'v_cmp_gt_u32 vcc, {s(sSt1)}, {v(vT0+k)}')
    A(f'''
    s_add_u32 {s(sKXo)}, {s(sKXo)}, {32*8192}
    s_xor_b32 {s(sKXm)}, {s(sKXm)}, {LDS_KX ^ (LDS_KX + 8192)}
    s_add_u32 {s(sVXo)}, {s(sVXo)}, {32*128*64}
    s_add_u32 {s(sKMo)}, {s(sKMo)}, {32*4096}
    v_xor_b32 {v(vKXr)}, {LDS_KX ^ (LDS_KX + 8192)}, {v(vKXr)}
    ''')
    L.wait(ot0)
    PO = ACC
    PU = VX
    def hs(T, j): add(PO + 2 * T + j, WA + 4 * T + 2 * j, WA + 4 * T + 2 * j + 1)
    def tag(Qd):
        x = PO + 8 * Qd
        A(f'v_add_u32 {v(x)}, {s(sTa)}, {v(x)}')
        A(f'v_and_or_b32 {v(x)}, {v(x)}, {v(vMask)}, {s(sTb)}')
    def pk(P):
        Qd, p = P >> 1, P & 1
        for j in range(2): cvt(PU + 4 * Qd + 2 * j + p, PO + 4 * P + j, PO + 4 * P + 2 + j)
    def pstore(Qd):
        if 'pl2' in EXP: V.issue(f'buffer_store_dwordx4 {v(PU+4*Qd,4)}, {v(vPs)}, s[4:7], {(0, s(sHr))[Qd]} offen{stf}')
        else: V.issue(f'buffer_store_dwordx4 {v(PU+4*Qd,4)}, {v(vPs)}, s[4:7], 0 offen offset:{Qd*128}{stf}')
    for T in range(8):
        smf(A, WA + 4 * T, OA, v(WO0 + 8 * T, 8))
        if T == 0: L.wait(ot1)
        if T in (1, 3, 5) and 'hint' in EXP: hpoll(T >> 1)
        if T >= 2: hs(T - 2, 0)
        if T >= 4 and ('w2' not in EXP): L.wait(wt[T])
        if T in (4, 6) and 'w2' in EXP: L.wait(wt[T + 1])
        smf(A, WA + 4 * T, OA + 4, v(MF + (T & 3) * 8, 8))
        if T < 4: wofill(T + 4, 0); wofill(T + 4, 1)
        if T >= 2: hs(T - 2, 1)
        if T in (2, 6): tag(T >> 2)
        if T >= 3 and T % 2 == 1: pk((T - 3) // 2)
        if T == 5:
            pstore(0)
            if dbg == 2: stamp(7)
    hs(6, 0); hs(6, 1); hs(7, 0); hs(7, 1); pk(3); pstore(1)
    stamp(8)
    RD, RT = vT0, MF + 28
    A(f's_mov_b32 {s(sSpin)}, 0')
    def red_issue(k=0):
        for i in range(2):
            V.issue(f'buffer_load_dwordx4 {v(RS[k] + 4*i, 4)}, {v(vPl)}, s[4:7], 0 offen offset:{i*(2048 if "pl3" in EXP else 1024)} sc1')
    def chkR(k=0, spec=False):
        A(f'v_bitop3_b32 {v(RT)}, {v(RS[k])}, {v(RS[k]+4)}, {s(sTg)} bitop3:0x7e')
        if k == 0 or spec: mm(RD, RS[k], SEL, '0')
        A(f'v_and_b32 {v(RT)}, 1, {v(RT)}')
        A(f'v_cmp_ne_u32 vcc, 0, {v(RT)}')
        if k == 0 or spec: mm(RD, RS[k] + 4, SEL, v(RD, 4))
    A(f's_add_u32 {s(sT1)}, {s(sStep)}, 2\ns_lshr_b32 {s(sT1)}, {s(sT1)}, 2')
    if 'noref' not in EXP: A(f's_cmp_eq_u32 {s(sStep)}, 16\ns_cselect_b32 {s(sT1)}, 15, {s(sT1)}')
    A(f's_min_u32 {s(sT1)}, {s(sT1)}, 15')
    A(f's_cmp_lt_u32 {s(sT1)}, {s(sReady)}\ns_cbranch_scc0 L_need_{sfx}')
    A.label(f'L_have_{sfx}')
    if 'hint' in EXP:
        V.wait(ht[1])
        hchk(0)
        A(f's_cbranch_vccz L_h1_{sfx}')
        hchk(1)
        A(f's_cbranch_vccz L_h2_{sfx}')
        hpoll(0)
        V.wait(ht[2])
        hchk(2)
        A(f's_cbranch_vccnz L_hf_{sfx}')
        delay(e3)
        A.label(f'L_h2_{sfx}')
        delay(e2)
    A.label(f'L_h1_{sfx}')
    wdelay('1', d1a, d1b)
    red_issue(ordR[0])
    ring_prefetch(); zero(ACC, 24)
    for n in range(1, e2 + 1):
        delay(ef - 20 if n == 1 else ef); red_issue(ordR[n])
    if LIN:
        for n, k in enumerate(ordR[:-1]):
            A(f's_waitcnt vmcnt({2*(e2 - n)})')
            chkR(k, True)
            A(f's_cbranch_vccz L_rok_{sfx}')
    A(f's_waitcnt vmcnt({0 if LIN else 2*e2})')
    chkR(0)
    A(f's_cbranch_vccnz L_rf0_{sfx}')
    A.label(f'L_rok_{sfx}')
    stamp(9)
    if dbg == 1: A(f's_add_u32 s89, s89, {s(sSpin)}')
    A(f'''
    v_permlane32_swap_b32 {v(RD)}, {v(RD+2)}
    v_permlane32_swap_b32 {v(RD+1)}, {v(RD+3)}
    v_add_f32 {v(RD)}, {v(RD)}, {v(RD+2)}
    v_add_f32 {v(RD+1)}, {v(RD+1)}, {v(RD+3)}
    v_permlane16_swap_b32 {v(RD)}, {v(RD+1)}
    v_add_f32 {v(RD)}, {v(RD)}, {v(RD+1)}
    v_mov_b32_dpp {v(RD+1)}, {v(RD)} quad_perm:[1,0,3,2] row_mask:0xf bank_mask:0xf
    v_cvt_pk_bf16_f32 {v(RD)}, {v(RD)}, {v(RD+1)}
    v_min_u32 {v(RD)}, {s(sSent)}, {v(RD)}
    buffer_store_dword {v(RD)}, {v(vMs)}, s[4:7], {s(sNext)} offen{stf}
    s_xor_b32 {s(sCur0)}, {s(sCur0)}, 8192
    s_xor_b32 {s(sCur1)}, {s(sCur1)}, 8192
    s_xor_b32 {s(sNext)}, {s(sNext)}, 8192
    s_xor_b32 {s(sTg)}, {s(sTg)}, 1
    s_xor_b32 {s(sTb)}, {s(sTb)}, 0x10000
    s_xor_b32 {s(sTa)}, {s(sTa)}, 0x10000
    s_add_u32 {s(sStep)}, {s(sStep)}, 1
    s_mov_b32 {s(sSpin)}, 0
    ''')
    stamp(10)
    wdelay('2', d2a, d2b)
    for k in range(e3 + 1):
        if k: delay(ef)
        gatherA(ordA[k])
        if nd == 2 and k == e3: gatherB()
    if dbg == 2:
        A(f's_cmp_lg_u32 {s(sStep)}, 31\ns_cbranch_scc1 L_nd1_{sfx}\ns_waitcnt lgkmcnt(0)')
        for i in range(11): A(f's_mov_b32 s{76+i}, s{52+2*i}')
        A(f'L_nd1_{sfx}:\ns_cmp_lg_u32 {s(sStep)}, 32\ns_cbranch_scc1 L_nd2_{sfx}\ns_waitcnt lgkmcnt(0)')
        A(f's_mov_b32 s88, s52\ns_mov_b32 s89, s56\ns_mov_b32 s74, s58\nL_nd2_{sfx}:')
    elif dbg:
        A('s_waitcnt lgkmcnt(0)')
        for i in range(10):
            A(f's_sub_u32 {s(sT0)}, s{52+2*(i+1)}, s{52+2*i}\ns_add_u32 s{76+i}, s{76+i}, {s(sT0)}')
        A(f's_sub_u32 {s(sT0)}, s52, s87\ns_cmp_eq_u32 {s(sStep)}, 1\ns_cselect_b32 {s(sT0)}, 0, {s(sT0)}\ns_add_u32 s86, s86, {s(sT0)}\ns_mov_b32 s87, s72')
    A(f's_branch L_loop_{sfx}')
    A.label(f'L_need_{sfx}')
    ensure(A, sfx)
    A(f's_branch L_have_{sfx}')
    A.label(f'L_hf_{sfx}')
    hpoll(1)
    A.label(f'L_hl_{sfx}')
    for k in (0, 1):
        A('s_waitcnt vmcnt(1)')
        hchk(k)
        A(f's_cbranch_vccz L_hd_{sfx}')
        hpoll(k)
    A(f's_add_u32 {s(sSpin)}, {s(sSpin)}, 1\ns_cmp_lt_u32 {s(sSpin)}, {SPIN_LIMIT}\ns_cbranch_scc1 L_hl_{sfx}\ns_endpgm')
    A.label(f'L_hd_{sfx}')
    delay(ef)
    A(f's_branch L_h1_{sfx}')
    poll_tail('a', 1, GA, 4, gatherA, chkA, lambda: A(f'ds_write_b128 {v(vMw)}, {v(MF,4)}\ns_branch L_aok_{sfx}'), blind=0 if LIN else e3)
    poll_tail('b', 1, GB, 4, gatherB, chkB, lambda: A(f'ds_write_b128 {v(vMw)}, {v(MF+16,4)} offset:4096\ns_branch L_bok_{sfx}'))
    def finR():
        mm(RD, RS[0], SEL, '0'); mm(RD, RS[0] + 4, SEL, v(RD, 4)); A(f's_branch L_rok_{sfx}')
    poll_tail('r', 2, RS, 8, red_issue, chkR, finR, blind=0 if LIN else e2)

HDR = '; @launch grid=(256,1,1) block=(256,1,1) lds=163840\n.amdgcn_target "amdgcn-amd-amdhsa--gfx950"\n'
```

```python
import sys
import pre, rec, worker, align
NAME = 'parallel_sum__memory_aug_recurrent_mem_tr__dense_activation_silu__prompt'
def build(path, dbg=False, fused=True, exp=(), **kw):
    rec.EXP = set(exp) | {'pl2'}
    worker.EXP = set(exp)
    worker.N_AW = 112
    worker.N_G2 = 112
    for e in exp:
        if e.startswith('aw'): worker.N_AW = int(e[2:])
        if e.startswith('gw'): worker.N_G2 = int(e[2:])
    body, desc = rec.gen_rec(NAME + '_kernel', fused=fused, dbg=dbg, **kw)
    hdr = '; generated by my own generator scripts (gen/*.py)\n; @launch grid=(256,1,1) block=(256,1,1) lds=163840\n.amdgcn_target "amdgcn-amd-amdhsa--gfx950"\n'
    text = hdr + body + desc
    if 'noal' not in exp:
        text = align.align(text, 'L_loop_f', 'L_need_f')
    open(path, 'w').write(text)
if __name__ == '__main__':
    build(f'cdna_kernels/{NAME}.s')
    for a in sys.argv[1:]:
        parts = a.split(':')
        dl = tuple(int(x) for x in parts[0].split(','))
        fl = parts[1].split(',') if len(parts) > 1 else []
        nm = ('x_' if 'n' in fl else 'x_dbg_') + a.replace(',', '_').replace(':', '_') + ('_rt' if 'rt' in fl else '')
        build('exp/%s.s' % nm, dbg=0 if 'n' in fl else 2 if 'rt' in fl else 1, dl=dl, fused='solo' not in fl, exp=fl)
        print('exp/%s.s' % nm)
```

```python
from asmlib import *
from layout import *
import worker
import struct

def f2u(x): return struct.unpack('<I', struct.pack('<f', x))[0]

LDS_M, LDS_KX, LDS_XQ, LDS_XO, LDS_MISC = 0, 8192, 24576, 29184, 31744
REG_A, REG_B = 32768, 49152
XQP, XOP = 272, 272
SPIN_LIMIT = 1 << 18
D_CLAIM, D_SLOW, D_RINIT, D_FINIT = 0, 4, 8, 128
EXP = {'pl2'}

(vIdx, vMw, vWkL, vXQw, vXQr, vXKr, vKXr, vVXg, vXOw, vXOr,
 vPs, vPl, vMs, vMask, vMr1, vMr2) = range(16)
SEL = 16
ONES = 20
vT0, vT1, vT2, vT3 = 24, 25, 26, 27
VX, MF, ACC, RING, SP = 28, 36, 68, 92, 124
Q0, K0, Q1, K1, V0, V1 = 68, 72, 76, 80, 84, 88
WK0, WO0 = 128, 192
sH, sWV, sStep, sTag, sCur0, sCur1, sNext, sKXo, sVXo, sKMo, sT0, sT1, sT2, sM0w = range(24, 38)
sC, sSpin, sXcc, sRank, sKXm = 44, 46, 47, 48, 49
sTb, sTa, sTg, sSent = 40, 41, 42, 43
sReady, sFlag, sProg = 38, 39, 27
sHw, sHr, sSt1 = 100, 101, 3
WS_HINT = WS_FLAG + 12288

def v(i, n=1): return f'v{i}' if n == 1 else f'v[{i}:{i+n-1}]'
def a_(i, n=1): return f'a{i}' if n == 1 else f'a[{i}:{i+n-1}]'
def s(i, n=1): return f's{i}' if n == 1 else f's[{i}:{i+n-1}]'

class Cnt:
    def __init__(self, A, name, mx): self.A, self.name, self.mx, self.n = A, name, mx, 0
    def issue(self, text):
        self.A(text); self.n += 1; return self.n
    def wait(self, tok):
        k = min(self.n - tok, self.mx)
        self.A(f's_waitcnt {self.name}({k})')
    def wait_all(self): self.A(f's_waitcnt {self.name}(0)')

def smf(A, d, a, b): A(f'v_smfmac_f32_16x16x64_bf16 {v(d,4)}, {v(a,4)}, {b}, {v(vIdx)}')

def ensure(A, tag, inline=False):
    A(f'''
    s_mov_b32 {s(sT2)}, 0
L_ens_{tag}:
    s_cmp_lt_u32 {s(sT1)}, {s(sReady)}
    s_cbranch_scc1 L_ensd_{tag}
    v_mbcnt_lo_u32_b32 {v(vT0)}, -1, 0
    v_mbcnt_hi_u32_b32 {v(vT0)}, -1, {v(vT0)}
    v_and_b32 {v(vT0)}, 15, {v(vT0)}
    v_lshlrev_b32 {v(vT0)}, 2, {v(vT0)}
    buffer_load_dword {v(vT1)}, {v(vT0)}, s[4:7], {s(sFlag)} offen sc0 sc1
    s_add_u32 {s(sT2)}, {s(sT2)}, 1
    s_cmp_lt_u32 {s(sT2)}, {SPIN_LIMIT}
    s_cbranch_scc0 L_rec_exit
    s_waitcnt vmcnt(0)
    v_and_b32 {v(vT1)}, 255, {v(vT1)}
    v_cmp_ne_u32 vcc, 2, {v(vT1)}
    s_or_b32 {s(sT0)}, vcc_lo, 0x10000
    s_ff1_i32_b32 {s(sReady)}, {s(sT0)}
    s_branch L_ens_{tag}
L_ensd_{tag}:
    ''')

def ln_signal(A, tag, younger):
    A(f'''
    s_waitcnt vmcnt({younger})
    s_barrier
    s_cmp_lg_u32 {s(sWV)}, 1
    s_cbranch_scc1 L_nosig_{tag}
    s_cmp_eq_u32 s75, 0x7ffffff0
    s_cbranch_scc1 L_nosig_{tag}
    s_mov_b32 {s(sSpin)}, 0
    s_branch L_sigc_{tag}
L_sigp_{tag}:
    buffer_load_dword v96, off, s[8:11], 0 offset:{D_FINIT} sc0 sc1
    s_add_u32 {s(sSpin)}, {s(sSpin)}, 1
    s_cmp_lt_u32 {s(sSpin)}, {SPIN_LIMIT}
    s_cbranch_scc0 L_rec_exit
    s_waitcnt vmcnt(0)
L_sigc_{tag}:
    v_readfirstlane_b32 {s(sT0)}, v96
    s_cmp_eq_u32 {s(sT0)}, 0
    s_cbranch_scc1 L_sigp_{tag}
    s_mov_b64 exec, 1
    buffer_atomic_add v96, v98, s[4:7], s75 offen
    s_mov_b64 exec, -1
L_nosig_{tag}:
    s_mov_b32 s75, 0x7ffffff0
    ''')

def gen_rec(name, nwg=256, dbg=False, nsteps=NSEG, dl=(30, 70, 60, 20, 20, 0, 1, 1, 30), fused=False):
    A = Asm()
    vL = 99
    import pre
    A(f'''
    s_cmp_ge_u32 s2, {nwg}
    s_cbranch_scc1 L_rec_exit
    {'s_memrealtime s[96:97]' if dbg or 'wt' in EXP else ''}
    s_load_dwordx4 s[52:55], s[0:1], 0
    s_load_dwordx8 s[16:23], s[0:1], 16
    s_load_dwordx4 s[36:39], s[0:1], 88
    s_load_dwordx2 s[50:51], s[0:1], 64
    v_lshrrev_b32 v1, 6, v0
    v_and_b32 {v(vL)}, 63, v0
    s_getreg_b32 {s(sXcc)}, hwreg(HW_REG_XCC_ID)
    v_readfirstlane_b32 {s(sWV)}, v1
    s_and_b32 {s(sXcc)}, {s(sXcc)}, 15
    {'s_add_u32 s47, s47, 1' if 'allslow' in EXP else ''}
    {'s_bfe_u32 s34, s2, 0x10003' if 'halfslow' in EXP else ''}
    {'s_add_u32 s47, s47, s34' if 'halfslow' in EXP else ''}
    ''')
    pre.ln_addr(A)
    A(f'''
    s_waitcnt lgkmcnt(0)
    {'s_mov_b32 s91, s96' if 'wt' in EXP else ''}
    s_mov_b32 s4, s38
    s_mov_b32 s5, s39
    s_mov_b32 s6, {WS_SIZE}
    s_mov_b32 s7, 0x20000
    s_mov_b32 s8, s36
    s_mov_b32 s9, s37
    s_mov_b32 s10, 256
    s_mov_b32 s11, 0x20000
    s_mov_b32 s12, s52
    s_mov_b32 s13, s53
    s_mov_b32 s14, 0x200000
    s_mov_b32 s15, 0x20000
    ''')
    pre.ln_load(A)
    A(f'''
    v_mov_b32 v98, 0
    v_mov_b32 v97, 32
    s_mov_b32 s74, 0
    s_or_b32 {s(sT0)}, {s(sWV)}, {s(sXcc)}
    s_cmp_lg_u32 {s(sT0)}, 0
    s_cbranch_scc1 L_el_skip
    s_mov_b32 s74, 1
    v_mov_b32 v97, 1
    s_mov_b64 exec, 1
    buffer_atomic_add v97, v98, s[8:11], 0 offen offset:{D_CLAIM} sc0
    s_mov_b64 exec, -1
L_el_skip:
    s_cmp_ge_u32 s2, 128
    s_cbranch_scc1 L_no_ln
    {'s_cmp_eq_u32 s47, 0' if 'skipln' in EXP else ''}
    {'s_cbranch_scc1 L_no_ln' if 'skipln' in EXP else ''}
    ''')
    pre.ln_compute(A)
    A(f'''
    buffer_load_dword v96, off, s[8:11], 0 offset:{D_FINIT} sc0 sc1
    s_lshr_b32 s75, s2, 3
    s_lshl_b32 s75, s75, 7
    s_add_u32 s75, s75, {worker.F_LN}
    s_branch L_sig
L_no_ln:
    s_waitcnt vmcnt(0)
    s_mov_b32 s75, 0x7ffffff0
    s_cmp_lg_u32 s2, 128
    s_cbranch_scc1 {'L_sig' if 'nopf' in EXP else 'L_pf'}
    v_lshlrev_b32 v5, 4, v0
    v_mov_b32 v8, 0
    v_mov_b32 v9, 0
    v_mov_b32 v10, 0
    v_mov_b32 v11, 0
    s_mov_b32 {s(sT0)}, {WS_FLAG}
    buffer_store_dwordx4 v[8:11], v5, s[4:7], {s(sT0)} offen sc1
    s_add_u32 {s(sT0)}, {s(sT0)}, 4096
    buffer_store_dwordx4 v[8:11], v5, s[4:7], {s(sT0)} offen sc1
    s_add_u32 {s(sT0)}, {s(sT0)}, 4096
    buffer_store_dwordx4 v[8:11], v5, s[4:7], {s(sT0)} offen sc1
    s_add_u32 {s(sT0)}, {s(sT0)}, 4096
    buffer_store_dwordx4 v[8:11], v5, s[4:7], {s(sT0)} offen sc1
    v_mov_b32 v12, 1
    s_waitcnt vmcnt(0)
    s_barrier
    buffer_store_dword v12, off, s[8:11], 0 offset:{D_FINIT} sc1
L_sig:
    s_cmp_lg_u32 {s(sXcc)}, 0
    s_cbranch_scc1 L_wk_entry
    s_waitcnt vmcnt(5)
    s_cmp_lg_u32 {s(sWV)}, 0
    s_cbranch_scc1 L_rec_elected
    v_mov_b32 v2, {LDS_MISC}
    s_mov_b64 exec, 1
    ds_write_b32 v2, v97
    s_mov_b64 exec, -1
    s_waitcnt lgkmcnt(0)
L_rec_elected:
    s_barrier
    v_mov_b32 v2, {LDS_MISC}
    ds_read_b32 v1, v2
    s_mov_b32 s14, 0x400000
    s_waitcnt lgkmcnt(0)
    v_readfirstlane_b32 {s(sRank)}, v1
    s_cmp_ge_u32 {s(sRank)}, 32
    s_cbranch_scc1 L_wk_entry
L_rec_start:
    s_and_b32 {s(sH)}, {s(sRank)}, 31
    ''')
    if dbg: A('s_memrealtime s[72:73]\ns_waitcnt lgkmcnt(0)\ns_sub_u32 s98, s72, s96')
    tG, tR, tC, tF, tRow, tD0, tD1, tO0, tO1, tTr0, tTr1, tTrO, tA, tN, t7, tX, tY = range(100, 117)
    A(f'''
    v_lshrrev_b32 {v(tG)}, 4, {v(vL)}
    v_bfe_u32 {v(tR)}, {v(vL)}, 2, 2
    v_and_b32 {v(tC)}, 3, {v(vL)}
    v_and_b32 {v(tF)}, 1, {v(tG)}
    v_lshl_or_b32 {v(tF)}, {v(tF)}, 2, {v(tR)}
    v_lshl_add_u32 {v(tRow)}, {v(tG)}, 4, {v(tR)}
    v_lshlrev_b32 {v(tRow)}, 8, {v(tRow)}
    v_lshl_add_u32 {v(tRow)}, {v(tC)}, 3, {v(tRow)}
    s_lshl_b32 {s(sT0)}, {s(sWV)}, 1
    v_xor_b32 {v(tTr0)}, {s(sT0)}, {v(tF)}
    v_lshl_add_u32 {v(tTr0)}, {v(tTr0)}, 5, {v(tRow)}
    s_or_b32 {s(sT0)}, {s(sT0)}, 1
    v_xor_b32 {v(tTr1)}, {s(sT0)}, {v(tF)}
    v_lshl_add_u32 {v(tTr1)}, {v(tTr1)}, 5, {v(tRow)}
    s_lshl_b32 {s(sM0w)}, {s(sWV)}, 15
    v_add_u32 {v(tTrO)}, {s(sM0w)}, {v(tRow)}
    v_and_b32 {v(tN)}, 15, {v(vL)}
    v_lshlrev_b32 {v(vT1)}, 1, {v(tG)}
    v_xor_b32 {v(vT0)}, {v(tN)}, {v(vT1)}
    v_lshlrev_b32 {v(vT0)}, 4, {v(vT0)}
    v_xor_b32 {v(vT1)}, 0x80, {v(vT0)}
    v_lshrrev_b32 {v(vT2)}, 1, {v(tG)}
    v_and_b32 {v(vT3)}, 1, {v(tG)}
    ; D-type: (2*j1 + 16*j0)*8192 + h*256 + 128*w*8192
    v_lshlrev_b32 {v(tX)}, 14, {v(vT2)}
    v_lshl_add_u32 {v(tX)}, {v(vT3)}, 17, {v(tX)}
    s_lshl_b32 {s(sT0)}, {s(sWV)}, 20
    s_lshl_b32 {s(sT1)}, {s(sH)}, 8
    s_add_u32 {s(sT0)}, {s(sT0)}, {s(sT1)}
    v_add_u32 {v(tX)}, {s(sT0)}, {v(tX)}
    v_add_u32 {v(tD0)}, {v(tX)}, {v(vT0)}
    v_add_u32 {v(tD1)}, {v(tX)}, {v(vT1)}
    ; O-type: (32*j1 + j0)*1024 + h*131072 + w*256
    v_lshlrev_b32 {v(tX)}, 15, {v(vT2)}
    v_lshl_add_u32 {v(tX)}, {v(vT3)}, 10, {v(tX)}
    s_lshl_b32 {s(sT0)}, {s(sH)}, 17
    s_lshl_b32 {s(sT1)}, {s(sWV)}, 8
    s_add_u32 {s(sT0)}, {s(sT0)}, {s(sT1)}
    v_add_u32 {v(tX)}, {s(sT0)}, {v(tX)}
    v_add_u32 {v(tO0)}, {v(tX)}, {v(vT0)}
    v_add_u32 {v(tO1)}, {v(tX)}, {v(vT1)}
    ''')
    units = [('q', 0), ('q', 1), ('v', 0), ('v', 1), ('k', 0), ('o', 0), ('k', 1), ('o', 1)]
    PT = {'q': 16, 'k': 18, 'v': 20, 'o': 22}
    def dma_unit(u, th=None):
        mat, hi = units[u]; reg = (REG_A, REG_B)[u & 1]
        A(f's_mov_b32 s12, s{PT[mat]}\ns_mov_b32 s13, s{PT[mat]+1}')
        for ii in range(16):
            if th is not None and ((ii >> 1) & 1) != th: continue
            gb, j = ii >> 2, (ii & 3) * 4
            if mat == 'o': so = e_of(hi, gb, j) * 1024; vo = (tO0, tO1)[gb & 1]
            else: so = (d_of(0, gb, j) + 64 * hi) * 8192; vo = (tD0, tD1)[gb & 1]
            A(f's_add_u32 m0, {s(sM0w)}, {reg + ii * 1024}')
            A(f's_mov_b32 {s(sT0)}, {so}')
            A(f'buffer_load_dwordx4 {v(vo)}, s[12:15], {s(sT0)} offen lds')
    TMPF = 28
    def dest(u, f):
        mat, hi = units[u]
        if u >= 6: return ('v', TMPF + f * 8)
        if mat == 'q': return ('a', (hi * 8 + f) * 8)
        if mat == 'v': return ('a', 128 + (hi * 8 + f) * 8)
        if mat == 'k': return ('v', WK0 + f * 8)
        return ('v', WO0 + f * 8)
    def read_unit(u, th=None):
        mat, hi = units[u]; reg = (REG_A, REG_B)[u & 1]
        for f in range(8):
            if mat == 'o':
                A(f'v_xor_b32 {v(tA)}, {f}, {v(tF)}')
                A(f'v_lshl_add_u32 {v(tA)}, {v(tA)}, 5, {v(tTrO)}')
                A(f'v_add_u32 {v(tA)}, {reg}, {v(tA)}')
            else:
                lam, tt = f >> 1, f & 1
                A(f's_xor_b32 {s(sT0)}, {s(sWV)}, {lam}')
                A(f's_lshl_b32 {s(sT0)}, {s(sT0)}, 15')
                A(f's_add_u32 {s(sT0)}, {s(sT0)}, {reg}')
                A(f'v_add_u32 {v(tA)}, {s(sT0)}, {v((tTr0, tTr1)[tt])}')
            fl, d = dest(u, f)
            for t in range(4):
                if th is not None and (t >> 1) != th: continue
                A(f'ds_read_b64_tr_b16 {fl}[{d+2*t}:{d+2*t+1}], {v(tA)} offset:{t*1024}')
    A('s_cmp_eq_u32 s75, 0x7ffffff0\ns_cbranch_scc1 L_skipsig')
    ln_signal(A, 'r', 0)
    A.label('L_skipsig')
    FINE = 'coarse' not in EXP
    if FINE: dma_unit(0, 0); dma_unit(0, 1); dma_unit(1, 0); dma_unit(1, 1)
    else: dma_unit(0); dma_unit(1)
    A(f'''
    v_lshlrev_b32 {v(vT0)}, 4, {v(vL)}
    v_and_b32 {v(vT1)}, 1, {v(vL)}
    v_mov_b32 {v(vIdx)}, 0xffff4444
    v_mov_b32 {v(vT2)}, 0xffffeeee
    v_cmp_ne_u32 vcc, 0, {v(vT1)}
    v_cndmask_b32 {v(vIdx)}, {v(vIdx)}, {v(vT2)}, vcc
    s_lshl_b32 {s(sT0)}, {s(sWV)}, 10
    v_add_u32 {v(vMw)}, {s(sT0)}, {v(vT0)}
    s_add_u32 {s(sT1)}, {s(sM0w)}, {REG_A}
    v_add_u32 {v(vWkL)}, {s(sT1)}, {v(vT0)}
    v_add_u32 {v(vKXr)}, {LDS_KX}, {v(vT0)}
    v_and_b32 {v(t7)}, 7, {v(vL)}
    s_lshl_b32 {s(sT1)}, {s(sWV)}, 6
    v_mul_u32_u24 {v(vXQw)}, {4*XQP}, {v(tG)}
    v_lshl_add_u32 {v(vXQw)}, {v(tN)}, 2, {v(vXQw)}
    s_add_u32 {s(sT2)}, {s(sT1)}, {LDS_XQ}
    v_add_u32 {v(vXQw)}, {s(sT2)}, {v(vXQw)}
    v_mul_u32_u24 {v(vXQr)}, {2*XQP}, {v(t7)}
    v_lshl_add_u32 {v(vXQr)}, {v(tG)}, 4, {v(vXQr)}
    v_add_u32 {v(vXQr)}, {LDS_XQ}, {v(vXQr)}
    v_lshrrev_b32 {v(tX)}, 2, {v(tN)}
    v_lshl_add_u32 {v(tX)}, {v(tX)}, 1, {v(vT1)}
    v_mul_u32_u24 {v(vXKr)}, {2*XQP}, {v(tX)}
    v_lshl_add_u32 {v(vXKr)}, {v(tG)}, 4, {v(vXKr)}
    v_add_u32 {v(vXKr)}, {LDS_XQ + XQP}, {v(vXKr)}
    v_mul_u32_u24 {v(vXOw)}, {XOP}, {v(t7)}
    v_lshl_add_u32 {v(vXOw)}, {v(tG)}, 4, {v(vXOw)}
    s_add_u32 {s(sT2)}, {s(sT1)}, {LDS_XO}
    v_add_u32 {v(vXOw)}, {s(sT2)}, {v(vXOw)}
    v_lshrrev_b32 {v(tX)}, 1, {v(tN)}
    v_mul_u32_u24 {v(vXOr)}, {XOP}, {v(tX)}
    v_lshl_add_u32 {v(vXOr)}, {v(tG)}, 4, {v(vXOr)}
    v_lshl_add_u32 {v(vXOr)}, {v(vT1)}, 6, {v(vXOr)}
    v_add_u32 {v(vXOr)}, {LDS_XO}, {v(vXOr)}
    v_xor_b32 {v(vMr1)}, 1024, {v(vMw)}
    v_xor_b32 {v(vMr2)}, 2048, {v(vMw)}
    v_mov_b32 {v(vMask)}, 0xfffe0000
    v_lshlrev_b32 {v(vVXg)}, 6, {v(tN)}
    v_lshl_add_u32 {v(vVXg)}, {v(tG)}, 4, {v(vVXg)}
    s_lshl_b32 {s(sT2)}, {s(sH)}, 13
    s_lshl_b32 {s(sT0)}, {s(sWV)}, 11
    s_add_u32 {s(sT2)}, {s(sT2)}, {s(sT0)}
    s_add_u32 {s(sT2)}, {s(sT2)}, {WS_VT}
    v_add_u32 {v(vVXg)}, {s(sT2)}, {v(vVXg)}
    v_lshrrev_b32 {v(vPs)}, 2, {v(tN)}
    v_lshlrev_b32 {v(vPs)}, 14, {v(vPs)}
    v_lshrrev_b32 {v(tX)}, 5, {v(vL)}
    v_lshl_add_u32 {v(vPs)}, {v(tX)}, 13, {v(vPs)}
    v_and_b32 {v(tX)}, 1, {v(tG)}
    v_lshl_add_u32 {v(vPs)}, {v(tX)}, {6 if 'pl3' in EXP else 11}, {v(vPs)}
    v_lshl_add_u32 {v(vPs)}, {v(tC)}, 4, {v(vPs)}
    s_lshl_b32 {s(sT2)}, {s(sWV)}, 16
    s_lshl_b32 {s(sT0)}, {s(sH)}, {7 if 'pl3' in EXP else 6}
    s_add_u32 {s(sT2)}, {s(sT2)}, {s(sT0)}
    s_add_u32 {s(sT2)}, {s(sT2)}, {WS_PART}
    v_add_u32 {v(vPs)}, {s(sT2)}, {v(vPs)}
    v_lshlrev_b32 {v(vPl)}, {7 if 'pl3' in EXP else 6}, {v(tR)}
    v_lshl_add_u32 {v(vPl)}, {v(tG)}, {9 if 'pl3' in EXP else 8}, {v(vPl)}
    v_lshl_add_u32 {v(vPl)}, {v(tC)}, 4, {v(vPl)}
    s_lshl_b32 {s(sT2)}, {s(sH)}, 13
    s_lshl_b32 {s(sT0)}, {s(sWV)}, 11
    {'s_and_b32 s34, s34, 4096' if 'pl3' in EXP else ''}
    {'s_add_u32 s36, s36, s34' if 'pl3' in EXP else ''}
    {'s_and_b32 s34, s25, 1' if 'pl3' in EXP else ''}
    {'s_lshl_b32 s34, s34, 6' if 'pl3' in EXP else ''}
    s_add_u32 {s(sT2)}, {s(sT2)}, {s(sT0)}
    s_add_u32 {s(sT2)}, {s(sT2)}, {WS_PART}
    v_add_u32 {v(vPl)}, {s(sT2)}, {v(vPl)}
    v_bfe_u32 {v(vMs)}, {v(vL)}, 2, 1
    v_lshlrev_b32 {v(vMs)}, 5, {v(vMs)}
    v_lshl_add_u32 {v(vMs)}, {v(tG)}, 3, {v(vMs)}
    v_bfe_u32 {v(tX)}, {v(vL)}, 1, 1
    v_lshl_add_u32 {v(vMs)}, {v(tX)}, 2, {v(vMs)}
    s_lshl_b32 {s(sT2)}, {s(sH)}, 7
    s_lshr_b32 {s(sT0)}, {s(sWV)}, 1
    s_lshl_b32 {s(sT0)}, {s(sT0)}, 12
    s_add_u32 {s(sT2)}, {s(sT2)}, {s(sT0)}
    s_and_b32 {s(sT0)}, {s(sWV)}, 1
    s_lshl_b32 {s(sT0)}, {s(sT0)}, 6
    s_add_u32 {s(sT2)}, {s(sT2)}, {s(sT0)}
    v_add_u32 {v(vMs)}, {s(sT2)}, {v(vMs)}
    v_and_b32 {v(tX)}, 9, {v(vL)}
    v_cmp_ne_u32 vcc, 0, {v(tX)}
    v_mov_b32 {v(tX)}, 0x7ffffff0
    v_cndmask_b32 {v(vMs)}, {v(vMs)}, {v(tX)}, vcc
    ; SEL[d] = ((l&7)>>1 == d) ? ((l&1) ? 0x3f800000 : 0x00003f80) : 0
    v_lshlrev_b32 {v(tX)}, 4, {v(vT1)}
    v_mov_b32 {v(tY)}, 0x3f80
    v_lshlrev_b32 {v(tY)}, {v(tX)}, {v(tY)}
    v_lshrrev_b32 {v(tX)}, 1, {v(t7)}
    v_cmp_eq_u32 vcc, 0, {v(tX)}
    v_cndmask_b32 {v(SEL)}, 0, {v(tY)}, vcc
    v_cmp_eq_u32 vcc, 1, {v(tX)}
    v_cndmask_b32 {v(SEL+1)}, 0, {v(tY)}, vcc
    v_cmp_eq_u32 vcc, 2, {v(tX)}
    v_cndmask_b32 {v(SEL+2)}, 0, {v(tY)}, vcc
    v_cmp_eq_u32 vcc, 3, {v(tX)}
    v_cndmask_b32 {v(SEL+3)}, 0, {v(tY)}, vcc
    s_mov_b32 {s(sC)}, {f2u(SM_C)}
    s_mov_b32 {s(sSent)}, 0xfffeffff
    s_mov_b32 {s(sC+1)}, {f2u(SM_C)}
    v_mov_b32 {v(ONES)}, 0x3f803f80
    v_mov_b32 {v(ONES+1)}, 0x3f803f80
    v_mov_b32 {v(ONES+2)}, 0x3f803f80
    v_mov_b32 {v(ONES+3)}, 0x3f803f80
    ''')
    A(f'''
    s_mov_b32 s56, s54
    s_mov_b32 s57, s55
    s_mov_b32 s58, 8192
    s_mov_b32 s59, 0x20000
    v_bfe_u32 {v(tX)}, {v(vL)}, 1, 1
    v_lshl_add_u32 {v(tX)}, {v(tX)}, 5, {v(tG)}
    v_bfe_u32 {v(tY)}, {v(vL)}, 2, 1
    v_lshl_add_u32 {v(tX)}, {v(tY)}, 9, {v(tX)}
    v_lshlrev_b32 {v(tX)}, 1, {v(tX)}
    s_lshr_b32 {s(sT0)}, {s(sH)}, 3
    s_lshl_b32 {s(sT0)}, {s(sT0)}, 8
    s_lshr_b32 {s(sT1)}, {s(sWV)}, 1
    s_lshl_b32 {s(sT1)}, {s(sT1)}, 7
    s_add_u32 {s(sT0)}, {s(sT0)}, {s(sT1)}
    s_bfe_u32 {s(sT1)}, {s(sH)}, 0x20001
    s_lshl_b32 {s(sT1)}, {s(sT1)}, 3
    s_add_u32 {s(sT0)}, {s(sT0)}, {s(sT1)}
    s_and_b32 {s(sT1)}, {s(sH)}, 1
    s_lshl_b32 {s(sT1)}, {s(sT1)}, 12
    s_add_u32 {s(sT0)}, {s(sT0)}, {s(sT1)}
    s_and_b32 {s(sT1)}, {s(sWV)}, 1
    s_lshl_b32 {s(sT1)}, {s(sT1)}, 11
    s_add_u32 {s(sT0)}, {s(sT0)}, {s(sT1)}
    buffer_load_ushort v92, {v(tX)}, s[56:59], {s(sT0)} offen
    buffer_load_ushort v93, {v(tX)}, s[56:59], {s(sT0)} offen offset:32
    v_mov_b32 v120, -1
    v_mov_b32 v121, -1
    v_mov_b32 v122, -1
    v_mov_b32 v123, -1
    s_mov_b32 {s(sT1)}, {WS_MF + 8192}
    buffer_store_dwordx4 v[120:123], {v(vPl)}, s[4:7], 0 offen sc1
    buffer_store_dwordx4 v[120:123], {v(vPl)}, s[4:7], 0 offen offset:{2048 if 'pl3' in EXP else 1024} sc1
    buffer_store_dword v120, {v(vMs)}, s[4:7], {s(sT1)} offen sc1
    ''')
    for u in range(8):
        if u == 2:
            A(f'''
            v_lshl_or_b32 v92, v93, 16, v92
            v_min_u32 v92, {s(sSent)}, v92
            s_mov_b32 {s(sT1)}, {WS_MF}
            buffer_store_dword v92, {v(vMs)}, s[4:7], {s(sT1)} offen sc1
            ''')
        if u == 4:
            A(f'''
            s_cmp_lg_u32 {s(sWV)}, 0
            s_cbranch_scc1 L_nori
            v_mov_b32 v92, 1
            v_mov_b32 v93, 0
            s_mov_b64 exec, 1
            buffer_atomic_add v92, v93, s[8:11], 0 offen offset:{D_RINIT}
            s_mov_b64 exec, -1
L_nori:
            ''')
        if FINE:
            for th in range(2):
                su = 2 * u + th
                younger = 8 * min(3, 15 - su) + (5 if su < 3 else 0)
                A(f's_waitcnt vmcnt({younger})')
                A('s_barrier')
                read_unit(u, th)
                A('s_waitcnt lgkmcnt(0)')
                A('s_barrier')
                if u + 2 < 8: dma_unit(u + 2, th)
        else:
            A(f's_waitcnt vmcnt({21 if u == 0 else 0 if u == 7 else 16})')
            A('s_barrier')
            read_unit(u)
            A('s_waitcnt lgkmcnt(0)')
            A('s_barrier')
            if u + 2 < 8: dma_unit(u + 2)
        if u >= 6:
            for f in range(8):
                for hf in range(2):
                    A(f'ds_write_b128 {v(vWkL)}, {v(TMPF + f*8 + hf*4, 4)} offset:{(u-6)*16384 + f*2048 + hf*1024}')
            A('s_waitcnt lgkmcnt(0)')
    if dbg: A('s_memrealtime s[72:73]\ns_waitcnt lgkmcnt(0)\ns_sub_u32 s99, s72, s96')
    A(f'''
    s_mov_b32 {s(sStep)}, 0
    s_mov_b32 {s(sTg)}, 0
    s_mov_b32 {s(sTb)}, 0
    s_mov_b32 {s(sTa)}, 0x10000
    s_mov_b32 {s(sCur0)}, {WS_MF}
    s_mov_b32 {s(sCur1)}, {WS_MF + 4096}
    s_mov_b32 {s(sNext)}, {WS_MF + 8192}
    s_lshl_b32 {s(sKXo)}, {s(sH)}, 12
    s_add_u32 {s(sKMo)}, {s(sKXo)}, {WS_KM}
    s_add_u32 {s(sKXo)}, {s(sKXo)}, {WS_K}
    s_mov_b32 {s(sVXo)}, 0
    s_lshl_b32 {s(sKXm)}, {s(sWV)}, 10
    s_add_u32 {s(sKXm)}, {s(sKXm)}, {LDS_KX}
    s_mov_b32 {s(sReady)}, {0 if fused else 16}
    s_lshr_b32 {s(sFlag)}, {s(sH)}, 1
    s_lshl_b32 {s(sFlag)}, {s(sFlag)}, 6
    s_add_u32 {s(sFlag)}, {s(sFlag)}, {WS_FLAG}
    s_lshl_b32 {s(sProg)}, {s(sH)}, 7
    s_add_u32 {s(sProg)}, {s(sProg)}, {worker.F_PROG}
    s_cmp_eq_u32 {s(sWV)}, 0
    s_cselect_b32 {s(sProg)}, {s(sProg)}, 0x7ffffff0
    s_lshl_b32 {s(sHw)}, {s(sH)}, 2
    s_add_u32 {s(sHw)}, {s(sHw)}, {WS_HINT}
    s_cmp_eq_u32 {s(sWV)}, 0
    s_cselect_b32 {s(sHw)}, {s(sHw)}, 0x7ffffff0
    s_lshl_b32 {s(sHr)}, {s(sH)}, 7
    s_add_u32 {s(sHr)}, {s(sHr)}, {WS_HINT}
    {'s_mov_b32 s101, 4096' if 'pl2' in EXP else ''}
    ''')
    A(f'''
    v_mov_b32 {v(vT0)}, 0
    s_mov_b32 {s(sSpin)}, 0
L_ri_poll:
    buffer_load_dwordx3 {v(MF,3)}, {v(vT0)}, s[8:11], 0 offen offset:{D_CLAIM} sc0 sc1
    buffer_load_dword {v(MF+3)}, {v(vT0)}, s[8:11], 0 offen offset:{D_FINIT} sc0 sc1
    s_add_u32 {s(sSpin)}, {s(sSpin)}, 1
    s_cmp_lt_u32 {s(sSpin)}, {SPIN_LIMIT}
    s_cbranch_scc0 L_rec_exit
    s_waitcnt vmcnt(0)
    v_readfirstlane_b32 {s(sT0)}, {v(MF+2)}
    v_readfirstlane_b32 {s(sT1)}, {v(MF+3)}
    v_readfirstlane_b32 {s(sRank)}, {v(MF+1)}
    s_cmp_lt_u32 {s(sT0)}, 32
    s_cbranch_scc1 L_ri_poll
    s_cmp_lt_u32 {s(sT1)}, 1
    s_cbranch_scc1 L_ri_poll
    s_mov_b32 {s(sT1)}, 0
    ''')
    ensure(A, 'p', inline=True)
    A(f'''
    s_mov_b32 m0, {s(sKXm)}
    s_add_u32 {s(sT0)}, {s(sKXo)}, {16*8192}
    buffer_load_dwordx4 {v(vMw)}, s[4:7], {s(sKXo)} offen sc1 lds
    s_add_u32 m0, {s(sKXm)}, 4096
    s_nop 0
    buffer_load_dwordx4 {v(vMw)}, s[4:7], {s(sT0)} offen sc1 lds
    s_add_u32 {s(sKXo)}, {s(sKXo)}, {32*8192}
    s_xor_b32 {s(sKXm)}, {s(sKXm)}, {LDS_KX ^ (LDS_KX + 8192)}
    ''')
    if dbg:
        for i in range(76, 90): A(f's_mov_b32 s{i}, 0')
        A('s_memrealtime s[92:93]\ns_memtime s[94:95]\ns_waitcnt lgkmcnt(0)\ns_mov_b32 s90, s92\ns_mov_b32 s91, s94\ns_sub_u32 s97, s92, s96')
    A(f'''
    s_cmp_lg_u32 {s(sRank)}, 0
    s_cbranch_scc1 L_rec_slow_entry
    ''')
    gen_loop(A, 'f', '', dbg, nsteps, dl)
    A.label('L_rec_slow_entry')
    gen_loop(A, 's', ' sc1', dbg, nsteps, dl)
    A.label('L_rec_fin')
    worker.tstamp(A, 6)
    if 'st' in EXP: A(f'buffer_store_dwordx4 {v(SP,4)}, {v(vMw)}, s[4:7], {s(sKMo)} offen sc1')
    A(f'v_mov_b32 {v(vT0)}, {nsteps}\ns_waitcnt vmcnt(0)\ns_barrier\nbuffer_store_dword {v(vT0)}, off, s[4:7], {s(sProg)} sc1')
    worker.tstamp(A, 7)
    if dbg:
        A(f'''
        s_memrealtime s[92:93]
        s_memtime s[94:95]
        s_waitcnt lgkmcnt(0)
        s_sub_u32 s90, s92, s90
        s_sub_u32 s91, s94, s91
        s_lshl_b32 {s(sT0)}, {s(sH)}, 2
        s_add_u32 {s(sT0)}, {s(sT0)}, {s(sWV)}
        s_lshl_b32 {s(sT0)}, {s(sT0)}, 6
        s_add_u32 {s(sT0)}, {s(sT0)}, {WS_DBG}
        v_mov_b32 v30, 0
        ''')
        A('s_lshr_b32 s98, s98, 2\ns_lshr_b32 s99, s99, 2\ns_lshl_b32 s98, s98, 20\ns_lshl_b32 s99, s99, 10\ns_or_b32 s87, s98, s99\ns_lshr_b32 s97, s97, 2\ns_or_b32 s87, s87, s97')
        if dbg == 2: A('s_mov_b32 s87, s74')
        for i in range(16):
            A(f'v_mov_b32 v31, s{76+i}\nbuffer_store_dword v31, v30, s[4:7], {s(sT0)} offen offset:{4*i}')
    A.label('L_rec_exit')
    A('s_endpgm')
    A(f'''
L_pf:
    s_cmp_eq_u32 {s(sXcc)}, 0
    s_cbranch_scc1 L_sig
    s_bfe_u32 {s(sT0)}, s2, 0x20005
    s_mov_b32 s12, s16
    s_mov_b32 s13, s17
    s_cmp_eq_u32 {s(sT0)}, 1
    s_cselect_b32 s12, s18, s12
    s_cselect_b32 s13, s19, s13
    s_cmp_eq_u32 {s(sT0)}, 2
    s_cselect_b32 s12, s20, s12
    s_cselect_b32 s13, s21, s13
    s_cmp_eq_u32 {s(sT0)}, 3
    s_cselect_b32 s12, s22, s12
    s_cselect_b32 s13, s23, s13
    s_mov_b32 s14, 0x400000
    s_and_b32 {s(sT0)}, s2, 31
    s_lshl_b32 {s(sT0)}, {s(sT0)}, 17
    v_lshlrev_b32 v5, 4, v0
    ''')
    for i in range(32):
        A(f'buffer_load_dwordx4 v[{8 + 4*(i%8)}:{11 + 4*(i%8)}], v5, s[12:15], {s(sT0)} offen\ns_add_u32 {s(sT0)}, {s(sT0)}, 4096')
    A.label('L_wk_entry')
    ln_signal(A, 'w', 0)
    if not fused: A('s_endpgm')
    if fused: worker.gen_worker(A, sWV, sXcc, sRank, vL, D_FINIT, D_CLAIM, D_SLOW)
    return kernel_head(name) + A.finalize(), kernel_desc(name, 512, 102, 256)

def gen_loop(A, sfx, stf, dbg, nsteps, dl):
    d1a, d1b, d2a, d2b, ps, nd, e2, e3, ef = dl
    L = Cnt(A, 'lgkmcnt', 15); V = Cnt(A, 'vmcnt', 63)
    def stamp(i):
        if dbg: A(f's_mem{"real" if dbg == 2 else ""}time s[{52+2*i}:{53+2*i}]')
    def delay(n):
        if n > 0: A.comment('poll back-off: give the hand-off time to land (an early poll costs a full extra round trip)')
        while n > 0:
            k = min(n, 16); A(f's_nop {k-1}'); n -= k
    def wdelay(tag, na, nb):
        delay(min(na, nb))
        if na != nb:
            A(f's_cmp_lt_u32 {s(sWV)}, 2\ns_cbranch_scc{1 if na < nb else 0} L_wd{tag}_{sfx}')
            delay(abs(na - nb))
            A.label(f'L_wd{tag}_{sfx}')
    def zero(base, n):
        for i in range(0, n, 2): A(f'v_mov_b64 {v(base+i,2)}, 0')
    def ring_prefetch():
        for f in range(4):
            for hf in range(2):
                L.issue(f'ds_read_b128 {v(RING + f*8 + hf*4, 4)}, {v(vWkL)} offset:{f*2048 + hf*1024}')
    GA = (MF, VX, VX + 4)
    GB = (MF + 16, VX, VX + 4)
    RS = (MF + 20, MF + 4, MF + 12)
    sF = 50
    def gatherA(k=0): return V.issue(f'buffer_load_dwordx4 {v(GA[k],4)}, {v(vMw)}, s[4:7], {s(sCur0)} offen sc1')
    def gatherB(k=0): return V.issue(f'buffer_load_dwordx4 {v(GB[k],4)}, {v(vMw)}, s[4:7], {s(sCur1)} offen sc1')
    def poll_tail(tag, per, sets, nreg, issue, check, finish, blind=0):
        A.label(f'L_{tag}f0_{sfx}')
        A(f's_mov_b64 exec, vcc\ns_mov_b64 {s(sF,2)}, vcc')
        if blind == 0: issue(1); delay(ps)
        if blind <= 1: issue(2)
        A.label(f'L_{tag}l_{sfx}')
        for k in (1, 2):
            A(f's_add_u32 {s(sSpin)}, {s(sSpin)}, 1')
            A(f's_waitcnt vmcnt({per})')
            check(k)
            A(f's_andn2_b64 exec, {s(sF,2)}, vcc')
            for i in range(0, nreg, 2): A(f'v_mov_b64 {v(sets[0]+i,2)}, {v(sets[k]+i,2)}')
            A(f's_and_b64 {s(sF,2)}, {s(sF,2)}, vcc')
            A(f's_cbranch_scc0 L_{tag}d_{sfx}')
            A(f's_mov_b64 exec, {s(sF,2)}')
            issue(k)
        A(f's_cmp_lt_u32 {s(sSpin)}, {SPIN_LIMIT}\ns_cbranch_scc1 L_{tag}l_{sfx}\ns_endpgm')
        A.label(f'L_{tag}d_{sfx}')
        A('s_mov_b64 exec, -1')
        finish()
    def add(d, x, y): A(f'v_add_f32 {v(d)}, {v(x)}, {v(y)}')
    def cvt(d, x, y): A(f'v_cvt_pk_bf16_f32 {v(d)}, {v(x)}, {v(y)}')
    def wq(o, tt): return a_((o * 2 + tt) * 8, 8)
    def wv(o, tt): return a_(128 + (o * 2 + tt) * 8, 8)
    def wk(o, tt):
        lam, hi = o & 3, o >> 2
        return v(WK0 + (lam * 2 + tt) * 8, 8) if hi == 0 else v(RING + ((lam * 2 + tt) & 3) * 8, 8)
    QA, KA, VA = (Q0, Q1), (K0, K1), (V0, V1)
    def mq(o, tt): smf(A, QA[tt], MF + 4 * o, wq(o, tt))
    def mk(o, tt): smf(A, KA[tt], MF + 4 * o, wk(o, tt))
    def mv(o, tt): smf(A, VA[tt], MF + 4 * o, wv(o, tt))
    def chkA(k=0): A(f'v_cmp_lt_u32 vcc, {s(sSent)}, {v(GA[k])}')
    def chkB(k=0): A(f'v_cmp_lt_u32 vcc, {s(sSent)}, {v(GB[k])}')
    ring_prefetch(); zero(ACC, 24)
    A(f's_mov_b32 {s(sSpin)}, 0')
    LIN = 'lin' in EXP
    ordA = ([1, 2][:e3] + [0]) if LIN else list(range(e3 + 1))
    ordR = ([1, 2][:e2] + [0]) if LIN else list(range(e2 + 1))
    for k in ordA: gatherA(k)
    if nd == 2: gatherB()
    A.label(f'L_loop_{sfx}')
    if LIN:
        for n, k in enumerate(ordA[:-1]):
            A(f's_waitcnt vmcnt({e3 - n})')
            chkA(k)
            A(f'ds_write_b128 {v(vMw)}, {v(GA[k],4)}')
            A(f'v_mov_b64 {v(MF+2,2)}, {v(GA[k]+2,2)}\nv_mov_b64 {v(MF,2)}, {v(GA[k],2)}')
            A(f's_cbranch_vccz L_aok_{sfx}')
    A(f's_waitcnt vmcnt({0 if LIN else e3 + (nd == 2)})')
    chkA()
    L.issue(f'ds_write_b128 {v(vMw)}, {v(MF,4)}')
    A(f's_cbranch_vccnz L_af0_{sfx}')
    A.label(f'L_aok_{sfx}')
    if nd == 0: gatherB()
    stamp(0)
    mq(0, 0)
    A(f'v_xor_b32 {v(vT3)}, 3072, {v(vMw)}')
    mk(0, 0); mq(0, 1)
    if 'a3' not in EXP: mk(0, 1)
    if 'a5' in EXP: mv(0, 0)
    L.wait_all()
    A('s_barrier')
    stamp(1)
    MR = {1: vMr1, 2: vMr2, 3: vT3}
    mft = {}
    def mfread(o):
        lam, hi = o & 3, o >> 2
        mft[o] = L.issue(f'ds_read_b128 {v(MF + 4*o, 4)}, {v(MR[lam])} offset:{hi*4096}')
    mfread(1); mfread(2); mfread(3)
    if 'a3' in EXP: mk(0, 1)
    if 'a5' not in EXP: mv(0, 0)
    if nd == 1: gatherB()
    mv(0, 1)
    L.wait(mft[1])
    mq(1, 0); mk(1, 0); mq(1, 1); mk(1, 1)
    VL = [(o, t) for o in range(8) for t in range(2)][2:]
    def nv():
        if VL: mv(*VL.pop(0))
    nvb = next((int(e[2:]) for e in EXP if e.startswith('vb')), 0)
    nvc = next((int(e[2:]) for e in EXP if e.startswith('vc')), 0)
    early = 'be' in EXP
    L.wait(mft[2])
    mq(2, 0); mk(2, 0)
    if not early: mq(2, 1); mk(2, 1)
    L.wait_all()
    for _ in range(nvb): nv()
    if not early: mq(3, 0)
    if nd == 1: mk(3, 0); mq(3, 1); mk(3, 1)
    A('s_waitcnt vmcnt(0)')
    chkB()
    L.issue(f'ds_write_b128 {v(vMw)}, {v(MF+16,4)} offset:4096')
    A(f's_cbranch_vccnz L_bf0_{sfx}')
    A.label(f'L_bok_{sfx}')
    if dbg == 1: A(f's_add_u32 s88, s88, {s(sSpin)}')
    if dbg == 2: stamp(2)
    if early: mq(2, 1); mk(2, 1); mq(3, 0); mk(3, 0)
    else: mk(3, 0); mq(3, 1); mk(3, 1); mq(4, 0)
    L.wait_all()
    A('s_barrier')
    rt = {}
    def refill(lam, tt, hf):
        f = lam * 2 + tt
        rt[(lam, tt)] = L.issue(f'ds_read_b128 {v(RING + (f & 3)*8 + hf*4, 4)}, {v(vWkL)} offset:{f*2048 + hf*1024}')
    kxt = {}
    def kxload(i):
        kxt[i] = L.issue(f'ds_read_b128 {v(RING + 4*i, 4)}, {v(vKXr)} offset:{i*1024}')
    mfread(5); mfread(6); mfread(7)
    if early: mq(3, 1); mk(3, 1); mq(4, 0)
    mk(4, 0); refill(2, 0, 0)
    mq(4, 1); refill(2, 0, 1)
    mk(4, 1); refill(2, 1, 0)
    for _ in range(nvc): nv()
    refill(2, 1, 1)
    V.issue(f'buffer_store_dword {v(vIdx)}, {v(vMs)}, s[4:7], {s(sNext)} offen{stf}')
    if 'nog1' not in EXP:
        L.wait(mft[5])
        mk(5, 0); refill(3, 0, 0)
        mk(5, 1); refill(3, 0, 1)
        mq(5, 0); refill(3, 1, 0)
        mq(5, 1); refill(3, 1, 1)
        V.issue(f'buffer_load_dwordx4 {v(VX,4)}, {v(vVXg)}, s[4:7], {s(sVXo)} offen sc1')
        L.wait(rt[(2, 1)])
        mk(6, 0); kxload(0)
        mk(6, 1); kxload(1)
        mq(6, 0); kxload(2)
        L.wait(rt[(3, 1)])
        mk(7, 0); kxload(3)
        mk(7, 1); kxload(4)
        mq(7, 0); kxload(5)
        tvx = V.issue(f'buffer_load_dwordx4 {v(VX+4,4)}, {v(vVXg)}, s[4:7], {s(sVXo)} offen offset:1024 sc1')
        mq(6, 1); kxload(6); add(K0, K0, K0 + 1)
        mq(7, 1); kxload(7)
        if dbg != 2: stamp(2)
        add(K0 + 1, K0 + 2, K0 + 3)
        add(K1, K1, K1 + 1); add(K1 + 1, K1 + 2, K1 + 3)
        add(Q0, Q0, Q0 + 1); add(Q0 + 1, Q0 + 2, Q0 + 3)
        cvt(SP + 1, K0, K1); cvt(SP + 3, K0 + 1, K1 + 1)
        add(Q1, Q1, Q1 + 1); add(Q1 + 1, Q1 + 2, Q1 + 3)
        cvt(vT0, Q0, Q1); cvt(vT1, Q0 + 1, Q1 + 1)
        L.issue(f'ds_write2_b32 {v(vXQw)}, {v(vT0)}, {v(vT1)} offset0:0 offset1:{2*XQP//4}')
        L.issue(f'ds_write2_b32 {v(vXQw)}, {v(SP+1)}, {v(SP+3)} offset0:{XQP//4} offset1:{3*XQP//4}')
    else:
        L.wait(mft[5])
        mq(5, 0)
        V.issue(f'buffer_load_dwordx4 {v(VX,4)}, {v(vVXg)}, s[4:7], {s(sVXo)} offen sc1')
        mk(5, 0); refill(3, 0, 0)
        mq(5, 1); refill(3, 0, 1)
        mk(5, 1); refill(3, 1, 0)
        L.wait(rt[(2, 0)])
        mq(6, 0); refill(3, 1, 1)
        mk(6, 0); kxload(0)
        tvx = V.issue(f'buffer_load_dwordx4 {v(VX+4,4)}, {v(vVXg)}, s[4:7], {s(sVXo)} offen offset:1024 sc1')
        mq(7, 0); kxload(1)
        L.wait(rt[(3, 0)])
        mk(7, 0); kxload(4)
        mq(6, 1); kxload(5)
        mk(6, 1); add(Q0, Q0, Q0 + 1)
        L.wait(rt[(3, 1)])
        mq(7, 1); add(Q0 + 1, Q0 + 2, Q0 + 3)
        mk(7, 1)
        if dbg != 2: stamp(2)
        add(K0, K0, K0 + 1); add(K0 + 1, K0 + 2, K0 + 3)
        add(Q1, Q1, Q1 + 1); add(Q1 + 1, Q1 + 2, Q1 + 3)
        cvt(vT0, Q0, Q1); cvt(vT1, Q0 + 1, Q1 + 1)
        L.issue(f'ds_write2_b32 {v(vXQw)}, {v(vT0)}, {v(vT1)} offset0:0 offset1:{2*XQP//4}')
        add(K1, K1, K1 + 1); add(K1 + 1, K1 + 2, K1 + 3)
        cvt(SP + 1, K0, K1); cvt(SP + 3, K0 + 1, K1 + 1)
        L.issue(f'ds_write2_b32 {v(vXQw)}, {v(SP+1)}, {v(SP+3)} offset0:{XQP//4} offset1:{3*XQP//4}')
    if 'nog1' not in EXP:
        for _ in range(4): nv()
    else:
        nv(); kxload(2)
        nv(); kxload(3)
        nv(); kxload(6)
        nv(); kxload(7)
        nv()
    L.wait_all()
    A('s_barrier')
    stamp(3)
    if 'trace' in EXP: A('s_memrealtime s[52:53]')
    QF, KMF, SA = ACC, MF, MF + 16
    qt, kt = {}, {}
    def qread(ks): qt[ks] = L.issue(f'ds_read_b128 {v(QF + 4*ks, 4)}, {v(vXQr)} offset:{ks*64}')
    def kread(ks): kt[ks] = L.issue(f'ds_read_b128 {v(KMF + 4*ks, 4)}, {v(vXKr)} offset:{ks*64}')
    qread(0); qread(1)
    nv(); qread(2)
    nv(); qread(3)
    nv(); kread(0)
    nv(); kread(1)
    nv(); kread(2)
    nv(); kread(3)
    nv()
    A(f's_mov_b32 m0, {s(sKXm)}')
    while VL: nv()
    TX0, TX1, TM = SA, SA + 4, SA + 8
    def mm(d, a, b, c, k=32):
        n = 4 if k == 32 else 2
        A(f'v_mfma_f32_16x16x{k}_bf16 {v(d,4)}, {v(a,n)}, {v(b,n)}, {c}')
    L.wait(qt[3])
    for ks in range(4):
        mm(TX0, RING + 4 * ks, QF + 4 * ks, '0' if ks == 0 else v(TX0, 4))
        if ks == 0 and 'nodma' not in EXP: V.issue(f'buffer_load_dwordx4 {v(vMw)}, s[4:7], {s(sKXo)} offen sc1 lds')
        if ks == 1 and 'nodma' not in EXP: V.issue(f'buffer_load_dwordx4 {v(vMw)}, s[4:7], {s(sT0)} offen sc1 lds')
        if ks == 2: add(V0, V0, V0 + 1); add(V0 + 1, V0 + 2, V0 + 3)
        if ks == 3: cvt(SP, V0, V0 + 1); cvt(SP + 2, V1, V1 + 1)
        mm(TX1, RING + 16 + 4 * ks, QF + 4 * ks, '0' if ks == 0 else v(TX1, 4))
        if ks == 0: A(f's_add_u32 m0, {s(sKXm)}, 4096\ns_add_u32 {s(sT0)}, {s(sKXo)}, {16*8192}')
        if ks == 1: A(f'v_mov_b32 {v(vT0)}, {s(sStep)}')
        if ks == 2: add(V1, V1, V1 + 1); add(V1 + 1, V1 + 2, V1 + 3)
    L.wait(kt[3])
    M_, T_ = vT2, vT3
    mm(TM, KMF, QF, '0')
    def kvst(): V.issue(f'buffer_store_dwordx4 {v(SP,4)}, {v(vMw)}, s[4:7], {s(sKMo)} offen sc1')
    if 'st' not in EXP: kvst()
    mm(TM, KMF + 4, QF + 4, v(TM, 4))
    if 'nokv' not in EXP: V.issue(f'buffer_store_dword {v(vT0)}, off, s[4:7], {s(sProg)} sc1')
    if 'trace' in EXP:
        A(f's_lshl_b32 s54, {s(sH)}, 8\ns_lshl_b32 s55, {s(sStep)}, 2\ns_add_u32 s54, s54, s55\ns_add_u32 s54, s54, {WS_DBG + 65536}\ns_cmp_eq_u32 {s(sWV)}, 0\ns_cselect_b32 s54, s54, 0x7ffffff0\nv_mov_b32 {v(vT1)}, s52')
        V.issue(f'buffer_store_dword {v(vT1)}, off, s[4:7], s54')
    A(f's_cmp_eq_u32 {s(sStep)}, {nsteps-1}')
    mm(TM, KMF + 8, QF + 8, v(TM, 4))
    A(f'v_max3_f32 {v(M_)}, {v(TX0)}, {v(TX0+1)}, {v(TX0+2)}')
    A(f'v_max3_f32 {v(T_)}, {v(TX0+3)}, {v(TX1)}, {v(TX1+1)}')
    mm(TM, KMF + 12, QF + 12, v(TM, 4))
    A(f's_cbranch_scc1 L_rec_fin')
    if 'st' in EXP: kvst()
    stamp(4)
    wt = {}
    def wofill(T, hf):
        wt[T] = L.issue(f'ds_read_b128 {v(MF + (T & 3)*8 + hf*4, 4)}, {v(vWkL)} offset:{16384 + T*2048 + hf*1024}')
    PM, PX = ACC, ACC + 4
    OL, O0_, O1_ = ACC + 8, V0, V1
    A(f'''
    v_max3_f32 {v(M_)}, {v(M_)}, {v(TX1+2)}, {v(TX1+3)}
    v_max_f32 {v(M_)}, {v(M_)}, {v(T_)}
    ''')
    wofill(0, 0); wofill(0, 1); wofill(1, 0); wofill(1, 1)
    A(f'''
    v_max3_f32 {v(T_)}, {v(M_)}, {v(TM)}, {v(TM+1)}
    v_max3_f32 {v(M_)}, {v(M_)}, {v(TM)}, {v(TM+1)}
    v_mov_b32 {v(PM+1)}, 0
    v_permlane32_swap_b32 {v(M_)}, {v(T_)}
    v_max_f32 {v(vT0)}, {v(M_)}, {v(T_)}
    v_max_f32 {v(vT1)}, {v(M_)}, {v(T_)}
    v_permlane16_swap_b32 {v(vT0)}, {v(vT1)}
    v_max_f32 {v(M_)}, {v(vT0)}, {v(vT1)}
    v_mul_f32 {v(M_)}, {s(sC)}, {v(M_)}
    ''')
    def pkf(x): A(f'v_pk_fma_f32 {v(x,2)}, {v(x,2)}, {s(sC,2)}, {v(M_,2)} op_sel_hi:[1,1,0] neg_lo:[0,0,1] neg_hi:[0,0,1]')
    def ex(x): A(f'v_exp_f32 {v(x)}, {v(x)}')
    pkf(TM); pkf(TX0); pkf(TX0 + 2); pkf(TX1); pkf(TX1 + 2)
    ex(TM); ex(TM + 1); ex(TX0)
    cvt(PM, TM, TM + 1)
    ex(TX0 + 1); ex(TX0 + 2)
    mm(OL, ONES, PM, '0', 16)
    ex(TX0 + 3); cvt(PX, TX0, TX0 + 1)
    mm(O0_, SP, PM, '0', 16)
    ex(TX1); cvt(PX + 1, TX0 + 2, TX0 + 3)
    mm(O1_, SP + 2, PM, '0', 16)
    ex(TX1 + 1); ex(TX1 + 2); ex(TX1 + 3)
    cvt(PX + 2, TX1, TX1 + 1); cvt(PX + 3, TX1 + 2, TX1 + 3)
    stamp(5)
    V.wait(tvx)
    mm(OL, ONES, PX, v(OL, 4))
    wofill(2, 0); wofill(2, 1)
    mm(O0_, VX, PX, v(O0_, 4))
    wofill(3, 0); wofill(3, 1)
    mm(O1_, VX + 4, PX, v(O1_, 4))
    WA = RING
    A(f'v_rcp_f32 {v(M_)}, {v(OL)}')
    zero(WA, 2)
    OX = ACC + 12
    def mul(x): A(f'v_mul_f32 {v(x)}, {v(M_)}, {v(x)}')
    for r in range(4): mul(O0_ + r)
    cvt(OX, O0_, O0_ + 1); cvt(OX + 1, O0_ + 2, O0_ + 3)
    for r in range(4): mul(O1_ + r)
    cvt(OX + 2, O1_, O1_ + 1); cvt(OX + 3, O1_ + 2, O1_ + 3)
    L.issue(f'ds_write_b128 {v(vXOw)}, {v(OX,4)}')
    zero(WA + 2, 30)
    if 'hint' in EXP:
        A(f'''
        s_add_u32 {s(sSt1)}, {s(sStep)}, 1
        v_and_b32 {v(ACC+8)}, 0x1f0, {v(vMw)}
        v_lshrrev_b32 {v(vT3)}, 2, {v(ACC+8)}
        v_lshlrev_b32 {v(ACC+8)}, 3, {v(ACC+8)}
        v_mov_b32 {v(ACC+9)}, {s(sSt1)}
        ''')
    stamp(6)
    L.wait_all()
    A('s_barrier')
    if dbg != 2: stamp(7)
    OA = V0
    ot0 = L.issue(f'ds_read_b128 {v(OA,4)}, {v(vXOr)}')
    ot1 = L.issue(f'ds_read_b128 {v(OA+4,4)}, {v(vXOr)} offset:128')
    if 'hint' in EXP: V.issue(f'buffer_store_dword {v(ACC+9)}, {v(ACC+8)}, s[4:7], {s(sHw)} offen{stf}')
    ht = {}
    def hpoll(k): ht[k] = V.issue(f'buffer_load_dword {v(vT0+k)}, {v(vT3)}, s[4:7], {s(sHr)} offen sc1')
    def hchk(k): A(f'v_cmp_gt_u32 vcc, {s(sSt1)}, {v(vT0+k)}')
    A(f'''
    s_add_u32 {s(sKXo)}, {s(sKXo)}, {32*8192}
    s_xor_b32 {s(sKXm)}, {s(sKXm)}, {LDS_KX ^ (LDS_KX + 8192)}
    s_add_u32 {s(sVXo)}, {s(sVXo)}, {32*128*64}
    s_add_u32 {s(sKMo)}, {s(sKMo)}, {32*4096}
    v_xor_b32 {v(vKXr)}, {LDS_KX ^ (LDS_KX + 8192)}, {v(vKXr)}
    ''')
    L.wait(ot0)
    PO = ACC
    PU = VX
    def hs(T, j): add(PO + 2 * T + j, WA + 4 * T + 2 * j, WA + 4 * T + 2 * j + 1)
    def tag(Qd):
        x = PO + 8 * Qd
        A(f'v_add_u32 {v(x)}, {s(sTa)}, {v(x)}')
        A(f'v_and_or_b32 {v(x)}, {v(x)}, {v(vMask)}, {s(sTb)}')
    def pk(P):
        Qd, p = P >> 1, P & 1
        for j in range(2): cvt(PU + 4 * Qd + 2 * j + p, PO + 4 * P + j, PO + 4 * P + 2 + j)
    def pstore(Qd):
        if 'pl2' in EXP: V.issue(f'buffer_store_dwordx4 {v(PU+4*Qd,4)}, {v(vPs)}, s[4:7], {(0, s(sHr))[Qd]} offen{stf}')
        else: V.issue(f'buffer_store_dwordx4 {v(PU+4*Qd,4)}, {v(vPs)}, s[4:7], 0 offen offset:{Qd*128}{stf}')
    for T in range(8):
        smf(A, WA + 4 * T, OA, v(WO0 + 8 * T, 8))
        if T == 0: L.wait(ot1)
        if T in (1, 3, 5) and 'hint' in EXP: hpoll(T >> 1)
        if T >= 2: hs(T - 2, 0)
        if T >= 4 and ('w2' not in EXP): L.wait(wt[T])
        if T in (4, 6) and 'w2' in EXP: L.wait(wt[T + 1])
        smf(A, WA + 4 * T, OA + 4, v(MF + (T & 3) * 8, 8))
        if T < 4: wofill(T + 4, 0); wofill(T + 4, 1)
        if T >= 2: hs(T - 2, 1)
        if T in (2, 6): tag(T >> 2)
        if T >= 3 and T % 2 == 1: pk((T - 3) // 2)
        if T == 5:
            pstore(0)
            if dbg == 2: stamp(7)
    hs(6, 0); hs(6, 1); hs(7, 0); hs(7, 1); pk(3); pstore(1)
    stamp(8)
    RD, RT = vT0, MF + 28
    A(f's_mov_b32 {s(sSpin)}, 0')
    def red_issue(k=0):
        for i in range(2):
            V.issue(f'buffer_load_dwordx4 {v(RS[k] + 4*i, 4)}, {v(vPl)}, s[4:7], 0 offen offset:{i*(2048 if "pl3" in EXP else 1024)} sc1')
    def chkR(k=0, spec=False):
        A(f'v_bitop3_b32 {v(RT)}, {v(RS[k])}, {v(RS[k]+4)}, {s(sTg)} bitop3:0x7e')
        if k == 0 or spec: mm(RD, RS[k], SEL, '0')
        A(f'v_and_b32 {v(RT)}, 1, {v(RT)}')
        A(f'v_cmp_ne_u32 vcc, 0, {v(RT)}')
        if k == 0 or spec: mm(RD, RS[k] + 4, SEL, v(RD, 4))
    A(f's_add_u32 {s(sT1)}, {s(sStep)}, 2\ns_lshr_b32 {s(sT1)}, {s(sT1)}, 2')
    if 'noref' not in EXP: A(f's_cmp_eq_u32 {s(sStep)}, 16\ns_cselect_b32 {s(sT1)}, 15, {s(sT1)}')
    A(f's_min_u32 {s(sT1)}, {s(sT1)}, 15')
    A(f's_cmp_lt_u32 {s(sT1)}, {s(sReady)}\ns_cbranch_scc0 L_need_{sfx}')
    A.label(f'L_have_{sfx}')
    if 'hint' in EXP:
        V.wait(ht[1])
        hchk(0)
        A(f's_cbranch_vccz L_h1_{sfx}')
        hchk(1)
        A(f's_cbranch_vccz L_h2_{sfx}')
        hpoll(0)
        V.wait(ht[2])
        hchk(2)
        A(f's_cbranch_vccnz L_hf_{sfx}')
        delay(e3)
        A.label(f'L_h2_{sfx}')
        delay(e2)
    A.label(f'L_h1_{sfx}')
    wdelay('1', d1a, d1b)
    red_issue(ordR[0])
    ring_prefetch(); zero(ACC, 24)
    for n in range(1, e2 + 1):
        delay(ef - 20 if n == 1 else ef); red_issue(ordR[n])
    if LIN:
        for n, k in enumerate(ordR[:-1]):
            A(f's_waitcnt vmcnt({2*(e2 - n)})')
            chkR(k, True)
            A(f's_cbranch_vccz L_rok_{sfx}')
    A(f's_waitcnt vmcnt({0 if LIN else 2*e2})')
    chkR(0)
    A(f's_cbranch_vccnz L_rf0_{sfx}')
    A.label(f'L_rok_{sfx}')
    stamp(9)
    if dbg == 1: A(f's_add_u32 s89, s89, {s(sSpin)}')
    A(f'''
    v_permlane32_swap_b32 {v(RD)}, {v(RD+2)}
    v_permlane32_swap_b32 {v(RD+1)}, {v(RD+3)}
    v_add_f32 {v(RD)}, {v(RD)}, {v(RD+2)}
    v_add_f32 {v(RD+1)}, {v(RD+1)}, {v(RD+3)}
    v_permlane16_swap_b32 {v(RD)}, {v(RD+1)}
    v_add_f32 {v(RD)}, {v(RD)}, {v(RD+1)}
    v_mov_b32_dpp {v(RD+1)}, {v(RD)} quad_perm:[1,0,3,2] row_mask:0xf bank_mask:0xf
    v_cvt_pk_bf16_f32 {v(RD)}, {v(RD)}, {v(RD+1)}
    v_min_u32 {v(RD)}, {s(sSent)}, {v(RD)}
    buffer_store_dword {v(RD)}, {v(vMs)}, s[4:7], {s(sNext)} offen{stf}
    s_xor_b32 {s(sCur0)}, {s(sCur0)}, 8192
    s_xor_b32 {s(sCur1)}, {s(sCur1)}, 8192
    s_xor_b32 {s(sNext)}, {s(sNext)}, 8192
    s_xor_b32 {s(sTg)}, {s(sTg)}, 1
    s_xor_b32 {s(sTb)}, {s(sTb)}, 0x10000
    s_xor_b32 {s(sTa)}, {s(sTa)}, 0x10000
    s_add_u32 {s(sStep)}, {s(sStep)}, 1
    s_mov_b32 {s(sSpin)}, 0
    ''')
    stamp(10)
    wdelay('2', d2a, d2b)
    for k in range(e3 + 1):
        if k: delay(ef)
        gatherA(ordA[k])
        if nd == 2 and k == e3: gatherB()
    if dbg == 2:
        A(f's_cmp_lg_u32 {s(sStep)}, 31\ns_cbranch_scc1 L_nd1_{sfx}\ns_waitcnt lgkmcnt(0)')
        for i in range(11): A(f's_mov_b32 s{76+i}, s{52+2*i}')
        A(f'L_nd1_{sfx}:\ns_cmp_lg_u32 {s(sStep)}, 32\ns_cbranch_scc1 L_nd2_{sfx}\ns_waitcnt lgkmcnt(0)')
        A(f's_mov_b32 s88, s52\ns_mov_b32 s89, s56\ns_mov_b32 s74, s58\nL_nd2_{sfx}:')
    elif dbg:
        A('s_waitcnt lgkmcnt(0)')
        for i in range(10):
            A(f's_sub_u32 {s(sT0)}, s{52+2*(i+1)}, s{52+2*i}\ns_add_u32 s{76+i}, s{76+i}, {s(sT0)}')
        A(f's_sub_u32 {s(sT0)}, s52, s87\ns_cmp_eq_u32 {s(sStep)}, 1\ns_cselect_b32 {s(sT0)}, 0, {s(sT0)}\ns_add_u32 s86, s86, {s(sT0)}\ns_mov_b32 s87, s72')
    A(f's_branch L_loop_{sfx}')
    A.label(f'L_need_{sfx}')
    ensure(A, sfx)
    A(f's_branch L_have_{sfx}')
    A.label(f'L_hf_{sfx}')
    hpoll(1)
    A.label(f'L_hl_{sfx}')
    for k in (0, 1):
        A('s_waitcnt vmcnt(1)')
        hchk(k)
        A(f's_cbranch_vccz L_hd_{sfx}')
        hpoll(k)
    A(f's_add_u32 {s(sSpin)}, {s(sSpin)}, 1\ns_cmp_lt_u32 {s(sSpin)}, {SPIN_LIMIT}\ns_cbranch_scc1 L_hl_{sfx}\ns_endpgm')
    A.label(f'L_hd_{sfx}')
    delay(ef)
    A(f's_branch L_h1_{sfx}')
    poll_tail('a', 1, GA, 4, gatherA, chkA, lambda: A(f'ds_write_b128 {v(vMw)}, {v(MF,4)}\ns_branch L_aok_{sfx}'), blind=0 if LIN else e3)
    poll_tail('b', 1, GB, 4, gatherB, chkB, lambda: A(f'ds_write_b128 {v(vMw)}, {v(MF+16,4)} offset:4096\ns_branch L_bok_{sfx}'))
    def finR():
        mm(RD, RS[0], SEL, '0'); mm(RD, RS[0] + 4, SEL, v(RD, 4)); A(f's_branch L_rok_{sfx}')
    poll_tail('r', 2, RS, 8, red_issue, chkR, finR, blind=0 if LIN else e2)

HDR = '; @launch grid=(256,1,1) block=(256,1,1) lds=163840\n.amdgcn_target "amdgcn-amd-amdhsa--gfx950"\n'
```

```python
from asmlib import *
from layout import *
import worker
import struct

def f2u(x): return struct.unpack('<I', struct.pack('<f', x))[0]

LDS_M, LDS_KX, LDS_XQ, LDS_XO, LDS_MISC = 0, 8192, 24576, 29184, 31744
REG_A, REG_B = 32768, 49152
XQP, XOP = 272, 272
SPIN_LIMIT = 1 << 18
D_CLAIM, D_SLOW, D_RINIT, D_FINIT = 0, 4, 8, 128
EXP = {'pl2'}

(vIdx, vMw, vWkL, vXQw, vXQr, vXKr, vKXr, vVXg, vXOw, vXOr,
 vPs, vPl, vMs, vMask, vMr1, vMr2) = range(16)
SEL = 16
ONES = 20
vT0, vT1, vT2, vT3 = 24, 25, 26, 27
VX, MF, ACC, RING, SP = 28, 36, 68, 92, 124
Q0, K0, Q1, K1, V0, V1 = 68, 72, 76, 80, 84, 88
WK0, WO0 = 128, 192
sH, sWV, sStep, sTag, sCur0, sCur1, sNext, sKXo, sVXo, sKMo, sT0, sT1, sT2, sM0w = range(24, 38)
sC, sSpin, sXcc, sRank, sKXm = 44, 46, 47, 48, 49
sTb, sTa, sTg, sSent = 40, 41, 42, 43
sReady, sFlag, sProg = 38, 39, 27
sHw, sHr, sSt1 = 100, 101, 3
WS_HINT = WS_FLAG + 12288

def v(i, n=1): return f'v{i}' if n == 1 else f'v[{i}:{i+n-1}]'
def a_(i, n=1): return f'a{i}' if n == 1 else f'a[{i}:{i+n-1}]'
def s(i, n=1): return f's{i}' if n == 1 else f's[{i}:{i+n-1}]'

class Cnt:
    def __init__(self, A, name, mx): self.A, self.name, self.mx, self.n = A, name, mx, 0
    def issue(self, text):
        self.A(text); self.n += 1; return self.n
    def wait(self, tok):
        k = min(self.n - tok, self.mx)
        self.A(f's_waitcnt {self.name}({k})')
    def wait_all(self): self.A(f's_waitcnt {self.name}(0)')

def smf(A, d, a, b): A(f'v_smfmac_f32_16x16x64_bf16 {v(d,4)}, {v(a,4)}, {b}, {v(vIdx)}')

def ensure(A, tag, inline=False):
    A(f'''
    s_mov_b32 {s(sT2)}, 0
L_ens_{tag}:
    s_cmp_lt_u32 {s(sT1)}, {s(sReady)}
    s_cbranch_scc1 L_ensd_{tag}
    v_mbcnt_lo_u32_b32 {v(vT0)}, -1, 0
    v_mbcnt_hi_u32_b32 {v(vT0)}, -1, {v(vT0)}
    v_and_b32 {v(vT0)}, 15, {v(vT0)}
    v_lshlrev_b32 {v(vT0)}, 2, {v(vT0)}
    buffer_load_dword {v(vT1)}, {v(vT0)}, s[4:7], {s(sFlag)} offen sc0 sc1
    s_add_u32 {s(sT2)}, {s(sT2)}, 1
    s_cmp_lt_u32 {s(sT2)}, {SPIN_LIMIT}
    s_cbranch_scc0 L_rec_exit
    s_waitcnt vmcnt(0)
    v_and_b32 {v(vT1)}, 255, {v(vT1)}
    v_cmp_ne_u32 vcc, 2, {v(vT1)}
    s_or_b32 {s(sT0)}, vcc_lo, 0x10000
    s_ff1_i32_b32 {s(sReady)}, {s(sT0)}
    s_branch L_ens_{tag}
L_ensd_{tag}:
    ''')

def ln_signal(A, tag, younger):
    A(f'''
    s_waitcnt vmcnt({younger})
    s_barrier
    s_cmp_lg_u32 {s(sWV)}, 1
    s_cbranch_scc1 L_nosig_{tag}
    s_cmp_eq_u32 s75, 0x7ffffff0
    s_cbranch_scc1 L_nosig_{tag}
    s_mov_b32 {s(sSpin)}, 0
    s_branch L_sigc_{tag}
L_sigp_{tag}:
    buffer_load_dword v96, off, s[8:11], 0 offset:{D_FINIT} sc0 sc1
    s_add_u32 {s(sSpin)}, {s(sSpin)}, 1
    s_cmp_lt_u32 {s(sSpin)}, {SPIN_LIMIT}
    s_cbranch_scc0 L_rec_exit
    s_waitcnt vmcnt(0)
L_sigc_{tag}:
    v_readfirstlane_b32 {s(sT0)}, v96
    s_cmp_eq_u32 {s(sT0)}, 0
    s_cbranch_scc1 L_sigp_{tag}
    s_mov_b64 exec, 1
    buffer_atomic_add v96, v98, s[4:7], s75 offen
    s_mov_b64 exec, -1
L_nosig_{tag}:
    s_mov_b32 s75, 0x7ffffff0
    ''')

def gen_rec(name, nwg=256, dbg=False, nsteps=NSEG, dl=(30, 70, 60, 20, 20, 0, 1, 1, 30), fused=False):
    A = Asm()
    vL = 99
    import pre
    A(f'''
    s_cmp_ge_u32 s2, {nwg}
    s_cbranch_scc1 L_rec_exit
    {'s_memrealtime s[96:97]' if dbg or 'wt' in EXP or 'hd' in EXP else ''}
    s_load_dwordx4 s[52:55], s[0:1], 0
    s_load_dwordx8 s[16:23], s[0:1], 16
    s_load_dwordx4 s[36:39], s[0:1], 88
    s_load_dwordx2 s[50:51], s[0:1], 64
    v_lshrrev_b32 v1, 6, v0
    v_and_b32 {v(vL)}, 63, v0
    s_getreg_b32 {s(sXcc)}, hwreg(HW_REG_XCC_ID)
    v_readfirstlane_b32 {s(sWV)}, v1
    s_and_b32 {s(sXcc)}, {s(sXcc)}, 15
    {'s_add_u32 s47, s47, 1' if 'allslow' in EXP else ''}
    {'s_bfe_u32 s34, s2, 0x10003' if 'halfslow' in EXP else ''}
    {'s_add_u32 s47, s47, s34' if 'halfslow' in EXP else ''}
    ''')
    pre.ln_addr(A)
    A(f'''
    s_waitcnt lgkmcnt(0)
    {'s_mov_b32 s91, s96' if 'wt' in EXP or 'hd' in EXP else ''}
    s_mov_b32 s4, s38
    s_mov_b32 s5, s39
    s_mov_b32 s6, {WS_SIZE}
    s_mov_b32 s7, 0x20000
    s_mov_b32 s8, s36
    s_mov_b32 s9, s37
    s_mov_b32 s10, 256
    s_mov_b32 s11, 0x20000
    s_mov_b32 s12, s52
    s_mov_b32 s13, s53
    s_mov_b32 s14, 0x200000
    s_mov_b32 s15, 0x20000
    ''')
    pre.ln_load(A)
    A(f'''
    v_mov_b32 v98, 0
    v_mov_b32 v97, 32
    s_mov_b32 s74, 0
    s_or_b32 {s(sT0)}, {s(sWV)}, {s(sXcc)}
    s_cmp_lg_u32 {s(sT0)}, 0
    s_cbranch_scc1 L_el_skip
    s_mov_b32 s74, 1
    v_mov_b32 v97, 1
    s_mov_b64 exec, 1
    buffer_atomic_add v97, v98, s[8:11], 0 offen offset:{D_CLAIM} sc0
    s_mov_b64 exec, -1
L_el_skip:
    s_cmp_ge_u32 s2, 128
    s_cbranch_scc1 L_no_ln
    {'s_cmp_eq_u32 s47, 0' if 'skipln' in EXP else ''}
    {'s_cbranch_scc1 L_no_ln' if 'skipln' in EXP else ''}
    ''')
    pre.ln_compute(A)
    A(f'''
    buffer_load_dword v96, off, s[8:11], 0 offset:{D_FINIT} sc0 sc1
    s_lshr_b32 s75, s2, 3
    s_lshl_b32 s75, s75, 7
    s_add_u32 s75, s75, {worker.F_LN}
    s_branch L_sig
L_no_ln:
    s_waitcnt vmcnt(0)
    s_mov_b32 s75, 0x7ffffff0
    s_cmp_lg_u32 s2, 128
    s_cbranch_scc1 {'L_sig' if 'nopf' in EXP else 'L_pf'}
    v_lshlrev_b32 v5, 4, v0
    v_mov_b32 v8, 0
    v_mov_b32 v9, 0
    v_mov_b32 v10, 0
    v_mov_b32 v11, 0
    s_mov_b32 {s(sT0)}, {WS_FLAG}
    buffer_store_dwordx4 v[8:11], v5, s[4:7], {s(sT0)} offen sc1
    s_add_u32 {s(sT0)}, {s(sT0)}, 4096
    buffer_store_dwordx4 v[8:11], v5, s[4:7], {s(sT0)} offen sc1
    s_add_u32 {s(sT0)}, {s(sT0)}, 4096
    buffer_store_dwordx4 v[8:11], v5, s[4:7], {s(sT0)} offen sc1
    s_add_u32 {s(sT0)}, {s(sT0)}, 4096
    buffer_store_dwordx4 v[8:11], v5, s[4:7], {s(sT0)} offen sc1
    v_mov_b32 v12, 1
    s_waitcnt vmcnt(0)
    s_barrier
    buffer_store_dword v12, off, s[8:11], 0 offset:{D_FINIT} sc1
L_sig:
    s_cmp_lg_u32 {s(sXcc)}, 0
    s_cbranch_scc1 L_wk_entry
    s_waitcnt vmcnt(5)
    s_cmp_lg_u32 {s(sWV)}, 0
    s_cbranch_scc1 L_rec_elected
    v_mov_b32 v2, {LDS_MISC}
    s_mov_b64 exec, 1
    ds_write_b32 v2, v97
    s_mov_b64 exec, -1
    s_waitcnt lgkmcnt(0)
L_rec_elected:
    s_barrier
    v_mov_b32 v2, {LDS_MISC}
    ds_read_b32 v1, v2
    s_mov_b32 s14, 0x400000
    s_waitcnt lgkmcnt(0)
    v_readfirstlane_b32 {s(sRank)}, v1
    s_cmp_ge_u32 {s(sRank)}, 32
    s_cbranch_scc1 L_wk_entry
L_rec_start:
    s_and_b32 {s(sH)}, {s(sRank)}, 31
    ''')
    if dbg: A('s_memrealtime s[72:73]\ns_waitcnt lgkmcnt(0)\ns_sub_u32 s98, s72, s96')
    tG, tR, tC, tF, tRow, tD0, tD1, tO0, tO1, tTr0, tTr1, tTrO, tA, tN, t7, tX, tY = range(100, 117)
    A(f'''
    v_lshrrev_b32 {v(tG)}, 4, {v(vL)}
    v_bfe_u32 {v(tR)}, {v(vL)}, 2, 2
    v_and_b32 {v(tC)}, 3, {v(vL)}
    v_and_b32 {v(tF)}, 1, {v(tG)}
    v_lshl_or_b32 {v(tF)}, {v(tF)}, 2, {v(tR)}
    v_lshl_add_u32 {v(tRow)}, {v(tG)}, 4, {v(tR)}
    v_lshlrev_b32 {v(tRow)}, 8, {v(tRow)}
    v_lshl_add_u32 {v(tRow)}, {v(tC)}, 3, {v(tRow)}
    s_lshl_b32 {s(sT0)}, {s(sWV)}, 1
    v_xor_b32 {v(tTr0)}, {s(sT0)}, {v(tF)}
    v_lshl_add_u32 {v(tTr0)}, {v(tTr0)}, 5, {v(tRow)}
    s_or_b32 {s(sT0)}, {s(sT0)}, 1
    v_xor_b32 {v(tTr1)}, {s(sT0)}, {v(tF)}
    v_lshl_add_u32 {v(tTr1)}, {v(tTr1)}, 5, {v(tRow)}
    s_lshl_b32 {s(sM0w)}, {s(sWV)}, 15
    v_add_u32 {v(tTrO)}, {s(sM0w)}, {v(tRow)}
    v_and_b32 {v(tN)}, 15, {v(vL)}
    v_lshlrev_b32 {v(vT1)}, 1, {v(tG)}
    v_xor_b32 {v(vT0)}, {v(tN)}, {v(vT1)}
    v_lshlrev_b32 {v(vT0)}, 4, {v(vT0)}
    v_xor_b32 {v(vT1)}, 0x80, {v(vT0)}
    v_lshrrev_b32 {v(vT2)}, 1, {v(tG)}
    v_and_b32 {v(vT3)}, 1, {v(tG)}
    ; D-type: (2*j1 + 16*j0)*8192 + h*256 + 128*w*8192
    v_lshlrev_b32 {v(tX)}, 14, {v(vT2)}
    v_lshl_add_u32 {v(tX)}, {v(vT3)}, 17, {v(tX)}
    s_lshl_b32 {s(sT0)}, {s(sWV)}, 20
    s_lshl_b32 {s(sT1)}, {s(sH)}, 8
    s_add_u32 {s(sT0)}, {s(sT0)}, {s(sT1)}
    v_add_u32 {v(tX)}, {s(sT0)}, {v(tX)}
    v_add_u32 {v(tD0)}, {v(tX)}, {v(vT0)}
    v_add_u32 {v(tD1)}, {v(tX)}, {v(vT1)}
    ; O-type: (32*j1 + j0)*1024 + h*131072 + w*256
    v_lshlrev_b32 {v(tX)}, 15, {v(vT2)}
    v_lshl_add_u32 {v(tX)}, {v(vT3)}, 10, {v(tX)}
    s_lshl_b32 {s(sT0)}, {s(sH)}, 17
    s_lshl_b32 {s(sT1)}, {s(sWV)}, 8
    s_add_u32 {s(sT0)}, {s(sT0)}, {s(sT1)}
    v_add_u32 {v(tX)}, {s(sT0)}, {v(tX)}
    v_add_u32 {v(tO0)}, {v(tX)}, {v(vT0)}
    v_add_u32 {v(tO1)}, {v(tX)}, {v(vT1)}
    ''')
    units = [('q', 0), ('q', 1), ('v', 0), ('v', 1), ('k', 0), ('o', 0), ('k', 1), ('o', 1)]
    PT = {'q': 16, 'k': 18, 'v': 20, 'o': 22}
    def dma_unit(u, th=None):
        mat, hi = units[u]; reg = (REG_A, REG_B)[u & 1]
        A(f's_mov_b32 s12, s{PT[mat]}\ns_mov_b32 s13, s{PT[mat]+1}')
        for ii in range(16):
            if th is not None and ((ii >> 1) & 1) != th: continue
            gb, j = ii >> 2, (ii & 3) * 4
            if mat == 'o': so = e_of(hi, gb, j) * 1024; vo = (tO0, tO1)[gb & 1]
            else: so = (d_of(0, gb, j) + 64 * hi) * 8192; vo = (tD0, tD1)[gb & 1]
            A(f's_add_u32 m0, {s(sM0w)}, {reg + ii * 1024}')
            A(f's_mov_b32 {s(sT0)}, {so}')
            A(f'buffer_load_dwordx4 {v(vo)}, s[12:15], {s(sT0)} offen lds')
    TMPF = 28
    def dest(u, f):
        mat, hi = units[u]
        if u >= 6: return ('v', TMPF + f * 8)
        if mat == 'q': return ('a', (hi * 8 + f) * 8)
        if mat == 'v': return ('a', 128 + (hi * 8 + f) * 8)
        if mat == 'k': return ('v', WK0 + f * 8)
        return ('v', WO0 + f * 8)
    def read_unit(u, th=None):
        mat, hi = units[u]; reg = (REG_A, REG_B)[u & 1]
        for f in range(8):
            if mat == 'o':
                A(f'v_xor_b32 {v(tA)}, {f}, {v(tF)}')
                A(f'v_lshl_add_u32 {v(tA)}, {v(tA)}, 5, {v(tTrO)}')
                A(f'v_add_u32 {v(tA)}, {reg}, {v(tA)}')
            else:
                lam, tt = f >> 1, f & 1
                A(f's_xor_b32 {s(sT0)}, {s(sWV)}, {lam}')
                A(f's_lshl_b32 {s(sT0)}, {s(sT0)}, 15')
                A(f's_add_u32 {s(sT0)}, {s(sT0)}, {reg}')
                A(f'v_add_u32 {v(tA)}, {s(sT0)}, {v((tTr0, tTr1)[tt])}')
            fl, d = dest(u, f)
            for t in range(4):
                if th is not None and (t >> 1) != th: continue
                A(f'ds_read_b64_tr_b16 {fl}[{d+2*t}:{d+2*t+1}], {v(tA)} offset:{t*1024}')
    A('s_cmp_eq_u32 s75, 0x7ffffff0\ns_cbranch_scc1 L_skipsig')
    ln_signal(A, 'r', 0)
    A.label('L_skipsig')
    FINE = 'coarse' not in EXP
    if FINE: dma_unit(0, 0); dma_unit(0, 1); dma_unit(1, 0); dma_unit(1, 1)
    else: dma_unit(0); dma_unit(1)
    A(f'''
    v_lshlrev_b32 {v(vT0)}, 4, {v(vL)}
    v_and_b32 {v(vT1)}, 1, {v(vL)}
    v_mov_b32 {v(vIdx)}, 0xffff4444
    v_mov_b32 {v(vT2)}, 0xffffeeee
    v_cmp_ne_u32 vcc, 0, {v(vT1)}
    v_cndmask_b32 {v(vIdx)}, {v(vIdx)}, {v(vT2)}, vcc
    s_lshl_b32 {s(sT0)}, {s(sWV)}, 10
    v_add_u32 {v(vMw)}, {s(sT0)}, {v(vT0)}
    s_add_u32 {s(sT1)}, {s(sM0w)}, {REG_A}
    v_add_u32 {v(vWkL)}, {s(sT1)}, {v(vT0)}
    v_add_u32 {v(vKXr)}, {LDS_KX}, {v(vT0)}
    v_and_b32 {v(t7)}, 7, {v(vL)}
    s_lshl_b32 {s(sT1)}, {s(sWV)}, 6
    v_mul_u32_u24 {v(vXQw)}, {4*XQP}, {v(tG)}
    v_lshl_add_u32 {v(vXQw)}, {v(tN)}, 2, {v(vXQw)}
    s_add_u32 {s(sT2)}, {s(sT1)}, {LDS_XQ}
    v_add_u32 {v(vXQw)}, {s(sT2)}, {v(vXQw)}
    v_mul_u32_u24 {v(vXQr)}, {2*XQP}, {v(t7)}
    v_lshl_add_u32 {v(vXQr)}, {v(tG)}, 4, {v(vXQr)}
    v_add_u32 {v(vXQr)}, {LDS_XQ}, {v(vXQr)}
    v_lshrrev_b32 {v(tX)}, 2, {v(tN)}
    v_lshl_add_u32 {v(tX)}, {v(tX)}, 1, {v(vT1)}
    v_mul_u32_u24 {v(vXKr)}, {2*XQP}, {v(tX)}
    v_lshl_add_u32 {v(vXKr)}, {v(tG)}, 4, {v(vXKr)}
    v_add_u32 {v(vXKr)}, {LDS_XQ + XQP}, {v(vXKr)}
    v_mul_u32_u24 {v(vXOw)}, {XOP}, {v(t7)}
    v_lshl_add_u32 {v(vXOw)}, {v(tG)}, 4, {v(vXOw)}
    s_add_u32 {s(sT2)}, {s(sT1)}, {LDS_XO}
    v_add_u32 {v(vXOw)}, {s(sT2)}, {v(vXOw)}
    v_lshrrev_b32 {v(tX)}, 1, {v(tN)}
    v_mul_u32_u24 {v(vXOr)}, {XOP}, {v(tX)}
    v_lshl_add_u32 {v(vXOr)}, {v(tG)}, 4, {v(vXOr)}
    v_lshl_add_u32 {v(vXOr)}, {v(vT1)}, 6, {v(vXOr)}
    v_add_u32 {v(vXOr)}, {LDS_XO}, {v(vXOr)}
    v_xor_b32 {v(vMr1)}, 1024, {v(vMw)}
    v_xor_b32 {v(vMr2)}, 2048, {v(vMw)}
    v_mov_b32 {v(vMask)}, 0xfffe0000
    v_lshlrev_b32 {v(vVXg)}, 6, {v(tN)}
    v_lshl_add_u32 {v(vVXg)}, {v(tG)}, 4, {v(vVXg)}
    s_lshl_b32 {s(sT2)}, {s(sH)}, 13
    s_lshl_b32 {s(sT0)}, {s(sWV)}, 11
    s_add_u32 {s(sT2)}, {s(sT2)}, {s(sT0)}
    s_add_u32 {s(sT2)}, {s(sT2)}, {WS_VT}
    v_add_u32 {v(vVXg)}, {s(sT2)}, {v(vVXg)}
    v_lshrrev_b32 {v(vPs)}, 2, {v(tN)}
    v_lshlrev_b32 {v(vPs)}, 14, {v(vPs)}
    v_lshrrev_b32 {v(tX)}, 5, {v(vL)}
    v_lshl_add_u32 {v(vPs)}, {v(tX)}, 13, {v(vPs)}
    v_and_b32 {v(tX)}, 1, {v(tG)}
    v_lshl_add_u32 {v(vPs)}, {v(tX)}, {6 if 'pl3' in EXP else 11}, {v(vPs)}
    v_lshl_add_u32 {v(vPs)}, {v(tC)}, 4, {v(vPs)}
    s_lshl_b32 {s(sT2)}, {s(sWV)}, 16
    s_lshl_b32 {s(sT0)}, {s(sH)}, {7 if 'pl3' in EXP else 6}
    s_add_u32 {s(sT2)}, {s(sT2)}, {s(sT0)}
    s_add_u32 {s(sT2)}, {s(sT2)}, {WS_PART}
    v_add_u32 {v(vPs)}, {s(sT2)}, {v(vPs)}
    v_lshlrev_b32 {v(vPl)}, {7 if 'pl3' in EXP else 6}, {v(tR)}
    v_lshl_add_u32 {v(vPl)}, {v(tG)}, {9 if 'pl3' in EXP else 8}, {v(vPl)}
    v_lshl_add_u32 {v(vPl)}, {v(tC)}, 4, {v(vPl)}
    s_lshl_b32 {s(sT2)}, {s(sH)}, 13
    s_lshl_b32 {s(sT0)}, {s(sWV)}, 11
    {'s_and_b32 s34, s34, 4096' if 'pl3' in EXP else ''}
    {'s_add_u32 s36, s36, s34' if 'pl3' in EXP else ''}
    {'s_and_b32 s34, s25, 1' if 'pl3' in EXP else ''}
    {'s_lshl_b32 s34, s34, 6' if 'pl3' in EXP else ''}
    s_add_u32 {s(sT2)}, {s(sT2)}, {s(sT0)}
    s_add_u32 {s(sT2)}, {s(sT2)}, {WS_PART}
    v_add_u32 {v(vPl)}, {s(sT2)}, {v(vPl)}
    v_bfe_u32 {v(vMs)}, {v(vL)}, 2, 1
    v_lshlrev_b32 {v(vMs)}, 5, {v(vMs)}
    v_lshl_add_u32 {v(vMs)}, {v(tG)}, 3, {v(vMs)}
    v_bfe_u32 {v(tX)}, {v(vL)}, 1, 1
    v_lshl_add_u32 {v(vMs)}, {v(tX)}, 2, {v(vMs)}
    s_lshl_b32 {s(sT2)}, {s(sH)}, 7
    s_lshr_b32 {s(sT0)}, {s(sWV)}, 1
    s_lshl_b32 {s(sT0)}, {s(sT0)}, 12
    s_add_u32 {s(sT2)}, {s(sT2)}, {s(sT0)}
    s_and_b32 {s(sT0)}, {s(sWV)}, 1
    s_lshl_b32 {s(sT0)}, {s(sT0)}, 6
    s_add_u32 {s(sT2)}, {s(sT2)}, {s(sT0)}
    v_add_u32 {v(vMs)}, {s(sT2)}, {v(vMs)}
    v_and_b32 {v(tX)}, 9, {v(vL)}
    v_cmp_ne_u32 vcc, 0, {v(tX)}
    v_mov_b32 {v(tX)}, 0x7ffffff0
    v_cndmask_b32 {v(vMs)}, {v(vMs)}, {v(tX)}, vcc
    ; SEL[d] = ((l&7)>>1 == d) ? ((l&1) ? 0x3f800000 : 0x00003f80) : 0
    v_lshlrev_b32 {v(tX)}, 4, {v(vT1)}
    v_mov_b32 {v(tY)}, 0x3f80
    v_lshlrev_b32 {v(tY)}, {v(tX)}, {v(tY)}
    v_lshrrev_b32 {v(tX)}, 1, {v(t7)}
    v_cmp_eq_u32 vcc, 0, {v(tX)}
    v_cndmask_b32 {v(SEL)}, 0, {v(tY)}, vcc
    v_cmp_eq_u32 vcc, 1, {v(tX)}
    v_cndmask_b32 {v(SEL+1)}, 0, {v(tY)}, vcc
    v_cmp_eq_u32 vcc, 2, {v(tX)}
    v_cndmask_b32 {v(SEL+2)}, 0, {v(tY)}, vcc
    v_cmp_eq_u32 vcc, 3, {v(tX)}
    v_cndmask_b32 {v(SEL+3)}, 0, {v(tY)}, vcc
    s_mov_b32 {s(sC)}, {f2u(SM_C)}
    s_mov_b32 {s(sSent)}, 0xfffeffff
    s_mov_b32 {s(sC+1)}, {f2u(SM_C)}
    v_mov_b32 {v(ONES)}, 0x3f803f80
    v_mov_b32 {v(ONES+1)}, 0x3f803f80
    v_mov_b32 {v(ONES+2)}, 0x3f803f80
    v_mov_b32 {v(ONES+3)}, 0x3f803f80
    ''')
    A(f'''
    s_mov_b32 s56, s54
    s_mov_b32 s57, s55
    s_mov_b32 s58, 8192
    s_mov_b32 s59, 0x20000
    v_bfe_u32 {v(tX)}, {v(vL)}, 1, 1
    v_lshl_add_u32 {v(tX)}, {v(tX)}, 5, {v(tG)}
    v_bfe_u32 {v(tY)}, {v(vL)}, 2, 1
    v_lshl_add_u32 {v(tX)}, {v(tY)}, 9, {v(tX)}
    v_lshlrev_b32 {v(tX)}, 1, {v(tX)}
    s_lshr_b32 {s(sT0)}, {s(sH)}, 3
    s_lshl_b32 {s(sT0)}, {s(sT0)}, 8
    s_lshr_b32 {s(sT1)}, {s(sWV)}, 1
    s_lshl_b32 {s(sT1)}, {s(sT1)}, 7
    s_add_u32 {s(sT0)}, {s(sT0)}, {s(sT1)}
    s_bfe_u32 {s(sT1)}, {s(sH)}, 0x20001
    s_lshl_b32 {s(sT1)}, {s(sT1)}, 3
    s_add_u32 {s(sT0)}, {s(sT0)}, {s(sT1)}
    s_and_b32 {s(sT1)}, {s(sH)}, 1
    s_lshl_b32 {s(sT1)}, {s(sT1)}, 12
    s_add_u32 {s(sT0)}, {s(sT0)}, {s(sT1)}
    s_and_b32 {s(sT1)}, {s(sWV)}, 1
    s_lshl_b32 {s(sT1)}, {s(sT1)}, 11
    s_add_u32 {s(sT0)}, {s(sT0)}, {s(sT1)}
    buffer_load_ushort v92, {v(tX)}, s[56:59], {s(sT0)} offen
    buffer_load_ushort v93, {v(tX)}, s[56:59], {s(sT0)} offen offset:32
    v_mov_b32 v120, -1
    v_mov_b32 v121, -1
    v_mov_b32 v122, -1
    v_mov_b32 v123, -1
    s_mov_b32 {s(sT1)}, {WS_MF + 8192}
    buffer_store_dwordx4 v[120:123], {v(vPl)}, s[4:7], 0 offen sc1
    buffer_store_dwordx4 v[120:123], {v(vPl)}, s[4:7], 0 offen offset:{2048 if 'pl3' in EXP else 1024} sc1
    buffer_store_dword v120, {v(vMs)}, s[4:7], {s(sT1)} offen sc1
    ''')
    for u in range(8):
        if u == 2:
            A(f'''
            v_lshl_or_b32 v92, v93, 16, v92
            v_min_u32 v92, {s(sSent)}, v92
            s_mov_b32 {s(sT1)}, {WS_MF}
            buffer_store_dword v92, {v(vMs)}, s[4:7], {s(sT1)} offen sc1
            ''')
        if u == 4:
            A(f'''
            s_cmp_lg_u32 {s(sWV)}, 0
            s_cbranch_scc1 L_nori
            v_mov_b32 v92, 1
            v_mov_b32 v93, 0
            s_mov_b64 exec, 1
            buffer_atomic_add v92, v93, s[8:11], 0 offen offset:{D_RINIT}
            s_mov_b64 exec, -1
L_nori:
            ''')
        if FINE:
            for th in range(2):
                su = 2 * u + th
                younger = 8 * min(3, 15 - su) + (5 if su < 3 else 0)
                A(f's_waitcnt vmcnt({younger})')
                A('s_barrier')
                read_unit(u, th)
                A('s_waitcnt lgkmcnt(0)')
                A('s_barrier')
                if u + 2 < 8: dma_unit(u + 2, th)
        else:
            A(f's_waitcnt vmcnt({21 if u == 0 else 0 if u == 7 else 16})')
            A('s_barrier')
            read_unit(u)
            A('s_waitcnt lgkmcnt(0)')
            A('s_barrier')
            if u + 2 < 8: dma_unit(u + 2)
        if u >= 6:
            for f in range(8):
                for hf in range(2):
                    A(f'ds_write_b128 {v(vWkL)}, {v(TMPF + f*8 + hf*4, 4)} offset:{(u-6)*16384 + f*2048 + hf*1024}')
            A('s_waitcnt lgkmcnt(0)')
    if dbg: A('s_memrealtime s[72:73]\ns_waitcnt lgkmcnt(0)\ns_sub_u32 s99, s72, s96')
    A(f'''
    s_mov_b32 {s(sStep)}, 0
    s_mov_b32 {s(sTg)}, 0
    s_mov_b32 {s(sTb)}, 0
    s_mov_b32 {s(sTa)}, 0x10000
    s_mov_b32 {s(sCur0)}, {WS_MF}
    s_mov_b32 {s(sCur1)}, {WS_MF + 4096}
    s_mov_b32 {s(sNext)}, {WS_MF + 8192}
    s_lshl_b32 {s(sKXo)}, {s(sH)}, 12
    s_add_u32 {s(sKMo)}, {s(sKXo)}, {WS_KM}
    s_add_u32 {s(sKXo)}, {s(sKXo)}, {WS_K}
    s_mov_b32 {s(sVXo)}, 0
    s_lshl_b32 {s(sKXm)}, {s(sWV)}, 10
    s_add_u32 {s(sKXm)}, {s(sKXm)}, {LDS_KX}
    s_mov_b32 {s(sReady)}, {0 if fused else 16}
    s_lshr_b32 {s(sFlag)}, {s(sH)}, 1
    s_lshl_b32 {s(sFlag)}, {s(sFlag)}, 6
    s_add_u32 {s(sFlag)}, {s(sFlag)}, {WS_FLAG}
    s_lshl_b32 {s(sProg)}, {s(sH)}, 7
    s_add_u32 {s(sProg)}, {s(sProg)}, {worker.F_PROG}
    s_cmp_eq_u32 {s(sWV)}, 0
    s_cselect_b32 {s(sProg)}, {s(sProg)}, 0x7ffffff0
    s_lshl_b32 {s(sHw)}, {s(sH)}, 2
    s_add_u32 {s(sHw)}, {s(sHw)}, {WS_HINT}
    s_cmp_eq_u32 {s(sWV)}, 0
    s_cselect_b32 {s(sHw)}, {s(sHw)}, 0x7ffffff0
    s_lshl_b32 {s(sHr)}, {s(sH)}, 7
    s_add_u32 {s(sHr)}, {s(sHr)}, {WS_HINT}
    {'s_mov_b32 s101, 4096' if 'pl2' in EXP else ''}
    ''')
    A(f'''
    v_mov_b32 {v(vT0)}, 0
    s_mov_b32 {s(sSpin)}, 0
L_ri_poll:
    buffer_load_dwordx3 {v(MF,3)}, {v(vT0)}, s[8:11], 0 offen offset:{D_CLAIM} sc0 sc1
    buffer_load_dword {v(MF+3)}, {v(vT0)}, s[8:11], 0 offen offset:{D_FINIT} sc0 sc1
    s_add_u32 {s(sSpin)}, {s(sSpin)}, 1
    s_cmp_lt_u32 {s(sSpin)}, {SPIN_LIMIT}
    s_cbranch_scc0 L_rec_exit
    s_waitcnt vmcnt(0)
    v_readfirstlane_b32 {s(sT0)}, {v(MF+2)}
    v_readfirstlane_b32 {s(sT1)}, {v(MF+3)}
    v_readfirstlane_b32 {s(sRank)}, {v(MF+1)}
    s_cmp_lt_u32 {s(sT0)}, 32
    s_cbranch_scc1 L_ri_poll
    s_cmp_lt_u32 {s(sT1)}, 1
    s_cbranch_scc1 L_ri_poll
    s_mov_b32 {s(sT1)}, 0
    ''')
    ensure(A, 'p', inline=True)
    A(f'''
    s_mov_b32 m0, {s(sKXm)}
    s_add_u32 {s(sT0)}, {s(sKXo)}, {16*8192}
    buffer_load_dwordx4 {v(vMw)}, s[4:7], {s(sKXo)} offen sc1 lds
    s_add_u32 m0, {s(sKXm)}, 4096
    s_nop 0
    buffer_load_dwordx4 {v(vMw)}, s[4:7], {s(sT0)} offen sc1 lds
    s_add_u32 {s(sKXo)}, {s(sKXo)}, {32*8192}
    s_xor_b32 {s(sKXm)}, {s(sKXm)}, {LDS_KX ^ (LDS_KX + 8192)}
    ''')
    if dbg:
        for i in range(76, 90): A(f's_mov_b32 s{i}, 0')
        A('s_memrealtime s[92:93]\ns_memtime s[94:95]\ns_waitcnt lgkmcnt(0)\ns_mov_b32 s90, s92\ns_mov_b32 s91, s94\ns_sub_u32 s97, s92, s96')
    if 'hd' in EXP:
        A('s_memrealtime s[92:93]\ns_memtime s[94:95]\ns_waitcnt lgkmcnt(0)\ns_sub_u32 s90, s92, s91\nv_mov_b32 v30, s90\nv_mov_b32 v31, 0\ns_mov_b64 exec, 1\nbuffer_atomic_umax v30, v31, s[8:11], 0 offen offset:16\ns_mov_b64 exec, -1')
    A(f'''
    s_cmp_lg_u32 {s(sRank)}, 0
    s_cbranch_scc1 L_rec_slow_entry
    ''')
    gen_loop(A, 'f', '', dbg, nsteps, dl)
    A.label('L_rec_slow_entry')
    gen_loop(A, 's', ' sc1', dbg, nsteps, dl)
    A.label('L_rec_fin')
    worker.tstamp(A, 6)
    if 'st' in EXP: A(f'buffer_store_dwordx4 {v(SP,4)}, {v(vMw)}, s[4:7], {s(sKMo)} offen sc1')
    A(f'v_mov_b32 {v(vT0)}, {nsteps}\ns_waitcnt vmcnt(0)\ns_barrier\nbuffer_store_dword {v(vT0)}, off, s[4:7], {s(sProg)} sc1')
    worker.tstamp(A, 7)
    if 'hd' in EXP:
        A('s_memrealtime s[96:97]\ns_memtime s[98:99]\ns_waitcnt lgkmcnt(0)\ns_sub_u32 s90, s96, s91\ns_sub_u32 s92, s96, s92\ns_sub_u32 s94, s98, s94\nv_mov_b32 v31, 0')
        for off, r in ((20, 's90'), (24, 's92'), (28, 's94')):
            A(f'v_mov_b32 v30, {r}\ns_mov_b64 exec, 1\nbuffer_atomic_umax v30, v31, s[8:11], 0 offen offset:{off}\ns_mov_b64 exec, -1\ns_nop 4')
    if dbg:
        A(f'''
        s_memrealtime s[92:93]
        s_memtime s[94:95]
        s_waitcnt lgkmcnt(0)
        s_sub_u32 s90, s92, s90
        s_sub_u32 s91, s94, s91
        s_lshl_b32 {s(sT0)}, {s(sH)}, 2
        s_add_u32 {s(sT0)}, {s(sT0)}, {s(sWV)}
        s_lshl_b32 {s(sT0)}, {s(sT0)}, 6
        s_add_u32 {s(sT0)}, {s(sT0)}, {WS_DBG}
        v_mov_b32 v30, 0
        ''')
        A('s_lshr_b32 s98, s98, 2\ns_lshr_b32 s99, s99, 2\ns_lshl_b32 s98, s98, 20\ns_lshl_b32 s99, s99, 10\ns_or_b32 s87, s98, s99\ns_lshr_b32 s97, s97, 2\ns_or_b32 s87, s87, s97')
        if dbg == 2: A('s_mov_b32 s87, s74')
        for i in range(16):
            A(f'v_mov_b32 v31, s{76+i}\nbuffer_store_dword v31, v30, s[4:7], {s(sT0)} offen offset:{4*i}')
    A.label('L_rec_exit')
    A('s_endpgm')
    A(f'''
L_pf:
    s_cmp_eq_u32 {s(sXcc)}, 0
    s_cbranch_scc1 L_sig
    s_bfe_u32 {s(sT0)}, s2, 0x20005
    s_mov_b32 s12, s16
    s_mov_b32 s13, s17
    s_cmp_eq_u32 {s(sT0)}, 1
    s_cselect_b32 s12, s18, s12
    s_cselect_b32 s13, s19, s13
    s_cmp_eq_u32 {s(sT0)}, 2
    s_cselect_b32 s12, s20, s12
    s_cselect_b32 s13, s21, s13
    s_cmp_eq_u32 {s(sT0)}, 3
    s_cselect_b32 s12, s22, s12
    s_cselect_b32 s13, s23, s13
    s_mov_b32 s14, 0x400000
    s_and_b32 {s(sT0)}, s2, 31
    s_lshl_b32 {s(sT0)}, {s(sT0)}, 17
    v_lshlrev_b32 v5, 4, v0
    ''')
    for i in range(32):
        A(f'buffer_load_dwordx4 v[{8 + 4*(i%8)}:{11 + 4*(i%8)}], v5, s[12:15], {s(sT0)} offen\ns_add_u32 {s(sT0)}, {s(sT0)}, 4096')
    A.label('L_wk_entry')
    ln_signal(A, 'w', 0)
    if not fused: A('s_endpgm')
    if fused: worker.gen_worker(A, sWV, sXcc, sRank, vL, D_FINIT, D_CLAIM, D_SLOW)
    return kernel_head(name) + A.finalize(), kernel_desc(name, 512, 102, 256)

def gen_loop(A, sfx, stf, dbg, nsteps, dl):
    d1a, d1b, d2a, d2b, ps, nd, e2, e3, ef = dl
    L = Cnt(A, 'lgkmcnt', 15); V = Cnt(A, 'vmcnt', 63)
    def stamp(i):
        if dbg: A(f's_mem{"real" if dbg == 2 else ""}time s[{52+2*i}:{53+2*i}]')
    def delay(n):
        if n > 0: A.comment('poll back-off: give the hand-off time to land (an early poll costs a full extra round trip)')
        while n > 0:
            k = min(n, 16); A(f's_nop {k-1}'); n -= k
    def wdelay(tag, na, nb):
        delay(min(na, nb))
        if na != nb:
            A(f's_cmp_lt_u32 {s(sWV)}, 2\ns_cbranch_scc{1 if na < nb else 0} L_wd{tag}_{sfx}')
            delay(abs(na - nb))
            A.label(f'L_wd{tag}_{sfx}')
    def zero(base, n):
        for i in range(0, n, 2): A(f'v_mov_b64 {v(base+i,2)}, 0')
    def ring_prefetch():
        for f in range(4):
            for hf in range(2):
                L.issue(f'ds_read_b128 {v(RING + f*8 + hf*4, 4)}, {v(vWkL)} offset:{f*2048 + hf*1024}')
    GA = (MF, VX, VX + 4)
    GB = (MF + 16, VX, VX + 4)
    RS = (MF + 20, MF + 4, MF + 12)
    sF = 50
    def gatherA(k=0): return V.issue(f'buffer_load_dwordx4 {v(GA[k],4)}, {v(vMw)}, s[4:7], {s(sCur0)} offen sc1')
    def gatherB(k=0): return V.issue(f'buffer_load_dwordx4 {v(GB[k],4)}, {v(vMw)}, s[4:7], {s(sCur1)} offen sc1')
    def poll_tail(tag, per, sets, nreg, issue, check, finish, blind=0):
        A.label(f'L_{tag}f0_{sfx}')
        A(f's_mov_b64 exec, vcc\ns_mov_b64 {s(sF,2)}, vcc')
        if blind == 0: issue(1); delay(ps)
        if blind <= 1: issue(2)
        A.label(f'L_{tag}l_{sfx}')
        for k in (1, 2):
            A(f's_add_u32 {s(sSpin)}, {s(sSpin)}, 1')
            A(f's_waitcnt vmcnt({per})')
            check(k)
            A(f's_andn2_b64 exec, {s(sF,2)}, vcc')
            for i in range(0, nreg, 2): A(f'v_mov_b64 {v(sets[0]+i,2)}, {v(sets[k]+i,2)}')
            A(f's_and_b64 {s(sF,2)}, {s(sF,2)}, vcc')
            A(f's_cbranch_scc0 L_{tag}d_{sfx}')
            A(f's_mov_b64 exec, {s(sF,2)}')
            issue(k)
        A(f's_cmp_lt_u32 {s(sSpin)}, {SPIN_LIMIT}\ns_cbranch_scc1 L_{tag}l_{sfx}\ns_endpgm')
        A.label(f'L_{tag}d_{sfx}')
        A('s_mov_b64 exec, -1')
        finish()
    def add(d, x, y): A(f'v_add_f32 {v(d)}, {v(x)}, {v(y)}')
    def cvt(d, x, y): A(f'v_cvt_pk_bf16_f32 {v(d)}, {v(x)}, {v(y)}')
    def wq(o, tt): return a_((o * 2 + tt) * 8, 8)
    def wv(o, tt): return a_(128 + (o * 2 + tt) * 8, 8)
    def wk(o, tt):
        lam, hi = o & 3, o >> 2
        return v(WK0 + (lam * 2 + tt) * 8, 8) if hi == 0 else v(RING + ((lam * 2 + tt) & 3) * 8, 8)
    QA, KA, VA = (Q0, Q1), (K0, K1), (V0, V1)
    def mq(o, tt): smf(A, QA[tt], MF + 4 * o, wq(o, tt))
    def mk(o, tt): smf(A, KA[tt], MF + 4 * o, wk(o, tt))
    def mv(o, tt): smf(A, VA[tt], MF + 4 * o, wv(o, tt))
    def chkA(k=0): A(f'v_cmp_lt_u32 vcc, {s(sSent)}, {v(GA[k])}')
    def chkB(k=0): A(f'v_cmp_lt_u32 vcc, {s(sSent)}, {v(GB[k])}')
    ring_prefetch(); zero(ACC, 24)
    A(f's_mov_b32 {s(sSpin)}, 0')
    LIN = 'lin' in EXP
    ordA = ([1, 2][:e3] + [0]) if LIN else list(range(e3 + 1))
    ordR = ([1, 2][:e2] + [0]) if LIN else list(range(e2 + 1))
    for k in ordA: gatherA(k)
    if nd == 2: gatherB()
    A.label(f'L_loop_{sfx}')
    if LIN:
        for n, k in enumerate(ordA[:-1]):
            A(f's_waitcnt vmcnt({e3 - n})')
            chkA(k)
            A(f'ds_write_b128 {v(vMw)}, {v(GA[k],4)}')
            A(f'v_mov_b64 {v(MF+2,2)}, {v(GA[k]+2,2)}\nv_mov_b64 {v(MF,2)}, {v(GA[k],2)}')
            A(f's_cbranch_vccz L_aok_{sfx}')
    A(f's_waitcnt vmcnt({0 if LIN else e3 + (nd == 2)})')
    chkA()
    L.issue(f'ds_write_b128 {v(vMw)}, {v(MF,4)}')
    A(f's_cbranch_vccnz L_af0_{sfx}')
    A.label(f'L_aok_{sfx}')
    if nd == 0: gatherB()
    stamp(0)
    mq(0, 0)
    A(f'v_xor_b32 {v(vT3)}, 3072, {v(vMw)}')
    mk(0, 0); mq(0, 1)
    if 'a3' not in EXP: mk(0, 1)
    if 'a5' in EXP: mv(0, 0)
    L.wait_all()
    A('s_barrier')
    stamp(1)
    MR = {1: vMr1, 2: vMr2, 3: vT3}
    mft = {}
    def mfread(o):
        lam, hi = o & 3, o >> 2
        mft[o] = L.issue(f'ds_read_b128 {v(MF + 4*o, 4)}, {v(MR[lam])} offset:{hi*4096}')
    mfread(1); mfread(2); mfread(3)
    if 'a3' in EXP: mk(0, 1)
    if 'a5' not in EXP: mv(0, 0)
    if nd == 1: gatherB()
    mv(0, 1)
    L.wait(mft[1])
    mq(1, 0); mk(1, 0); mq(1, 1); mk(1, 1)
    VL = [(o, t) for o in range(8) for t in range(2)][2:]
    def nv():
        if VL: mv(*VL.pop(0))
    nvb = next((int(e[2:]) for e in EXP if e.startswith('vb')), 0)
    nvc = next((int(e[2:]) for e in EXP if e.startswith('vc')), 0)
    early = 'be' in EXP
    L.wait(mft[2])
    mq(2, 0); mk(2, 0)
    if not early: mq(2, 1); mk(2, 1)
    L.wait_all()
    for _ in range(nvb): nv()
    if not early: mq(3, 0)
    if nd == 1: mk(3, 0); mq(3, 1); mk(3, 1)
    A('s_waitcnt vmcnt(0)')
    chkB()
    L.issue(f'ds_write_b128 {v(vMw)}, {v(MF+16,4)} offset:4096')
    A(f's_cbranch_vccnz L_bf0_{sfx}')
    A.label(f'L_bok_{sfx}')
    if dbg == 1: A(f's_add_u32 s88, s88, {s(sSpin)}')
    if dbg == 2: stamp(2)
    if early: mq(2, 1); mk(2, 1); mq(3, 0); mk(3, 0)
    else: mk(3, 0); mq(3, 1); mk(3, 1); mq(4, 0)
    L.wait_all()
    A('s_barrier')
    rt = {}
    def refill(lam, tt, hf):
        f = lam * 2 + tt
        rt[(lam, tt)] = L.issue(f'ds_read_b128 {v(RING + (f & 3)*8 + hf*4, 4)}, {v(vWkL)} offset:{f*2048 + hf*1024}')
    kxt = {}
    def kxload(i):
        kxt[i] = L.issue(f'ds_read_b128 {v(RING + 4*i, 4)}, {v(vKXr)} offset:{i*1024}')
    mfread(5); mfread(6); mfread(7)
    if early: mq(3, 1); mk(3, 1); mq(4, 0)
    mk(4, 0); refill(2, 0, 0)
    mq(4, 1); refill(2, 0, 1)
    mk(4, 1); refill(2, 1, 0)
    for _ in range(nvc): nv()
    refill(2, 1, 1)
    V.issue(f'buffer_store_dword {v(vIdx)}, {v(vMs)}, s[4:7], {s(sNext)} offen{stf}')
    if 'nog1' not in EXP:
        L.wait(mft[5])
        mk(5, 0); refill(3, 0, 0)
        mk(5, 1); refill(3, 0, 1)
        mq(5, 0); refill(3, 1, 0)
        mq(5, 1); refill(3, 1, 1)
        V.issue(f'buffer_load_dwordx4 {v(VX,4)}, {v(vVXg)}, s[4:7], {s(sVXo)} offen sc1')
        L.wait(rt[(2, 1)])
        mk(6, 0); kxload(0)
        mk(6, 1); kxload(1)
        mq(6, 0); kxload(2)
        L.wait(rt[(3, 1)])
        mk(7, 0); kxload(3)
        mk(7, 1); kxload(4)
        mq(7, 0); kxload(5)
        tvx = V.issue(f'buffer_load_dwordx4 {v(VX+4,4)}, {v(vVXg)}, s[4:7], {s(sVXo)} offen offset:1024 sc1')
        mq(6, 1); kxload(6); add(K0, K0, K0 + 1)
        mq(7, 1); kxload(7)
        if dbg != 2: stamp(2)
        add(K0 + 1, K0 + 2, K0 + 3)
        add(K1, K1, K1 + 1); add(K1 + 1, K1 + 2, K1 + 3)
        add(Q0, Q0, Q0 + 1); add(Q0 + 1, Q0 + 2, Q0 + 3)
        cvt(SP + 1, K0, K1); cvt(SP + 3, K0 + 1, K1 + 1)
        add(Q1, Q1, Q1 + 1); add(Q1 + 1, Q1 + 2, Q1 + 3)
        cvt(vT0, Q0, Q1); cvt(vT1, Q0 + 1, Q1 + 1)
        L.issue(f'ds_write2_b32 {v(vXQw)}, {v(vT0)}, {v(vT1)} offset0:0 offset1:{2*XQP//4}')
        L.issue(f'ds_write2_b32 {v(vXQw)}, {v(SP+1)}, {v(SP+3)} offset0:{XQP//4} offset1:{3*XQP//4}')
    else:
        L.wait(mft[5])
        mq(5, 0)
        V.issue(f'buffer_load_dwordx4 {v(VX,4)}, {v(vVXg)}, s[4:7], {s(sVXo)} offen sc1')
        mk(5, 0); refill(3, 0, 0)
        mq(5, 1); refill(3, 0, 1)
        mk(5, 1); refill(3, 1, 0)
        L.wait(rt[(2, 0)])
        mq(6, 0); refill(3, 1, 1)
        mk(6, 0); kxload(0)
        tvx = V.issue(f'buffer_load_dwordx4 {v(VX+4,4)}, {v(vVXg)}, s[4:7], {s(sVXo)} offen offset:1024 sc1')
        mq(7, 0); kxload(1)
        L.wait(rt[(3, 0)])
        mk(7, 0); kxload(4)
        mq(6, 1); kxload(5)
        mk(6, 1); add(Q0, Q0, Q0 + 1)
        L.wait(rt[(3, 1)])
        mq(7, 1); add(Q0 + 1, Q0 + 2, Q0 + 3)
        mk(7, 1)
        if dbg != 2: stamp(2)
        add(K0, K0, K0 + 1); add(K0 + 1, K0 + 2, K0 + 3)
        add(Q1, Q1, Q1 + 1); add(Q1 + 1, Q1 + 2, Q1 + 3)
        cvt(vT0, Q0, Q1); cvt(vT1, Q0 + 1, Q1 + 1)
        L.issue(f'ds_write2_b32 {v(vXQw)}, {v(vT0)}, {v(vT1)} offset0:0 offset1:{2*XQP//4}')
        add(K1, K1, K1 + 1); add(K1 + 1, K1 + 2, K1 + 3)
        cvt(SP + 1, K0, K1); cvt(SP + 3, K0 + 1, K1 + 1)
        L.issue(f'ds_write2_b32 {v(vXQw)}, {v(SP+1)}, {v(SP+3)} offset0:{XQP//4} offset1:{3*XQP//4}')
    if 'nog1' not in EXP:
        for _ in range(4): nv()
    else:
        nv(); kxload(2)
        nv(); kxload(3)
        nv(); kxload(6)
        nv(); kxload(7)
        nv()
    L.wait_all()
    A('s_barrier')
    stamp(3)
    if 'trace' in EXP: A('s_memrealtime s[52:53]')
    QF, KMF, SA = ACC, MF, MF + 16
    qt, kt = {}, {}
    def qread(ks): qt[ks] = L.issue(f'ds_read_b128 {v(QF + 4*ks, 4)}, {v(vXQr)} offset:{ks*64}')
    def kread(ks): kt[ks] = L.issue(f'ds_read_b128 {v(KMF + 4*ks, 4)}, {v(vXKr)} offset:{ks*64}')
    qread(0); qread(1)
    nv(); qread(2)
    nv(); qread(3)
    nv(); kread(0)
    nv(); kread(1)
    nv(); kread(2)
    nv(); kread(3)
    nv()
    A(f's_mov_b32 m0, {s(sKXm)}')
    while VL: nv()
    TX0, TX1, TM = SA, SA + 4, SA + 8
    def mm(d, a, b, c, k=32):
        n = 4 if k == 32 else 2
        A(f'v_mfma_f32_16x16x{k}_bf16 {v(d,4)}, {v(a,n)}, {v(b,n)}, {c}')
    L.wait(qt[3])
    for ks in range(4):
        mm(TX0, RING + 4 * ks, QF + 4 * ks, '0' if ks == 0 else v(TX0, 4))
        if ks == 0 and 'nodma' not in EXP: V.issue(f'buffer_load_dwordx4 {v(vMw)}, s[4:7], {s(sKXo)} offen sc1 lds')
        if ks == 1 and 'nodma' not in EXP: V.issue(f'buffer_load_dwordx4 {v(vMw)}, s[4:7], {s(sT0)} offen sc1 lds')
        if ks == 2: add(V0, V0, V0 + 1); add(V0 + 1, V0 + 2, V0 + 3)
        if ks == 3: cvt(SP, V0, V0 + 1); cvt(SP + 2, V1, V1 + 1)
        mm(TX1, RING + 16 + 4 * ks, QF + 4 * ks, '0' if ks == 0 else v(TX1, 4))
        if ks == 0: A(f's_add_u32 m0, {s(sKXm)}, 4096\ns_add_u32 {s(sT0)}, {s(sKXo)}, {16*8192}')
        if ks == 1: A(f'v_mov_b32 {v(vT0)}, {s(sStep)}')
        if ks == 2: add(V1, V1, V1 + 1); add(V1 + 1, V1 + 2, V1 + 3)
    L.wait(kt[3])
    M_, T_ = vT2, vT3
    mm(TM, KMF, QF, '0')
    def kvst(): V.issue(f'buffer_store_dwordx4 {v(SP,4)}, {v(vMw)}, s[4:7], {s(sKMo)} offen sc1')
    if 'st' not in EXP: kvst()
    mm(TM, KMF + 4, QF + 4, v(TM, 4))
    if 'nokv' not in EXP: V.issue(f'buffer_store_dword {v(vT0)}, off, s[4:7], {s(sProg)} sc1')
    if 'trace' in EXP:
        A(f's_lshl_b32 s54, {s(sH)}, 8\ns_lshl_b32 s55, {s(sStep)}, 2\ns_add_u32 s54, s54, s55\ns_add_u32 s54, s54, {WS_DBG + 65536}\ns_cmp_eq_u32 {s(sWV)}, 0\ns_cselect_b32 s54, s54, 0x7ffffff0\nv_mov_b32 {v(vT1)}, s52')
        V.issue(f'buffer_store_dword {v(vT1)}, off, s[4:7], s54')
    A(f's_cmp_eq_u32 {s(sStep)}, {nsteps-1}')
    mm(TM, KMF + 8, QF + 8, v(TM, 4))
    A(f'v_max3_f32 {v(M_)}, {v(TX0)}, {v(TX0+1)}, {v(TX0+2)}')
    A(f'v_max3_f32 {v(T_)}, {v(TX0+3)}, {v(TX1)}, {v(TX1+1)}')
    mm(TM, KMF + 12, QF + 12, v(TM, 4))
    A(f's_cbranch_scc1 L_rec_fin')
    if 'st' in EXP: kvst()
    stamp(4)
    wt = {}
    def wofill(T, hf):
        wt[T] = L.issue(f'ds_read_b128 {v(MF + (T & 3)*8 + hf*4, 4)}, {v(vWkL)} offset:{16384 + T*2048 + hf*1024}')
    PM, PX = ACC, ACC + 4
    OL, O0_, O1_ = ACC + 8, V0, V1
    A(f'''
    v_max3_f32 {v(M_)}, {v(M_)}, {v(TX1+2)}, {v(TX1+3)}
    v_max_f32 {v(M_)}, {v(M_)}, {v(T_)}
    ''')
    wofill(0, 0); wofill(0, 1); wofill(1, 0); wofill(1, 1)
    A(f'''
    v_max3_f32 {v(T_)}, {v(M_)}, {v(TM)}, {v(TM+1)}
    v_max3_f32 {v(M_)}, {v(M_)}, {v(TM)}, {v(TM+1)}
    v_mov_b32 {v(PM+1)}, 0
    v_permlane32_swap_b32 {v(M_)}, {v(T_)}
    v_max_f32 {v(vT0)}, {v(M_)}, {v(T_)}
    v_max_f32 {v(vT1)}, {v(M_)}, {v(T_)}
    v_permlane16_swap_b32 {v(vT0)}, {v(vT1)}
    v_max_f32 {v(M_)}, {v(vT0)}, {v(vT1)}
    v_mul_f32 {v(M_)}, {s(sC)}, {v(M_)}
    ''')
    def pkf(x): A(f'v_pk_fma_f32 {v(x,2)}, {v(x,2)}, {s(sC,2)}, {v(M_,2)} op_sel_hi:[1,1,0] neg_lo:[0,0,1] neg_hi:[0,0,1]')
    def ex(x): A(f'v_exp_f32 {v(x)}, {v(x)}')
    pkf(TM); pkf(TX0); pkf(TX0 + 2); pkf(TX1); pkf(TX1 + 2)
    ex(TM); ex(TM + 1); ex(TX0)
    cvt(PM, TM, TM + 1)
    ex(TX0 + 1); ex(TX0 + 2)
    mm(OL, ONES, PM, '0', 16)
    ex(TX0 + 3); cvt(PX, TX0, TX0 + 1)
    mm(O0_, SP, PM, '0', 16)
    ex(TX1); cvt(PX + 1, TX0 + 2, TX0 + 3)
    mm(O1_, SP + 2, PM, '0', 16)
    ex(TX1 + 1); ex(TX1 + 2); ex(TX1 + 3)
    cvt(PX + 2, TX1, TX1 + 1); cvt(PX + 3, TX1 + 2, TX1 + 3)
    stamp(5)
    V.wait(tvx)
    mm(OL, ONES, PX, v(OL, 4))
    wofill(2, 0); wofill(2, 1)
    mm(O0_, VX, PX, v(O0_, 4))
    wofill(3, 0); wofill(3, 1)
    mm(O1_, VX + 4, PX, v(O1_, 4))
    WA = RING
    A(f'v_rcp_f32 {v(M_)}, {v(OL)}')
    zero(WA, 2)
    OX = ACC + 12
    def mul(x): A(f'v_mul_f32 {v(x)}, {v(M_)}, {v(x)}')
    for r in range(4): mul(O0_ + r)
    cvt(OX, O0_, O0_ + 1); cvt(OX + 1, O0_ + 2, O0_ + 3)
    for r in range(4): mul(O1_ + r)
    cvt(OX + 2, O1_, O1_ + 1); cvt(OX + 3, O1_ + 2, O1_ + 3)
    L.issue(f'ds_write_b128 {v(vXOw)}, {v(OX,4)}')
    zero(WA + 2, 30)
    if 'hint' in EXP:
        A(f'''
        s_add_u32 {s(sSt1)}, {s(sStep)}, 1
        v_and_b32 {v(ACC+8)}, 0x1f0, {v(vMw)}
        v_lshrrev_b32 {v(vT3)}, 2, {v(ACC+8)}
        v_lshlrev_b32 {v(ACC+8)}, 3, {v(ACC+8)}
        v_mov_b32 {v(ACC+9)}, {s(sSt1)}
        ''')
    stamp(6)
    L.wait_all()
    A('s_barrier')
    if dbg != 2: stamp(7)
    OA = V0
    ot0 = L.issue(f'ds_read_b128 {v(OA,4)}, {v(vXOr)}')
    ot1 = L.issue(f'ds_read_b128 {v(OA+4,4)}, {v(vXOr)} offset:128')
    if 'hint' in EXP: V.issue(f'buffer_store_dword {v(ACC+9)}, {v(ACC+8)}, s[4:7], {s(sHw)} offen{stf}')
    ht = {}
    def hpoll(k): ht[k] = V.issue(f'buffer_load_dword {v(vT0+k)}, {v(vT3)}, s[4:7], {s(sHr)} offen sc1')
    def hchk(k): A(f'v_cmp_gt_u32 vcc, {s(sSt1)}, {v(vT0+k)}')
    A(f'''
    s_add_u32 {s(sKXo)}, {s(sKXo)}, {32*8192}
    s_xor_b32 {s(sKXm)}, {s(sKXm)}, {LDS_KX ^ (LDS_KX + 8192)}
    s_add_u32 {s(sVXo)}, {s(sVXo)}, {32*128*64}
    s_add_u32 {s(sKMo)}, {s(sKMo)}, {32*4096}
    v_xor_b32 {v(vKXr)}, {LDS_KX ^ (LDS_KX + 8192)}, {v(vKXr)}
    ''')
    L.wait(ot0)
    PO = ACC
    PU = VX
    def hs(T, j): add(PO + 2 * T + j, WA + 4 * T + 2 * j, WA + 4 * T + 2 * j + 1)
    def tag(Qd):
        x = PO + 8 * Qd
        A(f'v_add_u32 {v(x)}, {s(sTa)}, {v(x)}')
        A(f'v_and_or_b32 {v(x)}, {v(x)}, {v(vMask)}, {s(sTb)}')
    def pk(P):
        Qd, p = P >> 1, P & 1
        for j in range(2): cvt(PU + 4 * Qd + 2 * j + p, PO + 4 * P + j, PO + 4 * P + 2 + j)
    def pstore(Qd):
        if 'pl2' in EXP: V.issue(f'buffer_store_dwordx4 {v(PU+4*Qd,4)}, {v(vPs)}, s[4:7], {(0, s(sHr))[Qd]} offen{stf}')
        else: V.issue(f'buffer_store_dwordx4 {v(PU+4*Qd,4)}, {v(vPs)}, s[4:7], 0 offen offset:{Qd*128}{stf}')
    for T in range(8):
        smf(A, WA + 4 * T, OA, v(WO0 + 8 * T, 8))
        if T == 0: L.wait(ot1)
        if T in (1, 3, 5) and 'hint' in EXP: hpoll(T >> 1)
        if T >= 2: hs(T - 2, 0)
        if T >= 4 and ('w2' not in EXP): L.wait(wt[T])
        if T in (4, 6) and 'w2' in EXP: L.wait(wt[T + 1])
        smf(A, WA + 4 * T, OA + 4, v(MF + (T & 3) * 8, 8))
        if T < 4: wofill(T + 4, 0); wofill(T + 4, 1)
        if T >= 2: hs(T - 2, 1)
        if T in (2, 6): tag(T >> 2)
        if T >= 3 and T % 2 == 1: pk((T - 3) // 2)
        if T == 5:
            pstore(0)
            if dbg == 2: stamp(7)
    hs(6, 0); hs(6, 1); hs(7, 0); hs(7, 1); pk(3); pstore(1)
    stamp(8)
    RD, RT = vT0, MF + 28
    A(f's_mov_b32 {s(sSpin)}, 0')
    def red_issue(k=0):
        for i in range(2):
            V.issue(f'buffer_load_dwordx4 {v(RS[k] + 4*i, 4)}, {v(vPl)}, s[4:7], 0 offen offset:{i*(2048 if "pl3" in EXP else 1024)} sc1')
    def chkR(k=0, spec=False):
        A(f'v_bitop3_b32 {v(RT)}, {v(RS[k])}, {v(RS[k]+4)}, {s(sTg)} bitop3:0x7e')
        if k == 0 or spec: mm(RD, RS[k], SEL, '0')
        A(f'v_and_b32 {v(RT)}, 1, {v(RT)}')
        A(f'v_cmp_ne_u32 vcc, 0, {v(RT)}')
        if k == 0 or spec: mm(RD, RS[k] + 4, SEL, v(RD, 4))
    A(f's_add_u32 {s(sT1)}, {s(sStep)}, 2\ns_lshr_b32 {s(sT1)}, {s(sT1)}, 2')
    if 'noref' not in EXP: A(f's_cmp_eq_u32 {s(sStep)}, 16\ns_cselect_b32 {s(sT1)}, 15, {s(sT1)}')
    A(f's_min_u32 {s(sT1)}, {s(sT1)}, 15')
    A(f's_cmp_lt_u32 {s(sT1)}, {s(sReady)}\ns_cbranch_scc0 L_need_{sfx}')
    A.label(f'L_have_{sfx}')
    if 'hint' in EXP:
        V.wait(ht[1])
        hchk(0)
        A(f's_cbranch_vccz L_h1_{sfx}')
        hchk(1)
        A(f's_cbranch_vccz L_h2_{sfx}')
        hpoll(0)
        V.wait(ht[2])
        hchk(2)
        A(f's_cbranch_vccnz L_hf_{sfx}')
        delay(e3)
        A.label(f'L_h2_{sfx}')
        delay(e2)
    A.label(f'L_h1_{sfx}')
    wdelay('1', d1a, d1b)
    red_issue(ordR[0])
    ring_prefetch(); zero(ACC, 24)
    for n in range(1, e2 + 1):
        delay(ef - 20 if n == 1 else ef); red_issue(ordR[n])
    if LIN:
        for n, k in enumerate(ordR[:-1]):
            A(f's_waitcnt vmcnt({2*(e2 - n)})')
            chkR(k, True)
            A(f's_cbranch_vccz L_rok_{sfx}')
    A(f's_waitcnt vmcnt({0 if LIN else 2*e2})')
    chkR(0)
    A(f's_cbranch_vccnz L_rf0_{sfx}')
    A.label(f'L_rok_{sfx}')
    stamp(9)
    if dbg == 1: A(f's_add_u32 s89, s89, {s(sSpin)}')
    A(f'''
    v_permlane32_swap_b32 {v(RD)}, {v(RD+2)}
    v_permlane32_swap_b32 {v(RD+1)}, {v(RD+3)}
    v_add_f32 {v(RD)}, {v(RD)}, {v(RD+2)}
    v_add_f32 {v(RD+1)}, {v(RD+1)}, {v(RD+3)}
    v_permlane16_swap_b32 {v(RD)}, {v(RD+1)}
    v_add_f32 {v(RD)}, {v(RD)}, {v(RD+1)}
    v_mov_b32_dpp {v(RD+1)}, {v(RD)} quad_perm:[1,0,3,2] row_mask:0xf bank_mask:0xf
    v_cvt_pk_bf16_f32 {v(RD)}, {v(RD)}, {v(RD+1)}
    v_min_u32 {v(RD)}, {s(sSent)}, {v(RD)}
    buffer_store_dword {v(RD)}, {v(vMs)}, s[4:7], {s(sNext)} offen{stf}
    s_xor_b32 {s(sCur0)}, {s(sCur0)}, 8192
    s_xor_b32 {s(sCur1)}, {s(sCur1)}, 8192
    s_xor_b32 {s(sNext)}, {s(sNext)}, 8192
    s_xor_b32 {s(sTg)}, {s(sTg)}, 1
    s_xor_b32 {s(sTb)}, {s(sTb)}, 0x10000
    s_xor_b32 {s(sTa)}, {s(sTa)}, 0x10000
    s_add_u32 {s(sStep)}, {s(sStep)}, 1
    s_mov_b32 {s(sSpin)}, 0
    ''')
    stamp(10)
    wdelay('2', d2a, d2b)
    for k in range(e3 + 1):
        if k: delay(ef)
        gatherA(ordA[k])
        if nd == 2 and k == e3: gatherB()
    if dbg == 2:
        A(f's_cmp_lg_u32 {s(sStep)}, 31\ns_cbranch_scc1 L_nd1_{sfx}\ns_waitcnt lgkmcnt(0)')
        for i in range(11): A(f's_mov_b32 s{76+i}, s{52+2*i}')
        A(f'L_nd1_{sfx}:\ns_cmp_lg_u32 {s(sStep)}, 32\ns_cbranch_scc1 L_nd2_{sfx}\ns_waitcnt lgkmcnt(0)')
        A(f's_mov_b32 s88, s52\ns_mov_b32 s89, s56\ns_mov_b32 s74, s58\nL_nd2_{sfx}:')
    elif dbg:
        A('s_waitcnt lgkmcnt(0)')
        for i in range(10):
            A(f's_sub_u32 {s(sT0)}, s{52+2*(i+1)}, s{52+2*i}\ns_add_u32 s{76+i}, s{76+i}, {s(sT0)}')
        A(f's_sub_u32 {s(sT0)}, s52, s87\ns_cmp_eq_u32 {s(sStep)}, 1\ns_cselect_b32 {s(sT0)}, 0, {s(sT0)}\ns_add_u32 s86, s86, {s(sT0)}\ns_mov_b32 s87, s72')
    A(f's_branch L_loop_{sfx}')
    A.label(f'L_need_{sfx}')
    ensure(A, sfx)
    A(f's_branch L_have_{sfx}')
    A.label(f'L_hf_{sfx}')
    hpoll(1)
    A.label(f'L_hl_{sfx}')
    for k in (0, 1):
        A('s_waitcnt vmcnt(1)')
        hchk(k)
        A(f's_cbranch_vccz L_hd_{sfx}')
        hpoll(k)
    A(f's_add_u32 {s(sSpin)}, {s(sSpin)}, 1\ns_cmp_lt_u32 {s(sSpin)}, {SPIN_LIMIT}\ns_cbranch_scc1 L_hl_{sfx}\ns_endpgm')
    A.label(f'L_hd_{sfx}')
    delay(ef)
    A(f's_branch L_h1_{sfx}')
    poll_tail('a', 1, GA, 4, gatherA, chkA, lambda: A(f'ds_write_b128 {v(vMw)}, {v(MF,4)}\ns_branch L_aok_{sfx}'), blind=0 if LIN else e3)
    poll_tail('b', 1, GB, 4, gatherB, chkB, lambda: A(f'ds_write_b128 {v(vMw)}, {v(MF+16,4)} offset:4096\ns_branch L_bok_{sfx}'))
    def finR():
        mm(RD, RS[0], SEL, '0'); mm(RD, RS[0] + 4, SEL, v(RD, 4)); A(f's_branch L_rok_{sfx}')
    poll_tail('r', 2, RS, 8, red_issue, chkR, finR, blind=0 if LIN else e2)

HDR = '; @launch grid=(256,1,1) block=(256,1,1) lds=163840\n.amdgcn_target "amdgcn-amd-amdhsa--gfx950"\n'
```

```python
from asmlib import *
from layout import *
import gemm1 as g
import struct
def f2u(x): return struct.unpack('<I', struct.pack('<f', x))[0]
def v(i, n=1): return f'v{i}' if n == 1 else f'v[{i}:{i+n-1}]'
def a_(i, n=1): return f'a{i}' if n == 1 else f'a[{i}:{i+n-1}]'
def s(i, n=1): return f's{i}' if n == 1 else f's[{i}:{i+n-1}]'
F_KVQ, F_H1, F_ATT, F_PROG = WS_FLAG, WS_FLAG + 1024, WS_FLAG + 4096, WS_FLAG + 8192
F_LN, F_Q, F_TK = WS_FLAG + 12288, WS_FLAG + 12288 + 2048, WS_FLAG + 12288 + 3072
F_R, F_AT = WS_FLAG + 2048, WS_FLAG + 3072
N_G1, N_G2, N_ATT = 880, 128, 512
N_AW = 32
LB = 160000
gTk, wSp, wA, wB, wC, wD, wSeg = 74, 75, 81, 82, 83, 84, 85
vZ, vLB, vTk = 12, 13, 14
WSPIN = 1 << 16
G2SLP = 2
EXP = set()

def tstamp(A, slot):
    if 'tt' not in EXP: return
    A(f'''
    s_memrealtime s[92:93]
    s_lshl_b32 s94, s2, 5
    s_add_u32 s94, s94, {WS_DBG + 196608 + 4*slot}
    s_waitcnt lgkmcnt(0)
    v_mov_b32 v15, s92
    buffer_store_dword v15, off, s[4:7], s94
    ''')

def wait_flag(A, tag, soff, cmp, val, far=None, slp=8, srd='s[4:7]'):
    A(f'''
    s_mov_b32 {s(wSp)}, 0
L_wf_{tag}:
    buffer_load_dword {v(vTk)}, {v(vZ)}, {srd}, {s(soff)} offen sc0 sc1
    s_add_u32 {s(wSp)}, {s(wSp)}, 1
    s_cmp_lt_u32 {s(wSp)}, {WSPIN}
    s_cbranch_scc0 L_rec_exit
    s_waitcnt vmcnt(0)
    v_readfirstlane_b32 {s(wD)}, {v(vTk)}
    s_cmp_{cmp}_u32 {s(wD)}, {val}
    s_cbranch_scc1 L_wfd_{tag}
    s_sleep {slp * (8 if 'slowpoll' in EXP else 1)}
    {'' if far is None else far}
    s_branch L_wf_{tag}
L_wfd_{tag}:
    ''')

def signal(A, soff, val, nxt='L_wk_next'):
    A(f'''
    s_waitcnt vmcnt(0)
    s_barrier
    s_cmp_lg_u32 {s(g.gW)}, 0
    s_cbranch_scc1 {nxt}
    v_mov_b32 {v(vTk)}, {val}
    s_mov_b64 exec, 1
    buffer_atomic_add {v(vTk)}, {v(vZ)}, s[4:7], {s(soff)} offen
    s_mov_b64 exec, -1
    s_branch {nxt}
    ''')

def gen_att_task(A):
    vL = g.gL
    vG, vN, vQ, vKM, vVX, vVM, vT0, vT1, vM, vT = 160, 161, 162, 163, 164, 165, 166, 167, 168, 169
    ONES = 172
    QF, KX, KM, VX, VM = 16, 48, 80, 96, 128
    SA, PM, PX, OL, O = 176, 188, 192, 196, 200
    OUT = 216
    A(f'''
L_att_next:
    ''')
    tstamp(A, 2)
    A(f'''
    s_add_u32 {s(gTk)}, {s(gTk)}, {N_AW}
    s_cmp_ge_u32 {s(gTk)}, {N_ATT}
    s_cbranch_scc1 L_rec_exit
L_att:
    s_mov_b32 {s(wA)}, {s(gTk)}
    s_lshr_b32 s24, {s(wA)}, 3
    s_and_b32 s25, {s(wA)}, 7
    s_lshl_b32 s25, s25, 2
    s_add_u32 s25, s25, {s(g.gW)}
    s_lshr_b32 {s(wA)}, s25, 1
    s_lshl_b32 {s(wA)}, {s(wA)}, 4
    s_lshr_b32 {s(wB)}, s24, 2
    s_add_u32 {s(wA)}, {s(wA)}, {s(wB)}
    s_lshl_b32 {s(wA)}, {s(wA)}, 2
    s_add_u32 {s(wA)}, {s(wA)}, {F_KVQ}
    v_lshrrev_b32 {v(vG)}, 4, {v(vL)}
    v_and_b32 {v(vN)}, 15, {v(vL)}
    v_lshlrev_b32 {v(vQ)}, 4, {v(vL)}
    s_lshl_b32 s26, s24, 18
    s_lshl_b32 s27, s25, 12
    s_add_u32 s26, s26, s27
    s_add_u32 s27, s26, {WS_Q}
    s_add_u32 s28, s27, {16*8192}
    s_add_u32 s29, s26, {WS_K}
    s_add_u32 s30, s29, {16*8192}
    s_add_u32 s34, s26, {WS_O}
    s_add_u32 s35, s34, {16*8192}
    s_lshl_b32 s31, s24, 5
    s_add_u32 s31, s31, s25
    s_lshl_b32 s36, s31, 12
    s_add_u32 s36, s36, {WS_KM}
    s_lshl_b32 s32, s31, 13
    s_add_u32 s32, s32, {WS_VT}
    s_add_u32 s33, s32, 4096
    v_lshrrev_b32 {v(vT0)}, 2, {v(vN)}
    v_and_b32 {v(vT1)}, 1, {v(vN)}
    v_lshlrev_b32 {v(vKM)}, 8, {v(vT0)}
    v_lshl_add_u32 {v(vKM)}, {v(vG)}, 6, {v(vKM)}
    v_lshl_add_u32 {v(vKM)}, {v(vT1)}, 3, {v(vKM)}
    v_lshlrev_b32 {v(vVX)}, 6, {v(vN)}
    v_lshl_add_u32 {v(vVX)}, {v(vG)}, 4, {v(vVX)}
    ''')
    wait_flag(A, 'a1', wA, 'eq', '258')
    ld = lambda d, a, so, off: A(f'buffer_load_dwordx4 {v(d,4)}, {v(a)}, s[4:7], s{so} offen offset:{off} sc1')
    for ks in range(4): ld(QF + 4 * ks, vQ, 27, ks * 1024)
    for ks in range(4): ld(KX + 4 * ks, vQ, 29, ks * 1024)
    for ks in range(4): ld(QF + 16 + 4 * ks, vQ, 28, ks * 1024)
    for ks in range(4): ld(KX + 16 + 4 * ks, vQ, 30, ks * 1024)
    for ft in range(8): ld(VX + 4 * ft, vVX, 32 + (ft >> 2), (ft & 3) * 1024)
    for i in range(4): A(f'v_mov_b32 {v(ONES+i)}, 0x3f803f80')
    A(f'v_lshlrev_b32 {v(vT0)}, 2, {v(vG)}')
    for r in range(4):
        A(f'v_add_u32 {v(vT1)}, {r}, {v(vT0)}')
        A(f'v_cmp_le_u32 s[{40+2*r}:{41+2*r}], {v(vT1)}, {v(vN)}')
    A(f's_mov_b32 s48, {f2u(SM_C)}\nv_mov_b32 {v(vT0)}, 0xf149f2ca\nv_mov_b32 {v(PM+1)}, 0')
    def mm(d, a, b, c, k=32):
        n = 4 if k == 32 else 2
        A(f'v_mfma_f32_16x16x{k}_bf16 {v(d,4)}, {v(a,n)}, {v(b,n)}, {c}')
    XS = (224, 228, 232)
    A('s_waitcnt vmcnt(8)')
    for ks in range(4):
        mm(XS[0], KX + 4 * ks, QF + 4 * ks, '0' if ks == 0 else v(XS[0], 4))
        mm(XS[1], KX + 4 * ks, QF + 16 + 4 * ks, '0' if ks == 0 else v(XS[1], 4))
        mm(XS[2], KX + 16 + 4 * ks, QF + 16 + 4 * ks, '0' if ks == 0 else v(XS[2], 4))
    for D in (XS[0], XS[2]):
        for r in range(4): A(f'v_cndmask_b32 {v(D+r)}, {v(vT0)}, {v(D+r)}, s[{40+2*r}:{41+2*r}]')
    A(f's_lshl_b32 {s(wA)}, s25, 7\ns_add_u32 {s(wA)}, {s(wA)}, {F_PROG}')
    wait_flag(A, 'a2', wA, 'gt', 's24', far=f's_add_u32 {s(wD)}, {s(wD)}, 1\ns_cmp_ge_u32 {s(wD)}, s24\ns_cbranch_scc1 L_wf_a2\ns_sleep 40', slp=2)
    tstamp(A, 0)
    if 'tt' in EXP: A('s_waitcnt vmcnt(0)')
    for ks in range(4):
        for i in range(4): A(f'buffer_load_dword {v(KM + 4*ks + i)}, {v(vKM)}, s[4:7], s36 offen offset:{ks*1024 + i*16 + 4} sc1')
    for w in range(4): ld(VM + 4 * w, vQ, 36, w * 1024)
    A('s_waitcnt vmcnt(4)')
    for ks in range(4):
        for qt in range(2):
            mm(SA + 4 * qt, KM + 4 * ks, QF + 16 * qt + 4 * ks, '0' if ks == 0 else v(SA + 4 * qt, 4))
    for qt in range(2):
        TM, TX0, TX1 = SA + 4 * qt, XS[qt], XS[2]
        A(f'v_max3_f32 {v(vM)}, {v(TX0+3)}, {v(TX0+1)}, {v(TX0+2)}')
        if qt == 1:
            A(f'v_max3_f32 {v(vM)}, {v(vM)}, {v(TX1)}, {v(TX1+1)}')
            A(f'v_max3_f32 {v(vM)}, {v(vM)}, {v(TX1+2)}, {v(TX1+3)}')
        A(f'v_max_f32 {v(vM)}, {v(vM)}, {v(TX0)}')
        A(f'v_max3_f32 {v(vM)}, {v(vM)}, {v(TM)}, {v(TM+1)}')
        for p in ('32', '16'):
            A(f'v_mov_b32 {v(vT)}, {v(vM)}\nv_permlane{p}_swap_b32 {v(vM)}, {v(vT)}\nv_max_f32 {v(vM)}, {v(vM)}, {v(vT)}')
        A(f'v_mul_f32 {v(vM)}, s48, {v(vM)}')
        regs = [TM, TM + 1] + [TX0 + r for r in range(4)] + ([TX1 + r for r in range(4)] if qt else [])
        for x in regs: A(f'v_fma_f32 {v(x)}, {v(x)}, s48, -{v(vM)}')
        for x in regs: A(f'v_exp_f32 {v(x)}, {v(x)}')
        A(f'v_cvt_pk_bf16_f32 {v(PM)}, {v(TM)}, {v(TM+1)}')
        A(f'v_cvt_pk_bf16_f32 {v(PX)}, {v(TX0)}, {v(TX0+1)}\nv_cvt_pk_bf16_f32 {v(PX+1)}, {v(TX0+2)}, {v(TX0+3)}')
        if qt: A(f'v_cvt_pk_bf16_f32 {v(PX+2)}, {v(TX1)}, {v(TX1+1)}\nv_cvt_pk_bf16_f32 {v(PX+3)}, {v(TX1+2)}, {v(TX1+3)}')
        else: A(f'v_mov_b32 {v(PX+2)}, 0\nv_mov_b32 {v(PX+3)}, 0')
        if qt == 0: A('s_waitcnt vmcnt(0)')
        mm(OL, ONES, PM, '0', 16)
        def pv(ks, first=False):
            for b in range(2):
                o = O + (ks & 1) * 8 + 4 * b; ft = 2 * ks + b
                mm(o, VM + 2 * ft, PM, '0', 16)
            if first: mm(OL, ONES, PX, v(OL, 4))
            for b in range(2):
                o = O + (ks & 1) * 8 + 4 * b; ft = 2 * ks + b
                mm(o, VX + 4 * ft, PX, v(o, 4))
        def fin(ks):
            o = O + (ks & 1) * 8; e = OUT + (ks & 1) * 4
            for i in range(8): A(f'v_mul_f32 {v(o+i)}, {v(vT1)}, {v(o+i)}')
            for r in range(4): A(f'v_cvt_pk_bf16_f32 {v(e+r)}, {v(o+r)}, {v(o+4+r)}')
            A(f'buffer_store_dwordx4 {v(e,4)}, {v(vQ)}, s[4:7], s{34+qt} offen offset:{ks*1024} sc1')
        pv(0, True)
        A(f'v_rcp_f32 {v(vT1)}, {v(OL)}')
        pv(1); fin(0); pv(2); fin(1); pv(3); fin(2); fin(3)
    if 'stflag' not in EXP:
        A(f's_lshl_b32 {s(wA)}, s24, 6\ns_add_u32 {s(wA)}, {s(wA)}, {F_ATT}')
        tstamp(A, 1)
        signal(A, wA, 1, 'L_att_next')
    else:
        A(f'''
        s_lshl_b32 {s(wA)}, s24, 5
        s_lshr_b32 {s(wB)}, s25, 2
        s_lshl_b32 {s(wB)}, {s(wB)}, 2
        s_add_u32 {s(wA)}, {s(wA)}, {s(wB)}
        s_add_u32 {s(wA)}, {s(wA)}, {F_ATT}
        s_cmp_eq_u32 {s(g.gW)}, 0
        s_cselect_b32 {s(wA)}, {s(wA)}, 0x7ffffff0
        v_mov_b32 {v(vTk)}, 1
        s_waitcnt vmcnt(0)
        s_barrier
        buffer_store_dword {v(vTk)}, off, s[4:7], {s(wA)} sc1
        s_branch L_att_next
        ''')

def gen_g2_task(A):
    vL = g.gL
    vG, vN, vA, vW, vR, vX, vS, vT0 = 1, 2, 3, 4, 5, 6, 7, 8
    ACC, FW, XR, FA = 16, 32, 40, 44
    NR = 52
    RED = 131072
    A(f'''
L_g2:
    s_mov_b32 {s(wA)}, {s(gTk)}
    s_and_b32 s24, {s(wA)}, 15
    s_lshr_b32 {s(wSeg)}, {s(wA)}, 4
    s_load_dwordx4 s[28:31], s[0:1], 72
    s_load_dwordx2 s[32:33], s[0:1], 0
    v_lshrrev_b32 {v(vG)}, 4, {v(vL)}
    v_and_b32 {v(vN)}, 15, {v(vL)}
    s_lshl_b32 s25, {s(g.gW)}, 15
    s_lshl_b32 s26, {s(g.gW)}, 10
    v_lshlrev_b32 {v(vS)}, 4, {v(vL)}
    v_add_u32 {v(vA)}, s26, {v(vS)}
    v_bfe_u32 {v(vW)}, {v(vL)}, 2, 1
    v_lshlrev_b32 {v(vW)}, 4, {v(vW)}
    v_lshrrev_b32 {v(vT0)}, 5, {v(vL)}
    v_lshl_add_u32 {v(vW)}, {v(vT0)}, 2, {v(vW)}
    v_bfe_u32 {v(vT0)}, {v(vL)}, 3, 2
    v_add_u32 {v(vW)}, {v(vW)}, {v(vT0)}
    v_lshlrev_b32 {v(vW)}, 10, {v(vW)}
    v_and_b32 {v(vT0)}, 3, {v(vL)}
    v_lshl_add_u32 {v(vW)}, {v(vT0)}, 4, {v(vW)}
    s_lshl_b32 s27, s24, 6
    s_add_u32 {s(wA)}, s27, s25
    v_add_u32 {v(vW)}, {s(wA)}, {v(vW)}
    v_bfe_u32 {v(vR)}, {v(vL)}, 2, 2
    v_lshl_add_u32 {v(vR)}, {v(vG)}, 3, {v(vR)}
    v_lshlrev_b32 {v(vR)}, 6, {v(vR)}
    v_lshl_add_u32 {v(vR)}, {v(vT0)}, 4, {v(vR)}
    v_add_u32 {v(vR)}, s25, {v(vR)}
    v_lshlrev_b32 {v(vX)}, 10, {v(vN)}
    v_lshl_add_u32 {v(vX)}, {v(vG)}, 4, {v(vX)}
    v_add_u32 {v(vX)}, s27, {v(vX)}
    s_mov_b32 s12, s22
    s_mov_b32 s13, s23
    s_mov_b32 s14, 0x400000
    s_waitcnt lgkmcnt(0)
    s_mov_b32 s40, s30
    s_mov_b32 s41, s31
    s_mov_b32 s42, 0x200000
    s_mov_b32 s43, 0x20000
    s_mov_b32 s44, s32
    s_mov_b32 s45, s33
    s_mov_b32 s46, 0x200000
    s_mov_b32 s47, 0x20000
    ''')
    def stage(lb0, n):
        for j in range(n):
            for i in range(2):
                A(f's_add_u32 m0, s25, {j*2048 + i*1024}')
                A(f's_mov_b32 s34, {(lb0 + j)*4*32*1024 + i*8*1024}')
                A(f'buffer_load_dwordx4 {v(vW)}, s[12:15], s34 offen lds')
    for half in range(2):
        stage(half * 16, 16)
        A('s_waitcnt vmcnt(0)')
        for j in range(16):
            for bt in range(2):
                for t in range(2):
                    d = ((half * 16 + j) * 2 + bt) * 4 + 2 * t
                    A(f'ds_read_b64_tr_b16 {a_(d, 2)}, {v(vR)} offset:{j*2048 + t*256 + bt*8}')
            if j % 3 == 2: A('s_waitcnt lgkmcnt(0)')
        A('s_waitcnt lgkmcnt(0)')
    A(f's_mov_b32 s12, s28\ns_mov_b32 s13, s29\ns_mov_b32 s14, {1792*1024}')
    stage(0, 14)
    A(f'''
L_g2_seg:
    s_lshr_b32 {s(wA)}, {s(wSeg)}, 3
    s_lshl_b32 {s(wA)}, {s(wA)}, 2
    s_add_u32 {s(wA)}, {s(wA)}, {F_H1}
    ''')
    wait_flag(A, 'g1', wA, 'eq', '7')
    A(f'''
    s_mul_i32 s35, {s(wSeg)}, 57344
    s_add_u32 s35, s35, {WS_H1}
    s_lshl_b32 s36, {s(wSeg)}, 14
    buffer_load_dwordx4 {v(XR,4)}, {v(vX)}, s[44:47], s36 offen
    ''')
    for lb in range(14):
        A(f's_add_u32 s34, s35, {lb*4096}')
        A(f'buffer_load_dwordx4 {v(FA + lb*4, 4)}, {v(vA)}, s[4:7], s34 offen sc1')
    for lb in range(14):
        for bt in range(2):
            for t in range(2):
                A(f'ds_read_b64_tr_b16 {v(FW + bt*4 + 2*t, 2)}, {v(vR)} offset:{lb*2048 + t*256 + bt*8}')
        A(f's_waitcnt vmcnt({13-lb}) lgkmcnt(0)')
        for bt in range(2):
            ac = v(ACC + bt*4, 4)
            A(f'v_mfma_f32_16x16x32_bf16 {ac}, {v(FW + bt*4, 4)}, {v(FA + lb*4, 4)}, {"0" if lb == 0 else ac}')
    if 'stflag' not in EXP:
        A(f's_lshr_b32 {s(wA)}, {s(wSeg)}, 1\ns_lshl_b32 {s(wA)}, {s(wA)}, 6\ns_add_u32 {s(wA)}, {s(wA)}, {F_ATT}')
        A(f's_lshl_b32 s35, {s(wSeg)}, 17\ns_add_u32 s35, s35, {WS_O}')
        A(f's_cmp_lg_u32 {s(g.gW)}, 0\ns_cbranch_scc1 L_wfd_g2')
        wait_flag(A, 'g2', wA, 'eq', '8', slp=G2SLP, far=f's_cmp_lg_u32 {s(wD)}, 0\ns_cbranch_scc1 L_wf_g2\ns_sleep 6')
        A('s_barrier')
    else:
        A(f'''
        s_lshr_b32 {s(wA)}, {s(wSeg)}, 1
        s_lshl_b32 {s(wA)}, {s(wA)}, 5
        s_add_u32 {s(wA)}, {s(wA)}, {F_ATT}
        s_lshl_b32 s35, {s(wSeg)}, 17
        s_add_u32 s35, s35, {WS_O}
        s_cmp_lg_u32 {s(g.gW)}, 0
        s_cbranch_scc1 L_g2w_d
        v_and_b32 v15, 7, {v(vL)}
        v_lshlrev_b32 v15, 2, v15
        s_mov_b32 {s(wSp)}, 0
L_g2w:
        buffer_load_dword {v(vTk)}, v15, s[4:7], {s(wA)} offen sc0 sc1
        s_add_u32 {s(wSp)}, {s(wSp)}, 1
        s_cmp_lt_u32 {s(wSp)}, {WSPIN}
        s_cbranch_scc0 L_rec_exit
        s_waitcnt vmcnt(0)
        v_cmp_eq_u32 vcc, 0, {v(vTk)}
        s_cbranch_vccz L_g2w_d
        s_sleep 2
        s_cmp_lg_u32 vcc_lo, -1
        s_cbranch_scc1 L_g2w
        s_sleep 6
        s_branch L_g2w
L_g2w_d:
        s_barrier
        ''')
    tstamp(A, 3)
    if 'tt' in EXP: A('s_waitcnt vmcnt(0)')
    for lb in range(32):
        A(f's_add_u32 s34, s35, {lb*4096}')
        A(f'buffer_load_dwordx4 {v(FA + lb*4, 4)}, {v(vA)}, s[4:7], s34 offen sc1')
    for lb in range(32):
        A(f's_waitcnt vmcnt({31 - lb})')
        for bt in range(2):
            ac = v(ACC + bt*4, 4)
            A(f'v_mfma_f32_16x16x32_bf16 {ac}, {a_((lb*2+bt)*4, 4)}, {v(FA + lb*4, 4)}, {ac}')
    tstamp(A, 4)
    A(f's_lshl_b32 {s(wA)}, {s(g.gW)}, 11\ns_add_u32 {s(wA)}, {s(wA)}, {RED}\nv_add_u32 {v(vT0)}, {s(wA)}, {v(vS)}')
    for i in range(2): A(f'ds_write_b128 {v(vT0)}, {v(ACC + 4*i, 4)} offset:{i*1024}')
    A(f'''
    s_waitcnt lgkmcnt(0)
    s_barrier
    s_cmp_ge_u32 {s(g.gW)}, 1
    s_cbranch_scc1 L_g2_skip
    ''')
    for sw in range(1, 4):
        for bt in range(2):
            A(f'ds_read_b128 {v(FA + (sw*2+bt)*4, 4)}, {v(vT0)} offset:{sw*2048 + bt*1024}')
    A('s_waitcnt lgkmcnt(0)')
    for i in range(8):
        A(f'v_add_f32 {v(FA+i)}, {v(ACC+i)}, {v(FA+8+i)}')
        A(f'v_add_f32 {v(FA+16+i)}, {v(FA+16+i)}, {v(FA+24+i)}')
    for i in range(8): A(f'v_add_f32 {v(FA+i)}, {v(FA+i)}, {v(FA+16+i)}')
    for d in range(4):
        A(f'v_lshlrev_b32 {v(FW)}, 16, {v(XR+d)}\nv_and_b32 {v(FW+1)}, 0xffff0000, {v(XR+d)}')
        A(f'v_add_f32 {v(FA+2*d)}, {v(FA+2*d)}, {v(FW)}\nv_add_f32 {v(FA+2*d+1)}, {v(FA+2*d+1)}, {v(FW+1)}')
        A(f'v_cvt_pk_bf16_f32 {v(FA+32+d)}, {v(FA+2*d)}, {v(FA+2*d+1)}')
    A(f'''
    buffer_store_dwordx4 {v(FA+32,4)}, {v(vX)}, s[40:43], s36 offen
L_g2_skip:
    s_barrier
    ''')
    tstamp(A, 5)
    A(f'''
    s_add_u32 {s(wSeg)}, {s(wSeg)}, {N_G2 // 16}
    s_cmp_lt_u32 {s(wSeg)}, 128
    s_cbranch_scc1 L_g2_seg
    ''')
    if 'hd' in EXP:
        A('s_memrealtime s[96:97]\ns_waitcnt lgkmcnt(0)\ns_sub_u32 s90, s96, s91\nv_mov_b32 v30, s90\nv_mov_b32 v31, 0\ns_mov_b64 exec, 1\nbuffer_atomic_umax v30, v31, s[8:11], 0 offen offset:32\ns_mov_b64 exec, -1')
    A(f'''
    s_endpgm
    ''')

def gen_worker(A, sWV, sXcc, sRank, vLrec, D_FINIT, D_CLAIM, D_SLOW):
    wQ, wTry, wC1, wOff, wLn = 86, 87, 88, 89, 59
    def ticket(tag, srd='s[4:7]'):
        A(f'''
        s_cmp_lg_u32 {s(g.gW)}, 0
        s_cbranch_scc1 L_tk_bar_{tag}
        v_mov_b32 {v(vTk)}, 1
        s_mov_b64 exec, 1
        buffer_atomic_add {v(vTk)}, {v(vZ)}, {srd}, {s(wOff)} offen sc0
        s_waitcnt vmcnt(0)
        ds_write_b32 {v(vLB)}, {v(vTk)}
        s_mov_b64 exec, -1
        s_waitcnt lgkmcnt(0)
L_tk_bar_{tag}:
        s_barrier
        ds_read_b32 {v(vTk)}, {v(vLB)}
        s_waitcnt lgkmcnt(0)
        v_readfirstlane_b32 {s(gTk)}, {v(vTk)}
        s_barrier
        ''')
    A(f'''
L_worker:
    {'s_memrealtime s[92:93]' if 'wt' in EXP else ''}
    s_mov_b32 {s(g.gW)}, {s(sWV)}
    v_and_b32 {v(g.gL)}, 63, v0
    ''')
    g.g1_setup(A)
    A(f'''
    v_mov_b32 {v(vZ)}, 0
    v_mov_b32 {v(vLB)}, {LB}
    s_add_u32 {s(wQ)}, {s(sXcc)}, 6
    s_cmp_ge_u32 {s(wQ)}, 14
    s_cselect_b32 {s(wA)}, 14, 0
    s_sub_u32 {s(wQ)}, {s(wQ)}, {s(wA)}
    s_cmp_ge_u32 {s(wQ)}, 7
    s_cselect_b32 {s(wA)}, 7, 0
    s_sub_u32 {s(wQ)}, {s(wQ)}, {s(wA)}
    s_mov_b32 {s(wTry)}, 0
    s_mov_b32 s90, 0
    s_mov_b32 {s(wLn)}, 0
    s_mov_b32 {s(wA)}, {D_FINIT}
    s_cmp_lg_u32 {s(g.gW)}, 0
    s_cbranch_scc1 L_wfd_fi
    ''')
    wait_flag(A, 'fi', wA, 'ge', '1', slp=2, srd='s[8:11]')
    A(f'''
L_wk_next:
    s_lshl_b32 {s(wOff)}, {s(wQ)}, 7
    s_add_u32 {s(wOff)}, {s(wOff)}, {F_Q}
    ''')
    ticket('q')
    A(f'''
    s_cmp_lt_u32 {s(wQ)}, 4
    s_cselect_b32 {s(wC1)}, 5, 4
    s_mov_b32 {s(wB)}, {1 << 14}
    s_cselect_b32 {s(wB)}, {(1 << 16) // 5 + 1}, {s(wB)}
    s_lshl_b32 {s(wA)}, {s(wC1)}, 4
    s_mov_b32 {s(wC)}, 16
    s_cmp_lt_u32 {s(gTk)}, {s(wA)}
    s_cbranch_scc1 L_wk_dec
    s_sub_u32 {s(gTk)}, {s(gTk)}, {s(wA)}
    s_cmp_lt_u32 {s(wQ)}, 2
    s_cselect_b32 {s(wC1)}, 4, 3
    s_mov_b32 {s(wB)}, {1 << 14}
    s_cselect_b32 {s(wB)}, {s(wB)}, {(1 << 16) // 3 + 1}
    s_lshl_b32 {s(wA)}, {s(wC1)}, 4
    s_mov_b32 {s(wC)}, 0
    s_cmp_lt_u32 {s(gTk)}, {s(wA)}
    s_cbranch_scc1 L_wk_dec
    s_add_u32 {s(wQ)}, {s(wQ)}, 1
    s_cmp_eq_u32 {s(wQ)}, 7
    s_cselect_b32 {s(wQ)}, 0, {s(wQ)}
    s_add_u32 {s(wTry)}, {s(wTry)}, 1
    s_cmp_lt_u32 {s(wTry)}, 7
    s_cbranch_scc1 L_wk_next
    s_mov_b32 {s(wOff)}, {F_TK}
    ''')
    ticket('r')
    A(f'''
    s_cmp_ge_u32 {s(gTk)}, 224
    s_cbranch_scc1 L_forced
    {'s_branch L_rec_exit' if 'g1only' in EXP else ''}
    s_mov_b32 {s(wTry)}, 0
L_role_g2:
    s_lshl_b32 {s(wOff)}, {s(wQ)}, 7
    s_add_u32 {s(wOff)}, {s(wOff)}, {F_R}
    ''')
    ticket('g')
    A(f'''
    s_lshl_b32 {s(wA)}, {s(wQ)}, 4
    s_add_u32 {s(wA)}, {s(wA)}, {s(gTk)}
    s_cmp_lt_u32 {s(gTk)}, 16
    s_cselect_b32 {s(gTk)}, {s(wA)}, {s(gTk)}
    s_cbranch_scc1 L_g2
    s_cmp_lg_u32 {s(wTry)}, 0
    s_cbranch_scc1 L_role_nx
    s_mov_b32 {s(wOff)}, {F_AT}
    ''')
    ticket('a')
    A(f'''
    s_cmp_lt_u32 {s(gTk)}, {N_AW}
    s_cbranch_scc1 L_att
L_role_nx:
    s_add_u32 {s(wQ)}, {s(wQ)}, 1
    s_cmp_eq_u32 {s(wQ)}, 7
    s_cselect_b32 {s(wQ)}, 0, {s(wQ)}
    s_add_u32 {s(wTry)}, {s(wTry)}, 1
    s_cmp_lt_u32 {s(wTry)}, 7
    s_cbranch_scc1 L_role_g2
    s_endpgm
L_forced:
    s_mov_b32 {s(wOff)}, {D_SLOW}
    ''')
    ticket('s', 's[8:11]')
    A(f's_mov_b32 {s(wOff)}, {D_CLAIM}')
    ticket('c', 's[8:11]')
    A(f'''
    s_mov_b32 {s(sRank)}, {s(gTk)}
    v_mov_b32 {v(vLrec)}, {v(g.gL)}
    s_mov_b32 s14, 0x400000
    s_mov_b32 s75, 0x7ffffff0
    s_cmp_lt_u32 {s(sRank)}, 32
    s_cbranch_scc1 L_rec_start
    s_endpgm
L_wk_dec:
    s_mul_i32 {s(g.gMB)}, {s(gTk)}, {s(wB)}
    s_lshr_b32 {s(g.gMB)}, {s(g.gMB)}, 16
    s_mul_i32 {s(wA)}, {s(g.gMB)}, {s(wC1)}
    s_sub_u32 {s(wA)}, {s(gTk)}, {s(wA)}
    s_mul_i32 {s(wA)}, {s(wA)}, 7
    s_add_u32 {s(wA)}, {s(wA)}, {s(wQ)}
    s_add_u32 {s(g.gNB)}, {s(wA)}, {s(wC)}
    s_add_u32 {s(wB)}, {s(wA)}, 32
    s_cmp_ge_u32 {s(wA)}, 16
    s_cselect_b32 {s(wB)}, {s(wB)}, {s(wA)}
    s_cmp_eq_u32 {s(wC)}, 0
    s_cselect_b32 {s(g.gNB)}, {s(wB)}, {s(g.gNB)}
    s_mov_b32 {s(wSp)}, 0
    v_and_b32 v15, 15, {v(g.gL)}
    v_lshlrev_b32 v15, 7, v15
    s_mov_b32 {s(wA)}, {F_LN}
L_ln_w:
    s_bitcmp1_b32 {s(wLn)}, {s(g.gMB)}
    s_cbranch_scc1 L_ln_ok
    buffer_load_dword {v(vTk)}, v15, s[4:7], {s(wA)} offen sc0 sc1
    s_add_u32 {s(wSp)}, {s(wSp)}, 1
    s_cmp_lt_u32 {s(wSp)}, {WSPIN}
    s_cbranch_scc0 L_rec_exit
    s_waitcnt vmcnt(0)
    v_cmp_le_u32 vcc, {7 if 'skipln' in EXP else 8}, {v(vTk)}
    s_mov_b32 {s(wLn)}, vcc_lo
    s_sleep 1
    s_branch L_ln_w
L_ln_ok:
    {'s_memrealtime s[94:95]' if 'wt' in EXP else ''}
    s_add_u32 s90, s90, 1
    ''')
    g.WT = 'wt' in EXP
    g.g1_tile(A, 'wk')
    if 'wt' in EXP:
        A(f'''
        s_waitcnt vmcnt(0)
        s_memrealtime s[100:101]
        s_cmp_lg_u32 s90, 1
        s_cbranch_scc1 L_wt_skip
        s_waitcnt lgkmcnt(0)
        s_lshl_b32 {s(wA)}, s2, 5
        s_add_u32 {s(wA)}, {s(wA)}, {WS_DBG + 131072}
        v_mov_b32 v16, s92
        v_mov_b32 v17, s94
        v_mov_b32 v18, s96
        v_mov_b32 v19, s98
        v_mov_b32 v20, s100
        v_mov_b32 v21, {s(g.gMB)}
        v_mov_b32 v22, {s(g.gNB)}
        v_mov_b32 v23, s91
        buffer_store_dwordx4 v[16:19], off, s[4:7], {s(wA)}
        buffer_store_dwordx4 v[20:23], off, s[4:7], {s(wA)} offset:16
L_wt_skip:
        ''')
    A(f'''
    s_and_b32 {s(wA)}, {s(g.gNB)}, 15
    s_lshl_b32 {s(wA)}, {s(wA)}, 4
    s_cmp_eq_u32 {s(g.gType)}, 3
    s_cselect_b32 {s(wA)}, 256, {s(wA)}
    s_add_u32 {s(wA)}, {s(wA)}, {s(g.gMB)}
    s_lshl_b32 {s(wA)}, {s(wA)}, 2
    s_add_u32 {s(wA)}, {s(wA)}, {F_KVQ}
    s_cmp_eq_u32 {s(g.gType)}, 0
    s_cselect_b32 {s(wB)}, 256, 1
    ''')
    signal(A, wA, s(wB))
    gen_att_task(A)
    gen_g2_task(A)
for c in (3, 5):
    for u in range(16 * c): assert (u * ((1 << 16) // c + 1)) >> 16 == u // c
_t = set()
for q in range(7):
    for i in range(5 if q < 4 else 4): _t.add(16 + q + 7 * i)
    for i in range(4 if q < 2 else 3):
        j = q + 7 * i; _t.add(j if j < 16 else j + 32)
assert _t == set(range(55))
```
